```python
import torch

def _softmax(x, axis=-1):
    return torch.softmax(x, dim=axis)
def _gelu(x):
    return torch.nn.functional.gelu(x, approximate="tanh")
def _silu(x):
    return torch.nn.functional.silu(x)
def _sigmoid(x):
    return torch.sigmoid(x)
def _layernorm(x, axis=-1, eps=1e-5):
    m = x.mean(dim=axis, keepdim=True)
    v = x.var(dim=axis, keepdim=True, unbiased=False)
    return (x - m) / torch.sqrt(v + eps)
def _scatter_add(tgt, idx, src, axis=0):
    return tgt.clone().index_add_(axis, idx, src)
def _segment_sum(src, seg, n):
    out = torch.zeros((n,) + src.shape[1:], dtype=src.dtype)
    return out.index_add_(0, seg, src)
def _pad(x, pw):
    flat = tuple(v for pair in reversed(pw) for v in pair)
    return torch.nn.functional.pad(x, flat)

kernel_name = 'standalone__softmax_full_mha__prompt'

def setup_inputs():

    _w = (lambda a: (lambda t: t.to(torch.bfloat16) if t.is_floating_point() else t)(torch.as_tensor(a)))
    B, S, D = 1, 2048, 1024
    return {
        "x": _w((lambda *s: torch.randn(*s, dtype=torch.bfloat16) * 0.2)(B, S, D)),
        "wqkv": _w((lambda *s: torch.randn(*s, dtype=torch.bfloat16) * 0.2)(D, 3 * D)),
        "wo": _w((lambda *s: torch.randn(*s, dtype=torch.bfloat16) * 0.05)(D, D)),
    }

def reference(x, wqkv, wo):
    B, S, D = x.shape
    H = 32; Dh = D // H
    qkv = (lambda x, *d: x.permute(*d))((x @ wqkv).reshape(B, S, 3, H, Dh), 2, 0, 3, 1, 4)
    q, k, v = qkv[0], qkv[1], qkv[2]
    scale = Dh ** -0.5
    scores = torch.einsum("bhqd,bhkd->bhqk", q, k) * scale
    p = _softmax(scores, axis=-1)
    o = torch.einsum("bhqk,bhkd->bhqd", p, v)
    return (lambda x, *d: x.permute(*d))(o, 0, 2, 1, 3).reshape(B, S, D) @ wo
```

```python
import sys
NAME = "standalone__softmax_full_mha__prompt"

class A:
    def __init__(self): self.l = []
    def __call__(self, s): self.l.append("    " + s)
    def label(self, s): self.l.append(s + ":")
    def raw(self, s): self.l.append(s)
    def comment(self, s): self.l.append("    ; " + s)
    def text(self): return "\n".join(self.l) + "\n"

def vr(b, n=1): return f"v{b}" if n == 1 else f"v[{b}:{b+n-1}]"
def sr(b, n=1): return f"s{b}" if n == 1 else f"s[{b}:{b+n-1}]"

class Lgkm:
    def __init__(self, a): self.a = a; self.q = []
    def issue(self, tag): self.q.append(tag)
    def need(self, tags):
        idx = -1
        for i, t in enumerate(self.q):
            if t in tags: idx = i
        if idx < 0: return
        n = len(self.q) - 1 - idx
        assert n <= 15
        self.a(f"s_waitcnt lgkmcnt({n})")
        self.q = self.q[idx+1:]
    def all(self):
        if self.q:
            self.a("s_waitcnt lgkmcnt(0)")
            self.q = []

QF_OFF  = 0
KVF_OFF = 4 << 20
OF_OFF  = 12 << 20
WS_USED = 16 << 20
QSCALE = 0.17677669529663687 * 1.4426950408889634

import struct
def f32bits(x): return struct.unpack('<I', struct.pack('<f', x))[0]

def wg_map_jm(a, sj, sm, st):
    a(f"s_and_b32 s{st}, s2, 7")
    a(f"s_lshr_b32 s{sm}, s2, 3")
    a(f"s_lshr_b32 s{sj}, s{st}, 1")
    a(f"s_lshl_b32 s{sj}, s{sj}, 2")
    a(f"s_and_b32 s{st+1}, s{sm}, 3")
    a(f"s_add_u32 s{sj}, s{sj}, s{st+1}")
    a(f"s_lshr_b32 s{sm}, s{sm}, 2")
    a(f"s_and_b32 s{st}, s{st}, 1")
    a(f"s_lshl_b32 s{st}, s{st}, 3")
    a(f"s_add_u32 s{sm}, s{sm}, s{st}")

def make_srd(a, d, plo, phi, off_sgpr, nrec):
    if off_sgpr is None:
        a(f"s_mov_b32 s{d}, s{plo}")
        a(f"s_mov_b32 s{d+1}, s{phi}")
    else:
        a(f"s_add_u32 s{d}, s{plo}, {off_sgpr}")
        a(f"s_addc_u32 s{d+1}, s{phi}, 0")
    a(f"s_mov_b32 s{d+2}, {nrec}")
    a(f"s_mov_b32 s{d+3}, 0x20000")

G1_NSLOT = 4
G1_SLOT = 40960
def gen_qkv(name):
    a = A()
    a.raw(f".globl {name}\n.p2align 8\n.type {name},@function\n{name}:")
    a("s_cmp_ge_u32 s2, 256")
    a("s_cbranch_scc1 L_qkv_end")
    a("s_load_dwordx4 s[4:7], s[0:1], 0")
    a("s_load_dwordx2 s[8:9], s[0:1], 40")
    SJ, SM = 10, 11
    wg_map_jm(a, SJ, SM, 12)
    a("v_lshrrev_b32 v1, 6, v0")
    a("v_and_b32 v2, 63, v0")
    a("s_nop 0")
    a("v_readfirstlane_b32 s14, v1")
    a("s_waitcnt lgkmcnt(0)")
    a("s_cmp_ge_u32 s14, 4")
    a("s_cbranch_scc1 L_qkv_loader")
    ACC = 128
    SETS = [64, 84]
    XA = 104
    WA = 108
    a("s_lshr_b32 s15, s14, 1")
    a("s_and_b32 s16, s14, 1")
    a("v_and_b32 v3, 31, v2")
    a("s_lshl_b32 s17, s15, 6")
    a("v_add_u32 v3, s17, v3")
    a("v_lshlrev_b32 v3, 7, v3")
    a("v_lshrrev_b32 v4, 1, v2")
    a("v_and_b32 v4, 7, v4")
    a("v_lshrrev_b32 v5, 5, v2")
    a("v_xor_b32 v4, v4, v5")
    for ks in range(4):
        a(f"v_xor_b32 v6, {2*ks}, v4")
        a(f"v_lshlrev_b32 v6, 4, v6")
        a(f"v_add_u32 v{XA+ks}, v3, v6")
    a("v_and_b32 v6, 15, v2")
    a("v_lshrrev_b32 v6, 2, v6")
    a("v_lshlrev_b32 v7, 3, v5")
    a("v_add_u32 v7, v7, v6")
    a("v_lshlrev_b32 v7, 7, v7")
    a("v_lshrrev_b32 v8, 4, v2")
    a("v_and_b32 v8, 1, v8")
    a("v_lshlrev_b32 v8, 1, v8")
    a("v_and_b32 v9, 3, v2")
    a("v_lshrrev_b32 v10, 1, v9")
    a("v_add_u32 v8, v8, v10")
    a("s_lshl_b32 s17, s16, 2")
    a("v_add_u32 v8, s17, v8")
    a("v_lshrrev_b32 v10, 1, v6")
    a("v_lshlrev_b32 v10, 2, v10")
    a("v_xor_b32 v8, v8, v10")
    a("v_lshlrev_b32 v8, 4, v8")
    a("v_add_u32 v7, v7, v8")
    a("v_and_b32 v9, 1, v9")
    a("v_lshlrev_b32 v9, 3, v9")
    a("v_add_u32 v7, v7, v9")
    a(f"v_add_u32 v{WA}, 16384, v7")
    for r in range(96): a(f"v_mov_b32 v{ACC+r}, 0")
    a("s_mov_b32 s18, 0")
    a(f"s_mov_b32 s21, {-(G1_NSLOT-1)*G1_SLOT & 0xffffffff}")
    a(f"s_mov_b32 s22, {G1_SLOT}")
    a("s_barrier")
    lg = Lgkm(a)
    def reads(setb, ks, tagp):
        x0, x1, w0, w1, w2 = setb, setb+4, setb+8, setb+12, setb+16
        R = []
        R.append((tagp+"x0", f"ds_read_b128 {vr(x0,4)}, v{XA+ks}"))
        R.append((tagp+"w0", f"ds_read_b64_tr_b16 {vr(w0,2)}, v{WA} offset:{ks*2048}"))
        R.append((tagp+"w0", f"ds_read_b64_tr_b16 {vr(w0+2,2)}, v{WA} offset:{ks*2048+512}"))
        R.append((tagp+"x1", f"ds_read_b128 {vr(x1,4)}, v{XA+ks} offset:4096"))
        R.append((tagp+"w1", f"ds_read_b64_tr_b16 {vr(w1,2)}, v{WA} offset:{8192+ks*2048}"))
        R.append((tagp+"w1", f"ds_read_b64_tr_b16 {vr(w1+2,2)}, v{WA} offset:{8192+ks*2048+512}"))
        R.append((tagp+"w2", f"ds_read_b64_tr_b16 {vr(w2,2)}, v{WA} offset:{16384+ks*2048}"))
        R.append((tagp+"w2", f"ds_read_b64_tr_b16 {vr(w2+2,2)}, v{WA} offset:{16384+ks*2048+512}"))
        return R
    def mfma(setb, i, t):
        x = setb + 4*i; w = setb + 8 + 4*t; acc = ACC + 16*(i*3+t)
        if t < 2:
            return f"v_mfma_f32_32x32x16_bf16 {vr(acc,16)}, {vr(w,4)}, {vr(x,4)}, {vr(acc,16)}"
        else:
            return f"v_mfma_f32_32x32x16_bf16 {vr(acc,16)}, {vr(x,4)}, {vr(w,4)}, {vr(acc,16)}"
    for tag, ins in reads(SETS[0], 0, "A"):
        a(ins); lg.issue(tag)
    a.raw(".p2align 6")
    a.label("L_qkv_loop")
    order = [(0,0),(1,0),(0,1),(1,1),(0,2),(1,2)]
    needs = [["x0","w0"],["x1"],["w1"],[],["w2"],[]]
    for ks in range(4):
        cur = SETS[ks & 1]; nxt = SETS[(ks+1) & 1]
        cp = "AB"[ks & 1]; np_ = "AB"[(ks+1) & 1]
        if ks == 3:
            lg.all()
            a("s_add_u32 s18, s18, 1")
            a("s_and_b32 s19, s18, %d" % (G1_NSLOT-1))
            a("s_cmp_eq_u32 s19, 0")
            a(f"s_cselect_b32 s20, s21, s22")
            for k in range(4): a(f"v_add_u32 v{XA+k}, s20, v{XA+k}")
            a(f"v_add_u32 v{WA}, s20, v{WA}")
            a("s_barrier")
        R = reads(nxt, (ks+1) & 3, np_)
        slots = [[], R[0:2], R[2:4], R[4:6], R[6:8], []]
        for k in range(6):
            for tag, ins in slots[k]:
                a(ins); lg.issue(tag)
            lg.need([cp+t for t in needs[k]])
            a(mfma(cur, *order[k]))
    a("s_cmp_lt_u32 s18, 16")
    a("s_cbranch_scc1 L_qkv_loop")
    a("s_waitcnt lgkmcnt(0)")
    a("s_nop 15")
    a("s_lshl_b32 s17, s10, 1")
    a("s_add_u32 s17, s17, s16")
    a("s_lshl_b32 s19, s11, 2")
    a("s_lshl_b32 s20, s15, 1")
    a("s_add_u32 s19, s19, s20")
    a("s_lshl_b32 s20, s17, 6")
    a("s_add_u32 s20, s20, s19")
    make_srd(a, 24, 8, 9, None, WS_USED)
    a("s_lshl_b32 s21, s20, 11")
    a("s_lshl_b32 s22, s20, 12")
    a(f"s_add_u32 s22, s22, {KVF_OFF}")
    a("v_lshlrev_b32 v3, 4, v2")
    a(f"s_mov_b32 s23, {f32bits(QSCALE)}")
    T = 64
    for i in range(2):
        for t in range(3):
            acc = ACC + 16*(i*3+t)
            if t == 0:
                for r in range(16): a(f"v_mul_f32 v{acc+r}, s23, v{acc+r}")
            base = T + 8*((i*3+t) % 4)
            for r in range(8): a(f"v_cvt_pk_bf16_f32 v{base+r}, v{acc+2*r}, v{acc+2*r+1}")
            if t == 0:
                sof = "s21"; o = i*2048
            else:
                sof = "s22"; o = i*4096 + (t-1)*2048
            a(f"s_add_u32 s28, {sof}, {o}")
            a(f"buffer_store_dwordx4 {vr(base,4)}, v3, s[24:27], s28 offen")
            a(f"buffer_store_dwordx4 {vr(base+4,4)}, v3, s[24:27], s28 offen offset:1024")
    a("s_endpgm")
    a.label("L_qkv_loader")
    a("s_sub_u32 s14, s14, 4")
    a("s_lshl_b32 s15, s11, 18")
    a("s_sub_u32 s16, 0x400000, s15")
    a("s_add_u32 s24, s4, s15"); a("s_addc_u32 s25, s5, 0"); a("s_mov_b32 s26, s16"); a("s_mov_b32 s27, 0x20000")
    a("s_lshl_b32 s15, s10, 7")
    a("s_sub_u32 s16, 0x600000, s15")
    a("s_add_u32 s28, s6, s15"); a("s_addc_u32 s29, s7, 0"); a("s_mov_b32 s30, s16"); a("s_mov_b32 s31, 0x20000")
    a("v_lshrrev_b32 v3, 3, v2")
    a("v_lshlrev_b32 v4, 11, v3")
    a("v_and_b32 v5, 7, v2")
    a("v_lshrrev_b32 v6, 4, v2")
    a("v_xor_b32 v7, v5, v6")
    a("v_lshlrev_b32 v7, 4, v7")
    a("v_add_u32 v4, v4, v7")
    a("s_lshl_b32 s15, s14, 16")
    a("v_add_u32 v10, s15, v4")
    a("v_xor_b32 v11, 64, v10")
    a("v_mul_u32_u24 v4, 6144, v3")
    a("v_and_b32 v6, 1, v6")
    a("v_lshlrev_b32 v6, 2, v6")
    a("v_xor_b32 v7, v5, v6")
    a("v_lshlrev_b32 v7, 4, v7")
    a("v_add_u32 v4, v4, v7")
    a("s_mul_i32 s15, s14, 98304")
    a("v_add_u32 v12, s15, v4")
    a("s_lshl_b32 s32, s14, 12")
    a("s_lshl_b32 s33, s14, 11")
    a("s_add_u32 s33, s33, 16384")
    a("s_mov_b32 s34, 0")
    a("s_mov_b32 s35, 0")
    a("s_mov_b32 s36, 0")
    def issue_stage():
        for i in range(4):
            a(f"s_add_u32 s37, s36, s32")
            if i: a(f"s_add_u32 s37, s37, {i*1024}")
            a("s_mov_b32 m0, s37")
            a(f"s_add_u32 s38, s34, {i*16384}")
            a(f"buffer_load_dwordx4 v{10+(i&1)}, s[24:27], s38 offen lds")
        for t in range(3):
            for kb in range(2):
                a(f"s_add_u32 s37, s36, s33")
                a(f"s_add_u32 s37, s37, {t*8192+kb*1024}")
                a("s_mov_b32 m0, s37")
                a(f"s_add_u32 s38, s35, {t*2048+kb*49152}")
                a(f"buffer_load_dwordx4 v12, s[28:31], s38 offen lds")
        a("s_add_u32 s34, s34, 128")
        a("s_add_u32 s35, s35, 393216")
        a(f"s_add_u32 s36, s36, {G1_SLOT}")
        a(f"s_cmp_eq_u32 s36, {G1_SLOT*G1_NSLOT}")
        a("s_cselect_b32 s36, 0, s36")
    for s in range(G1_NSLOT): issue_stage()
    a(f"s_waitcnt vmcnt({10*(G1_NSLOT-1)})")
    a("s_barrier")
    a("s_mov_b32 s39, 0")
    a.label("L_qkv_ldloop")
    a(f"s_waitcnt vmcnt({10*(G1_NSLOT-2)})")
    a("s_barrier")
    issue_stage()
    a("s_add_u32 s39, s39, 1")
    a(f"s_cmp_lt_u32 s39, {16-G1_NSLOT}")
    a("s_cbranch_scc1 L_qkv_ldloop")
    for k in range(G1_NSLOT):
        rem = max(0, G1_NSLOT-2-k)
        a(f"s_waitcnt vmcnt({10*rem})")
        a("s_barrier")
    a.label("L_qkv_end")
    a("s_endpgm")
    return a.text(), dict(vgpr=224, sgpr=48)

AT_T = 4; AT_R = 4; AT_SLOT = AT_T*8192
def gen_attn(name):
    a = A()
    a.raw(f".globl {name}\n.p2align 8\n.type {name},@function\n{name}:")
    a("s_cmp_ge_u32 s2, 256")
    a("s_cbranch_scc1 L_at_end")
    a("s_load_dwordx2 s[8:9], s[0:1], 40")
    SJ, SM = 10, 11
    wg_map_jm(a, SJ, SM, 12)
    a("v_lshrrev_b32 v1, 6, v0")
    a("v_and_b32 v2, 63, v0")
    a("s_nop 0")
    a("v_readfirstlane_b32 s14, v1")
    a("s_lshr_b32 s15, s14, 2")
    a("s_and_b32 s16, s14, 3")
    a("s_lshl_b32 s17, s10, 1")
    a("s_add_u32 s17, s17, s15")
    a("s_lshl_b32 s18, s11, 2")
    a("s_add_u32 s18, s18, s16")
    a("s_waitcnt lgkmcnt(0)")
    make_srd(a, 24, 8, 9, None, WS_USED)
    Q, K, V = 8, 16, 24
    S = [32, 48]; P = [64, 72]; O = 80; L = 96; ONES = 100; IDX = 104; LB = [105, 106]
    a("v_lshlrev_b32 v3, 4, v2")
    a("s_lshl_b32 s19, s17, 6")
    a("s_add_u32 s19, s19, s18")
    a("s_lshl_b32 s19, s19, 11")
    a(f"buffer_load_dwordx4 {vr(Q,4)}, v3, s[24:27], s19 offen")
    a(f"buffer_load_dwordx4 {vr(Q+4,4)}, v3, s[24:27], s19 offen offset:1024")
    a("s_lshl_b32 s20, s17, 18")
    a("s_lshl_b32 s21, s16, 10")
    a("s_add_u32 s20, s20, s21")
    a(f"s_add_u32 s20, s20, {KVF_OFF}")
    a("s_lshl_b32 s21, s14, 10")
    def dma_stage(slot):
        for k in range(AT_T):
            a(f"s_add_u32 m0, s21, {slot*AT_SLOT + k*8192}")
            a("s_nop 0")
            a(f"buffer_load_dwordx4 v3, s[24:27], s20 offen lds")
            a("s_add_u32 s20, s20, 4096")
    for s in range(3): dma_stage(s)
    a("s_lshl_b32 s22, s15, 12")
    a(f"v_add_u32 v{LB[0]}, s22, v3")
    a(f"v_add_u32 v{LB[1]}, 65536, v{LB[0]}")
    for r in range(16): a(f"v_mov_b32 v{O+r}, 0")
    for r in range(4): a(f"v_mov_b32 v{L+r}, 0")
    for r in range(8): a(f"v_mov_b32 v{P[1]+r}, 0")
    for r in range(8): a(f"v_mov_b32 v{V+r}, 0")
    a("v_and_b32 v4, 6, v2")
    a("v_mov_b32 v5, 0x3f803f80")
    a("v_cmp_eq_u32 vcc, 0, v4")
    a("s_nop 1")
    a(f"v_cndmask_b32 v{ONES}, 0, v5, vcc")
    a(f"v_cndmask_b32 v{ONES+1}, 0, v5, vcc")
    a("v_cmp_eq_u32 vcc, 4, v4")
    a("s_nop 1")
    a(f"v_cndmask_b32 v{ONES+2}, 0, v5, vcc")
    a(f"v_cndmask_b32 v{ONES+3}, 0, v5, vcc")
    a("v_and_b32 v4, 1, v2")
    a("v_mov_b32 v5, 0x44444444")
    a("v_mov_b32 v6, 0xeeeeeeee")
    a("v_cmp_eq_u32 vcc, 0, v4")
    a("s_nop 1")
    a(f"v_cndmask_b32 v{IDX}, v6, v5, vcc")
    def ldsrd(dst, tile, f):
        off = (tile % (AT_T*AT_R)) * 8192 + f*1024
        b = LB[off >> 16]; off &= 0xffff
        return f"ds_read_b128 {vr(dst,4)}, v{b} offset:{off}"
    a(f"s_waitcnt vmcnt({2*AT_T})")
    a("s_barrier")
    lg = Lgkm(a)
    a(ldsrd(K, 0, 0)); a(ldsrd(K+4, 0, 1))
    a("s_waitcnt lgkmcnt(0)")
    a(f"v_mfma_f32_32x32x16_bf16 {vr(S[0],16)}, {vr(K,4)}, {vr(Q,4)}, 0")
    a(f"v_mfma_f32_32x32x16_bf16 {vr(S[0],16)}, {vr(K+4,4)}, {vr(Q+4,4)}, {vr(S[0],16)}")
    a(ldsrd(K, 1, 0)); lg.issue("K"); a(ldsrd(K+4, 1, 1)); lg.issue("K")
    a(ldsrd(V, 0, 2)); lg.issue("V"); a(ldsrd(V+4, 0, 3)); lg.issue("V")
    a("s_nop 7")
    a("s_mov_b32 s23, 0")
    a.raw(".p2align 6")
    a.label("L_at_loop")
    NT = AT_T*AT_R
    for i in range(NT):
        X = S[i & 1]; Y = S[(i+1) & 1]; PX = P[i & 1]; PY = P[(i+1) & 1]
        ex = lambda r: a(f"v_exp_f32 v{X+r}, v{X+r}")
        cv = lambda r: a(f"v_cvt_pk_bf16_f32 v{PX+r}, v{X+2*r}, v{X+2*r+1}")
        lg.need(["K"])
        a(f"v_mfma_f32_32x32x16_bf16 {vr(Y,16)}, {vr(K,4)}, {vr(Q,4)}, 0")
        ex(0); ex(1); ex(2)
        a(f"v_mfma_f32_32x32x16_bf16 {vr(Y,16)}, {vr(K+4,4)}, {vr(Q+4,4)}, {vr(Y,16)}")
        a(ldsrd(K, i+2, 0)); lg.issue("K"); a(ldsrd(K+4, i+2, 1)); lg.issue("K")
        ex(3); cv(0); ex(4); ex(5); cv(1)
        lg.need(["V"])
        if i % AT_T == 0:
            a(f"s_waitcnt vmcnt({AT_T})")
            a("s_barrier")
            dma_stage(((i // AT_T) + 3) % AT_R)
        a(f"v_mfma_f32_32x32x16_bf16 {vr(O,16)}, {vr(V,4)}, {vr(PY,4)}, {vr(O,16)}")
        ex(6); ex(7); cv(2); ex(8); ex(9); cv(3)
        a(f"v_mfma_f32_32x32x16_bf16 {vr(O,16)}, {vr(V+4,4)}, {vr(PY+4,4)}, {vr(O,16)}")
        ex(10); ex(11); cv(4); ex(12)
        a(f"v_smfmac_f32_16x16x64_bf16 {vr(L,4)}, {vr(ONES,4)}, {vr(PY,8)}, v{IDX}")
        a(ldsrd(V, i, 2)); lg.issue("V"); a(ldsrd(V+4, i, 3)); lg.issue("V")
        ex(13); cv(5); ex(14); ex(15); cv(6)
        a("s_nop 0")
        cv(7)
    a("s_add_u32 s23, s23, 1")
    a(f"s_cmp_lt_u32 s23, {64//NT}")
    a("s_cbranch_scc1 L_at_loop")
    PL = P[(NT-1) & 1]
    a("s_waitcnt lgkmcnt(0)")
    a(f"v_mfma_f32_32x32x16_bf16 {vr(O,16)}, {vr(V,4)}, {vr(PL,4)}, {vr(O,16)}")
    a(f"v_mfma_f32_32x32x16_bf16 {vr(O,16)}, {vr(V+4,4)}, {vr(PL+4,4)}, {vr(O,16)}")
    a(f"v_smfmac_f32_16x16x64_bf16 {vr(L,4)}, {vr(ONES,4)}, {vr(PL,8)}, v{IDX}")
    a("s_waitcnt vmcnt(0)")
    a("s_nop 15")
    a(f"v_add_f32 v{L}, v{L}, v{L+1}")
    a(f"v_mov_b32 v4, {f32bits(2.0**-40)}")
    a(f"v_mov_b32 v5, {f32bits(2.0**40)}")
    a(f"v_cmp_nge_f32 vcc, v{L}, v4")
    a(f"v_cmp_nle_f32 s[30:31], v{L}, v5")
    a("s_or_b64 s[30:31], s[30:31], vcc")
    a(f"v_mov_b32 v5, {f32bits(2.0**100)}")
    for r in range(16):
        a(f"v_cmp_nlt_f32 vcc, abs(v{O+r}), v5")
        a("s_or_b64 s[30:31], s[30:31], vcc")
    a("s_cmp_lg_u64 s[30:31], 0")
    a("s_cbranch_scc1 L_at_slow")
    a.label("L_at_fin")
    a(f"v_rcp_f32 v4, v{L}")
    a("s_nop 0")
    for r in range(16): a(f"v_mul_f32 v{O+r}, v{O+r}, v4")
    for r in range(8): a(f"v_cvt_pk_bf16_f32 v{P[0]+r}, v{O+2*r}, v{O+2*r+1}")
    a("s_lshl_b32 s19, s18, 6")
    a("s_lshl_b32 s28, s17, 1")
    a("s_add_u32 s19, s19, s28")
    a("s_lshl_b32 s19, s19, 10")
    a(f"s_add_u32 s19, s19, {OF_OFF}")
    a(f"buffer_store_dwordx4 {vr(P[0],4)}, v3, s[24:27], s19 offen")
    a(f"buffer_store_dwordx4 {vr(P[0]+4,4)}, v3, s[24:27], s19 offen offset:1024")
    a("s_endpgm")
    a.label("L_at_slow")
    M = 107; X = S[0]; PX = P[0]
    a(f"v_mov_b32 v{M}, 0xff800000")
    a(f"v_mov_b32 v{L}, 0")
    for r in range(16): a(f"v_mov_b32 v{O+r}, 0")
    a("s_lshl_b32 s20, s17, 18")
    a(f"s_add_u32 s20, s20, {KVF_OFF}")
    a("s_mov_b32 s23, 0")
    a.label("L_at_slow_loop")
    a(f"buffer_load_dwordx4 {vr(K,4)}, v3, s[24:27], s20 offen")
    a(f"buffer_load_dwordx4 {vr(K+4,4)}, v3, s[24:27], s20 offen offset:1024")
    a(f"buffer_load_dwordx4 {vr(V,4)}, v3, s[24:27], s20 offen offset:2048")
    a(f"buffer_load_dwordx4 {vr(V+4,4)}, v3, s[24:27], s20 offen offset:3072")
    a("s_waitcnt vmcnt(0)")
    a(f"v_mfma_f32_32x32x16_bf16 {vr(X,16)}, {vr(K,4)}, {vr(Q,4)}, 0")
    a(f"v_mfma_f32_32x32x16_bf16 {vr(X,16)}, {vr(K+4,4)}, {vr(Q+4,4)}, {vr(X,16)}")
    a("s_nop 15"); a("s_nop 3")
    a(f"v_max_f32 v4, v{X}, v{X+1}")
    for r in range(2, 16): a(f"v_max_f32 v4, v4, v{X+r}")
    a("v_mov_b32 v5, v4")
    a("s_nop 1")
    a("v_permlane32_swap_b32 v4, v5")
    a("s_nop 1")
    a("v_max_f32 v4, v4, v5")
    a(f"v_max_f32 v4, v4, v{M}")
    a(f"v_sub_f32 v5, v{M}, v4")
    a("v_exp_f32 v5, v5")
    a(f"v_mov_b32 v{M}, v4")
    for r in range(16): a(f"v_sub_f32 v{X+r}, v{X+r}, v4")
    for r in range(16): a(f"v_exp_f32 v{X+r}, v{X+r}")
    a("s_nop 0")
    for r in range(8): a(f"v_cvt_pk_bf16_f32 v{PX+r}, v{X+2*r}, v{X+2*r+1}")
    a(f"v_mul_f32 v{L}, v{L}, v5")
    for r in range(16): a(f"v_mul_f32 v{O+r}, v{O+r}, v5")
    for r in range(8):
        a(f"v_lshlrev_b32 v6, 16, v{PX+r}")
        a(f"v_and_b32 v7, 0xffff0000, v{PX+r}")
        a(f"v_add_f32 v{L}, v{L}, v6")
        a(f"v_add_f32 v{L}, v{L}, v7")
    a("s_nop 1")
    a(f"v_mfma_f32_32x32x16_bf16 {vr(O,16)}, {vr(V,4)}, {vr(PX,4)}, {vr(O,16)}")
    a(f"v_mfma_f32_32x32x16_bf16 {vr(O,16)}, {vr(V+4,4)}, {vr(PX+4,4)}, {vr(O,16)}")
    a("s_nop 15"); a("s_nop 3")
    a("s_add_u32 s20, s20, 4096")
    a("s_add_u32 s23, s23, 1")
    a("s_cmp_lt_u32 s23, 64")
    a("s_cbranch_scc1 L_at_slow_loop")
    a(f"v_mov_b32 v5, v{L}")
    a(f"v_mov_b32 v4, v{L}")
    a("s_nop 1")
    a("v_permlane32_swap_b32 v4, v5")
    a("s_nop 1")
    a(f"v_add_f32 v{L}, v4, v5")
    a("s_branch L_at_fin")
    a.label("L_at_end")
    a("s_endpgm")
    return a.text(), dict(vgpr=112, sgpr=48)

def gen_oproj(name):
    a = A()
    a.raw(f".globl {name}\n.p2align 8\n.type {name},@function\n{name}:")
    a("s_cmp_ge_u32 s2, 256")
    a("s_cbranch_scc1 L_op_end")
    a("s_load_dwordx4 s[4:7], s[0:1], 16")
    a("s_load_dwordx2 s[8:9], s[0:1], 40")
    wg_map_jm(a, 10, 11, 12)
    a("v_lshrrev_b32 v1, 6, v0")
    a("v_and_b32 v2, 63, v0")
    a("s_nop 0")
    a("v_readfirstlane_b32 s14, v1")
    a("s_and_b32 s15, s14, 3")
    a("s_lshr_b32 s16, s14, 2")
    a("s_waitcnt lgkmcnt(0)")
    make_srd(a, 24, 8, 9, None, WS_USED)
    a("s_lshl_b32 s17, s11, 7")
    a("s_sub_u32 s18, 0x200000, s17")
    a("s_add_u32 s28, s4, s17"); a("s_addc_u32 s29, s5, 0"); a("s_mov_b32 s30, s18"); a("s_mov_b32 s31, 0x20000")
    make_srd(a, 32, 6, 7, None, 0x400000)
    a("v_lshlrev_b32 v3, 4, v2")
    a("v_lshrrev_b32 v4, 3, v2")
    a("v_lshlrev_b32 v4, 11, v4")
    a("v_and_b32 v5, 7, v2")
    a("v_lshrrev_b32 v6, 4, v2")
    a("v_and_b32 v6, 1, v6")
    a("v_lshlrev_b32 v6, 2, v6")
    a("v_xor_b32 v5, v5, v6")
    a("v_lshlrev_b32 v5, 4, v5")
    a("v_add_u32 v4, v4, v5")
    OFR = 64
    a("s_lshl_b32 s17, s10, 2")
    a("s_add_u32 s17, s17, s15")
    a("s_lshl_b32 s17, s17, 6")
    a("s_lshl_b32 s18, s16, 5")
    a("s_add_u32 s17, s17, s18")
    a("s_lshl_b32 s17, s17, 10")
    a(f"s_add_u32 s17, s17, {OF_OFF}")
    a("s_lshl_b32 s19, s16, 9")
    a("s_lshl_b32 s20, s15, 5")
    a("s_add_u32 s19, s19, s20")
    a("s_lshl_b32 s20, s19, 11")
    a("s_lshl_b32 s21, s19, 7")
    for p in range(4):
        for i in range(4):
            a(f"s_add_u32 m0, s21, {(128*p+8*i)*128}")
            a(f"s_add_u32 s22, s20, {(128*p+8*i)*2048}")
            a(f"buffer_load_dwordx4 v4, s[28:31], s22 offen lds")
        for k in range(8):
            kk = 8*p + k
            a(f"s_add_u32 s22, s17, {kk*1024}")
            a(f"buffer_load_dwordx4 {vr(OFR+4*kk,4)}, v3, s[24:27], s22 offen")
    a("v_lshrrev_b32 v5, 5, v2")
    a("v_and_b32 v6, 15, v2")
    a("v_lshrrev_b32 v6, 2, v6")
    a("v_lshlrev_b32 v7, 2, v5")
    a("v_add_u32 v7, v7, v6")
    a("v_lshlrev_b32 v7, 7, v7")
    a("v_lshrrev_b32 v8, 4, v2")
    a("v_and_b32 v8, 1, v8")
    a("v_lshlrev_b32 v8, 1, v8")
    a("v_and_b32 v9, 3, v2")
    a("v_lshrrev_b32 v10, 1, v9")
    a("v_add_u32 v8, v8, v10")
    a("v_lshrrev_b32 v10, 1, v6")
    a("v_lshlrev_b32 v10, 2, v10")
    a("v_xor_b32 v8, v8, v10")
    a("v_lshlrev_b32 v8, 4, v8")
    a("v_add_u32 v7, v7, v8")
    a("v_and_b32 v9, 1, v9")
    a("v_lshlrev_b32 v9, 3, v9")
    a("v_add_u32 v7, v7, v9")
    a("s_lshl_b32 s18, s16, 16")
    a("v_add_u32 v12, s18, v7")
    a("v_xor_b32 v13, 64, v12")
    ACC = 16
    for r in range(32): a(f"v_mov_b32 v{ACC+r}, 0")
    WF = [48, 56]
    lg = Lgkm(a)
    def wreads(setb, kk):
        R = []
        for ct in range(2):
            for jj in range(2):
                R.append(f"ds_read_b64_tr_b16 {vr(setb+4*ct+2*jj,2)}, v{12+ct} offset:{kk*2048+jj*1024}")
        return R
    for p in range(4):
        a(f"s_waitcnt vmcnt({12*(3-p)})")
        a("s_barrier")
        for ins in wreads(WF[0], 8*p): a(ins); lg.issue("w0")
        for k in range(8):
            kk = 8*p+k
            cur = WF[k & 1]; nxt = WF[(k+1) & 1]
            if k < 7:
                for ins in wreads(nxt, kk+1): a(ins); lg.issue(f"w{(k+1)&1}")
            lg.need([f"w{k&1}"])
            for ct in range(2):
                a(f"v_mfma_f32_32x32x16_bf16 {vr(ACC+16*ct,16)}, {vr(cur+4*ct,4)}, {vr(OFR+4*kk,4)}, {vr(ACC+16*ct,16)}")
    a("s_nop 15")
    a("s_barrier")
    a("s_lshl_b32 s18, s14, 12")
    a("v_add_u32 v5, s18, v3")
    a("s_xor_b32 s18, s14, 4")
    a("s_lshl_b32 s18, s18, 12")
    a("v_add_u32 v6, s18, v3")
    a("s_cmp_eq_u32 s16, 0")
    a("s_cbranch_scc1 L_op_kh0")
    for q in range(4): a(f"ds_write_b128 v5, {vr(ACC+4*q,4)} offset:{q*1024}")
    for r in range(16): a(f"v_mov_b32 v{48+r}, v{ACC+16+r}")
    a("s_branch L_op_x")
    a.label("L_op_kh0")
    for q in range(4): a(f"ds_write_b128 v5, {vr(ACC+16+4*q,4)} offset:{q*1024}")
    for r in range(16): a(f"v_mov_b32 v{48+r}, v{ACC+r}")
    a.label("L_op_x")
    a("s_waitcnt lgkmcnt(0)")
    a("s_barrier")
    for q in range(4): a(f"ds_read_b128 {vr(64+4*q,4)}, v6 offset:{q*1024}")
    a("s_waitcnt lgkmcnt(0)")
    for r in range(16): a(f"v_add_f32 v{48+r}, v{48+r}, v{64+r}")
    for r in range(8): a(f"v_cvt_pk_bf16_f32 v{64+r}, v{48+2*r}, v{48+2*r+1}")
    a("s_nop 1")
    for g in (0, 2):
        a(f"v_permlane32_swap_b32 v{64+2*g}, v{64+2*g+2}")
        a(f"v_permlane32_swap_b32 v{64+2*g+1}, v{64+2*g+3}")
    a("v_and_b32 v5, 31, v2")
    a("v_lshlrev_b32 v5, 11, v5")
    a("v_lshrrev_b32 v6, 5, v2")
    a("v_lshlrev_b32 v6, 4, v6")
    a("v_add_u32 v5, v5, v6")
    a("s_lshl_b32 s17, s10, 2")
    a("s_add_u32 s17, s17, s15")
    a("s_lshl_b32 s17, s17, 16")
    a("s_lshl_b32 s18, s11, 7")
    a("s_add_u32 s17, s17, s18")
    a("s_lshl_b32 s18, s16, 6")
    a("s_add_u32 s17, s17, s18")
    a("s_nop 0")
    a(f"buffer_store_dwordx4 {vr(64,4)}, v5, s[32:35], s17 offen")
    a(f"buffer_store_dwordx4 {vr(68,4)}, v5, s[32:35], s17 offen offset:32")
    a.label("L_op_end")
    a("s_endpgm")
    return a.text(), dict(vgpr=192, sgpr=48)

def kd(name, vgpr, sgpr):
    acc = (vgpr + 3)//4*4
    return f""".p2align 6
.amdhsa_kernel {name}
  .amdhsa_next_free_vgpr {vgpr}
  .amdhsa_next_free_sgpr {sgpr}
  .amdhsa_accum_offset {acc}
  .amdhsa_group_segment_fixed_size 0
  .amdhsa_kernarg_size 48
  .amdhsa_user_sgpr_count 2
  .amdhsa_user_sgpr_kernarg_segment_ptr 1
  .amdhsa_system_sgpr_workgroup_id_x 1
.end_amdhsa_kernel
"""

HEADER = """; Kernarg layout for this problem (48 bytes, ptrs only, base s[0:1]):
"""
def main(out):
    ks = [("mha_qkv_kernel", gen_qkv, G1_SLOT*G1_NSLOT), ("mha_attn_kernel", gen_attn, AT_SLOT*AT_R), ("mha_oproj_kernel", gen_oproj, 131072)]
    txt = HEADER
    for n, g, lds in ks: txt += f"; @launch kernel={n} grid=(256,1,1) block=(512,1,1) lds={lds}\n"
    txt += '.amdgcn_target "amdgcn-amd-amdhsa--gfx950"\n.text\n'
    kds = ""
    for n, g, lds in ks:
        t, info = g(n)
        txt += t
        kds += kd(n, info['vgpr'], info['sgpr'])
    txt += '.section .rodata,"a"\n' + kds
    open(out, "w").write(txt)
if __name__ == "__main__":
    main(sys.argv[1] if len(sys.argv) > 1 else "cdna_kernels/%s.s" % NAME)
```

```python
import sys, os, struct
NAME = "standalone__softmax_full_mha__prompt"
KNAME = NAME + "_kernel"
E = lambda k, d=0: int(os.environ.get(k, str(d)))
STAMP = E("STAMP")
STAMP_OFF = 32 << 20

class A:
    def __init__(self): self.l = []
    def __call__(self, s): self.l.append("    " + s)
    def label(self, s): self.l.append(s + ":")
    def raw(self, s): self.l.append(s)
    def text(self): return "\n".join(self.l) + "\n"
def vr(b, n=1): return f"v{b}" if n == 1 else f"v[{b}:{b+n-1}]"
def f32bits(x): return struct.unpack('<I', struct.pack('<f', x))[0]

class Lgkm:
    def __init__(self, a): self.a = a; self.q = []
    def issue(self, tag): self.q.append(tag)
    def need(self, tags):
        idx = -1
        for i, t in enumerate(self.q):
            if t in tags: idx = i
        if idx < 0: return
        n = len(self.q) - 1 - idx
        assert n <= 15
        self.a(f"s_waitcnt lgkmcnt({n})")
        self.q = self.q[idx+1:]
    def all(self):
        if self.q:
            self.a("s_waitcnt lgkmcnt(0)")
            self.q = []

KVF_OFF = 0
OF_OFF  = 8 << 20
FLG_OFF = 12 << 20
WS_USED = 13 << 20
QSCALE = 0.17677669529663687 * 1.4426950408889634
G1_NSLOT = 4; G1_SLOT = 40960
AT_SLOT = 32768
QX_OFF = 131072
AT_R = 4
WO_LDS = 0
CNT_OFF = 147456 + 64
SCR_OFF = 147456 + 1024
XCH_OFF = 131072
EP_OFF = 147456
POLL_MAX = 40000

def stamp(a, k):
    if STAMP:
        a(f"s_memtime s[{60+2*k}:{61+2*k}]"); a("s_waitcnt lgkmcnt(0)")
def stamp_rt(a, k):
    if STAMP:
        a(f"s_memrealtime s[{60+2*k}:{61+2*k}]"); a("s_waitcnt lgkmcnt(0)")
def stamp_store(a, n):
    if STAMP:
        a(f"s_lshl_b32 s58, s2, 3"); a(f"s_add_u32 s58, s58, s14"); a(f"s_lshl_b32 s58, s58, 7")
        a(f"s_add_u32 s58, s58, {STAMP_OFF}")
        a(f"s_add_u32 s56, s8, s58"); a(f"s_addc_u32 s57, s9, 0")
        a("v_mov_b32 v254, 0")
        for k in range(n):
            a(f"v_mov_b32 v255, s{60+2*k}")
            a(f"global_store_dword v254, v255, s[56:57] offset:{4*k}")
        a("s_waitcnt vmcnt(0)")

def srd(a, d, plo, off, nrec):
    if off is None:
        a(f"s_mov_b32 s{d}, s{plo}"); a(f"s_mov_b32 s{d+1}, s{plo+1}")
    else:
        a(f"s_add_u32 s{d}, s{plo}, {off}"); a(f"s_addc_u32 s{d+1}, s{plo+1}, 0")
    a(f"s_mov_b32 s{d+2}, {nrec}"); a(f"s_mov_b32 s{d+3}, 0x20000")

def poll(a, name, voff, nlanes_mask_all=True):
    a(f"s_mov_b32 s47, 0")
    a.label(f"L_poll_{name}")
    a(f"buffer_load_dword v5, v{voff}, s[24:27], 0 offen sc1")
    a("s_waitcnt vmcnt(0)")
    a("v_cmp_ne_u32 vcc, s46, v5")
    a("s_add_u32 s47, s47, 1")
    a("s_cmp_eq_u64 vcc, 0")
    a(f"s_cbranch_scc1 L_poll_{name}_done")
    a(f"s_cmp_ge_u32 s47, {POLL_MAX}")
    a(f"s_cbranch_scc1 L_poll_{name}_done")
    a("s_sleep 1")
    a(f"s_branch L_poll_{name}")
    a.label(f"L_poll_{name}_done")

def gen():
    a = A()
    a.raw(f".globl {KNAME}\n.p2align 8\n.type {KNAME},@function\n{KNAME}:")
    a("s_cmp_ge_u32 s2, 256")
    a("s_cbranch_scc1 L_end")
    a("s_load_dwordx4 s[4:7], s[0:1], 0")
    a("s_load_dwordx2 s[8:9], s[0:1], 40")
    a("s_load_dwordx4 s[40:43], s[0:1], 16")
    a("s_load_dwordx2 s[44:45], s[0:1], 32")
    a("s_and_b32 s12, s2, 7")
    a("s_lshr_b32 s11, s2, 3")
    a("s_lshr_b32 s10, s12, 1")
    a("s_lshl_b32 s10, s10, 2")
    a("s_and_b32 s13, s11, 3")
    a("s_add_u32 s10, s10, s13")
    a("s_lshr_b32 s11, s11, 2")
    a("s_lshl_b32 s13, s13, 1")
    a("s_add_u32 s13, s13, s11")
    a("s_lshl_b32 s13, s13, 1")
    a("s_and_b32 s13, s13, %d" % E("ROTMASK", 0))
    a("s_and_b32 s12, s12, 1")
    a("s_lshl_b32 s12, s12, 3")
    a("s_add_u32 s11, s11, s12")
    a("v_lshrrev_b32 v1, 6, v0")
    a("v_and_b32 v2, 63, v0")
    a("v_lshlrev_b32 v3, 4, v2")
    a("v_readfirstlane_b32 s14, v1")
    a("s_waitcnt lgkmcnt(0)")
    stamp_rt(a, 0); stamp(a, 1)
    srd(a, 24, 8, None, WS_USED)
    a("s_cmp_lt_u32 s14, 4")
    a("s_cbranch_scc1 L_g1_compute")
    a("s_sub_u32 s15, s14, 4")
    a("s_lshl_b32 s16, s11, 18")
    a("s_sub_u32 s17, 0x400000, s16")
    a("s_add_u32 s28, s4, s16"); a("s_addc_u32 s29, s5, 0"); a("s_mov_b32 s30, s17"); a("s_mov_b32 s31, 0x20000")
    a("s_lshl_b32 s16, s10, 7")
    a("s_sub_u32 s17, 0x600000, s16")
    a("s_add_u32 s32, s6, s16"); a("s_addc_u32 s33, s7, 0"); a("s_mov_b32 s34, s17"); a("s_mov_b32 s35, 0x20000")
    a("v_lshrrev_b32 v4, 3, v2")
    a("v_lshlrev_b32 v5, 11, v4")
    a("v_and_b32 v6, 7, v2")
    a("v_lshrrev_b32 v7, 4, v2")
    a("v_xor_b32 v8, v6, v7")
    a("v_lshlrev_b32 v8, 4, v8")
    a("v_add_u32 v5, v5, v8")
    a("s_lshl_b32 s16, s15, 16")
    a("v_add_u32 v10, s16, v5")
    a("v_xor_b32 v11, 64, v10")
    a("v_mul_u32_u24 v5, 6144, v4")
    a("v_and_b32 v7, 1, v7")
    a("v_lshlrev_b32 v7, 2, v7")
    a("v_xor_b32 v8, v6, v7")
    a("v_lshlrev_b32 v8, 4, v8")
    a("v_add_u32 v5, v5, v8")
    a("s_mul_i32 s16, s15, 98304")
    a("v_add_u32 v12, s16, v5")
    a("s_lshl_b32 s18, s15, 12")
    a("s_lshl_b32 s19, s15, 11")
    a("s_add_u32 s19, s19, 16384")
    a("s_mov_b32 s20, s13")
    a("s_mov_b32 s36, 0")
    def issue_stage():
        a("s_lshl_b32 s21, s20, 7")
        a("s_mul_i32 s22, s20, 393216")
        a("s_add_u32 s37, s36, s18")
        a("s_add_u32 s39, s36, s19")
        for i in range(4):
            a(f"s_add_u32 m0, s37, {i*1024}")
            a(f"s_add_u32 s38, s21, {i*16384}")
            a(f"buffer_load_dwordx4 v{10+(i&1)}, s[28:31], s38 offen lds")
        for t in range(3):
            for kb in range(2):
                a(f"s_add_u32 m0, s39, {t*8192+kb*1024}")
                a(f"s_add_u32 s38, s22, {t*2048+kb*49152}")
                a(f"buffer_load_dwordx4 v12, s[32:35], s38 offen lds")
        a("s_add_u32 s20, s20, 1")
        a("s_and_b32 s20, s20, 15")
        a(f"s_add_u32 s36, s36, {G1_SLOT}")
        a(f"s_cmp_eq_u32 s36, {G1_SLOT*G1_NSLOT}")
        a("s_cselect_b32 s36, 0, s36")
    issue_stage(); issue_stage()
    a("s_waitcnt vmcnt(10)")
    a("s_barrier")
    issue_stage(); issue_stage()
    a("s_mov_b32 s23, 0")
    a.label("L_g1_ldloop")
    a(f"s_waitcnt vmcnt({10*(G1_NSLOT-2)})")
    a("s_barrier")
    issue_stage()
    a("s_add_u32 s23, s23, 1")
    a(f"s_cmp_lt_u32 s23, {16-G1_NSLOT}")
    a("s_cbranch_scc1 L_g1_ldloop")
    for k in range(G1_NSLOT):
        a(f"s_waitcnt vmcnt({10*max(0, G1_NSLOT-2-k)})")
        a("s_barrier")
    a("s_branch L_g1_done")
    a.label("L_g1_compute")
    ACC = 128; SETS = [64, 84]; XA = 104; WA = 108
    a("s_cmp_eq_u32 s14, 0")
    a("s_cbranch_scc0 L_nocas")
    a("s_memrealtime s[16:17]")
    a("s_waitcnt lgkmcnt(0)")
    a("s_or_b32 s16, s16, 1")
    a("v_mov_b32 v240, s16")
    a("v_mov_b32 v241, 0")
    a("v_mov_b32 v243, 0")
    a("s_mov_b64 exec, 1")
    a("global_atomic_cmpswap v242, v243, v[240:241], s[44:45] sc0 sc1")
    a("s_mov_b64 exec, -1")
    a.label("L_nocas")
    a("s_lshl_b32 s16, s2, 13")
    a("s_lshl_b32 s17, s14, 11")
    a("s_add_u32 s16, s16, s17")
    a("v_add_u32 v4, s16, v3")
    a("global_load_dwordx4 v[224:227], v4, s[40:41]")
    a("global_load_dwordx4 v[228:231], v4, s[40:41] offset:1024")
    if E("PREF", 1):
        a("s_lshl_b32 s16, s2, 14")
        a("s_lshl_b32 s17, s14, 12")
        a("s_add_u32 s16, s16, s17")
        a("v_add_u32 v4, s16, v3")
        for q in range(4): a(f"global_load_dwordx4 v[{16+4*q}:{19+4*q}], v4, s[4:5] offset:{q*1024}")
        a("s_mul_i32 s16, s2, 24576")
        a("s_mul_i32 s17, s14, 6144")
        a("s_add_u32 s16, s16, s17")
        a("v_add_u32 v4, s16, v3")
        for q in range(4): a(f"global_load_dwordx4 v[{32+4*q}:{35+4*q}], v4, s[6:7] offset:{q*1024}")
        a("v_add_u32 v4, 4096, v4")
        for q in range(2): a(f"global_load_dwordx4 v[{48+4*q}:{51+4*q}], v4, s[6:7] offset:{q*1024}")
    a("s_getpc_b64 s[16:17]")
    a.label("L_pc")
    a("s_sub_u32 s16, s16, L_pc-" + KNAME)
    a("s_subb_u32 s17, s17, 0")
    a("v_lshlrev_b32 v4, 7, v2")
    a("s_lshl_b32 s18, s14, 13")
    a("v_add_u32 v4, s18, v4")
    a("v_cmp_gt_u32 vcc, L_end-" + KNAME + ", v4")
    a("s_and_saveexec_b64 s[18:19], vcc")
    a("s_cbranch_execz L_nocode")
    a("global_load_dword v232, v4, s[16:17]")
    a.label("L_nocode")
    a("s_mov_b64 exec, s[18:19]")
    a("s_lshr_b32 s15, s14, 1")
    a("s_and_b32 s16, s14, 1")
    a("v_and_b32 v4, 31, v2")
    a("s_lshl_b32 s17, s15, 6")
    a("v_add_u32 v4, s17, v4")
    a("v_lshlrev_b32 v4, 7, v4")
    a("v_lshrrev_b32 v5, 1, v2")
    a("v_and_b32 v5, 7, v5")
    a("v_lshrrev_b32 v6, 5, v2")
    a("v_xor_b32 v5, v5, v6")
    for ks in range(4):
        a(f"v_xor_b32 v7, {2*ks}, v5")
        a(f"v_lshlrev_b32 v7, 4, v7")
        a(f"v_add_u32 v{XA+ks}, v4, v7")
    a("v_and_b32 v7, 15, v2")
    a("v_lshrrev_b32 v7, 2, v7")
    a("v_lshlrev_b32 v8, 3, v6")
    a("v_add_u32 v8, v8, v7")
    a("v_lshlrev_b32 v8, 7, v8")
    a("v_lshrrev_b32 v9, 4, v2")
    a("v_and_b32 v9, 1, v9")
    a("v_lshlrev_b32 v9, 1, v9")
    a("v_and_b32 v10, 3, v2")
    a("v_lshrrev_b32 v11, 1, v10")
    a("v_add_u32 v9, v9, v11")
    a("s_lshl_b32 s17, s16, 2")
    a("v_add_u32 v9, s17, v9")
    a("v_lshrrev_b32 v11, 1, v7")
    a("v_lshlrev_b32 v11, 2, v11")
    a("v_xor_b32 v9, v9, v11")
    a("v_lshlrev_b32 v9, 4, v9")
    a("v_add_u32 v8, v8, v9")
    a("v_and_b32 v10, 1, v10")
    a("v_lshlrev_b32 v10, 3, v10")
    a("v_add_u32 v8, v8, v10")
    a(f"v_add_u32 v{WA}, 16384, v8")
    for r in range(96): a(f"v_mov_b32 v{ACC+r}, 0")
    a("s_mov_b32 s18, 0")
    a(f"s_mov_b32 s21, {-(G1_NSLOT-1)*G1_SLOT & 0xffffffff}")
    a(f"s_mov_b32 s22, {G1_SLOT}")
    a("s_barrier")
    stamp(a, 2)
    lg = Lgkm(a)
    def reads(setb, ks, tagp):
        x0, x1, w0, w1, w2 = setb, setb+4, setb+8, setb+12, setb+16
        return [(tagp+"x0", f"ds_read_b128 {vr(x0,4)}, v{XA+ks}"),
                (tagp+"w0", f"ds_read_b64_tr_b16 {vr(w0,2)}, v{WA} offset:{ks*2048}"),
                (tagp+"w0", f"ds_read_b64_tr_b16 {vr(w0+2,2)}, v{WA} offset:{ks*2048+512}"),
                (tagp+"x1", f"ds_read_b128 {vr(x1,4)}, v{XA+ks} offset:4096"),
                (tagp+"w1", f"ds_read_b64_tr_b16 {vr(w1,2)}, v{WA} offset:{8192+ks*2048}"),
                (tagp+"w1", f"ds_read_b64_tr_b16 {vr(w1+2,2)}, v{WA} offset:{8192+ks*2048+512}"),
                (tagp+"w2", f"ds_read_b64_tr_b16 {vr(w2,2)}, v{WA} offset:{16384+ks*2048}"),
                (tagp+"w2", f"ds_read_b64_tr_b16 {vr(w2+2,2)}, v{WA} offset:{16384+ks*2048+512}")]
    def mfma(setb, i, t):
        x = setb + 4*i; w = setb + 8 + 4*t; acc = ACC + 16*(i*3+t)
        if t < 2: return f"v_mfma_f32_32x32x16_bf16 {vr(acc,16)}, {vr(w,4)}, {vr(x,4)}, {vr(acc,16)}"
        return f"v_mfma_f32_32x32x16_bf16 {vr(acc,16)}, {vr(x,4)}, {vr(w,4)}, {vr(acc,16)}"
    for tag, ins in reads(SETS[0], 0, "A"):
        a(ins); lg.issue(tag)
    a.raw(".p2align 6")
    a.label("L_g1_loop")
    order = [(0,1),(0,2),(1,1),(1,2),(0,0),(1,0)]
    needs = [["x0","w1"],["w2"],["x1"],[],["w0"],[]]
    def reads2(setb, ks, tagp):
        R = reads(setb, ks, tagp)
        return [R[0], R[4], R[5], R[6], R[7], R[3], R[1], R[2]]
    a.l = a.l[:-10]; lg.q = []
    for tag, ins in reads2(SETS[0], 0, "A"):
        a(ins); lg.issue(tag)
    a.raw(".p2align 6")
    a.label("L_g1_loop")
    for ks in range(4):
        cur = SETS[ks & 1]; nxt = SETS[(ks+1) & 1]
        cp = "AB"[ks & 1]; np_ = "AB"[(ks+1) & 1]
        if ks == 3:
            lg.all()
            a("s_add_u32 s18, s18, 1")
            a("s_and_b32 s19, s18, %d" % (G1_NSLOT-1))
            a("s_cmp_eq_u32 s19, 0")
            a("s_cselect_b32 s20, s21, s22")
            for k in range(4): a(f"v_add_u32 v{XA+k}, s20, v{XA+k}")
            a(f"v_add_u32 v{WA}, s20, v{WA}")
            a("s_barrier")
        R = reads2(nxt, (ks+1) & 3, np_)
        slots = [[], R[0:2], R[2:4], R[4:6], R[6:8], []]
        for k in range(6):
            for tag, ins in slots[k]:
                a(ins); lg.issue(tag)
            lg.need([cp+t for t in needs[k]])
            a(mfma(cur, *order[k]))
    a("s_cmp_lt_u32 s18, 16")
    a("s_cbranch_scc1 L_g1_loop")
    a("s_waitcnt lgkmcnt(0) vmcnt(0)")
    stamp(a, 3)
    a("s_lshl_b32 s17, s10, 1")
    a("s_add_u32 s17, s17, s16")
    a("s_lshl_b32 s19, s11, 2")
    a("s_lshl_b32 s20, s15, 1")
    a("s_add_u32 s19, s19, s20")
    a("s_lshl_b32 s20, s17, 6")
    a("s_add_u32 s20, s20, s19")
    a("s_lshl_b32 s22, s20, 12")
    a("s_lshl_b32 s20, s15, 14")
    a("s_lshl_b32 s21, s16, 12")
    a("s_add_u32 s20, s20, s21")
    a("v_add_u32 v4, s20, v3")
    a("s_lshl_b32 s20, s16, 2")
    a("s_lshl_b32 s21, s15, 1")
    a("s_add_u32 s20, s20, s21")
    a("s_lshl_b32 s20, s20, 11")
    a(f"s_add_u32 s20, s20, {QX_OFF}")
    a("v_add_u32 v5, s20, v3")
    a(f"s_mov_b32 s23, {f32bits(QSCALE)}")
    a("s_nop 7")
    T = 64
    n = 0
    for i in range(2):
        for t in (1, 2):
            acc = ACC + 16*(i*3+t); base = T + 8*(n % 4); n += 1
            for r in range(8): a(f"v_cvt_pk_bf16_f32 v{base+r}, v{acc+2*r}, v{acc+2*r+1}")
            o = i*4096 + (t-1)*2048
            a(f"s_add_u32 s28, s22, {o}")
            a(f"buffer_store_dwordx4 {vr(base,4)}, v3, s[24:27], s28 offen sc1")
            a(f"buffer_store_dwordx4 {vr(base+4,4)}, v3, s[24:27], s28 offen offset:1024 sc1")
            a(f"ds_write_b128 v4, {vr(base,4)} offset:{i*8192+(t-1)*2048}")
            a(f"ds_write_b128 v4, {vr(base+4,4)} offset:{i*8192+(t-1)*2048+1024}")
    for i in range(2):
        acc = ACC + 16*(i*3); base = 96 + 8*i
        for r in range(16): a(f"v_mul_f32 v{acc+r}, s23, v{acc+r}")
        for r in range(8): a(f"v_cvt_pk_bf16_f32 v{base+r}, v{acc+2*r}, v{acc+2*r+1}")
        a(f"ds_write_b128 v5, {vr(base,4)} offset:{i*2048}")
        a(f"ds_write_b128 v5, {vr(base+4,4)} offset:{i*2048+1024}")
    a("s_cmp_eq_u32 s14, 0")
    a("s_cbranch_scc0 L_noep")
    a("v_cmp_eq_u32 vcc, 0, v242")
    a("s_nop 1")
    a("v_cndmask_b32 v242, v242, v240, vcc")
    a(f"v_mov_b32 v6, {EP_OFF}")
    a("s_mov_b64 exec, 1")
    a("ds_write_b32 v6, v242")
    a("v_mov_b32 v7, 0")
    a(f"ds_write_b64 v6, v[7:8] offset:64" if False else f"ds_write_b32 v6, v7 offset:64")
    a(f"ds_write_b32 v6, v7 offset:68")
    a("s_mov_b64 exec, -1")
    a.label("L_noep")
    a("s_waitcnt lgkmcnt(0)")
    a.label("L_g1_done")
    a("s_barrier")
    stamp(a, 4)
    Q, K, V = 8, 16, 24
    S = [32, 48]; P = [64, 72]; O = 80; L = 96; ONES = 100; IDX = 104; VC = 105; VN = 106; M = 107; VB = 108; VD = 109
    a("s_lshr_b32 s15, s14, 2")
    a("s_and_b32 s16, s14, 3")
    a("s_lshl_b32 s17, s10, 1")
    a("s_add_u32 s17, s17, s15")
    a("s_lshl_b32 s18, s11, 2")
    a("s_add_u32 s18, s18, s16")
    a("s_lshl_b32 s20, s14, 11")
    a(f"s_add_u32 s20, s20, {QX_OFF}")
    a("v_add_u32 v4, s20, v3")
    a(f"ds_read_b128 {vr(Q,4)}, v4")
    a(f"ds_read_b128 {vr(Q+4,4)}, v4 offset:1024")
    a(f"v_mov_b32 v6, {EP_OFF}")
    a("ds_read_b32 v6, v6")
    a("s_lshl_b32 s22, s15, 12")
    a(f"v_add_u32 v{VB}, s22, v3")
    a(f"v_mov_b32 v{VC}, v{VB}")
    a(f"v_add_u32 v{VN}, {AT_SLOT}, v{VB}")
    a(f"ds_read_b128 {vr(K,4)}, v{VC}")
    a(f"ds_read_b128 {vr(K+4,4)}, v{VC} offset:1024")
    for r in range(16): a(f"v_mov_b32 v{O+r}, 0")
    for r in range(4): a(f"v_mov_b32 v{L+r}, 0")
    for r in range(8): a(f"v_mov_b32 v{P[1]+r}, 0")
    a("v_and_b32 v4, 6, v2")
    a("v_mov_b32 v5, 0x3f803f80")
    a("v_cmp_eq_u32 vcc, 0, v4")
    a("s_nop 1")
    a(f"v_cndmask_b32 v{ONES}, 0, v5, vcc")
    a(f"v_cndmask_b32 v{ONES+1}, 0, v5, vcc")
    a("v_cmp_eq_u32 vcc, 4, v4")
    a("s_nop 1")
    a(f"v_cndmask_b32 v{ONES+2}, 0, v5, vcc")
    a(f"v_cndmask_b32 v{ONES+3}, 0, v5, vcc")
    a("v_and_b32 v4, 1, v2")
    a("v_mov_b32 v5, 0x44444444")
    a("v_mov_b32 v7, 0xeeeeeeee")
    a("v_cmp_eq_u32 vcc, 0, v4")
    a("s_nop 1")
    a(f"v_cndmask_b32 v{IDX}, v7, v5, vcc")
    VONE = 110; VCA = 111; VCR = 112; VCV = 113
    a("s_lshl_b32 s20, s17, 18")
    a("s_lshl_b32 s21, s16, 10")
    a("s_add_u32 s20, s20, s21")
    a("s_lshl_b32 s21, s14, 10")
    a("s_mov_b32 s51, 4096"); a("s_mov_b32 s52, 8192"); a("s_mov_b32 s53, 12288")
    for q in range(4): a(f"s_mov_b32 s{28+q}, s{24+q}")
    a(f"v_mov_b32 v{VD}, v3")
    a(f"v_mov_b32 v{VONE}, 1")
    a("s_lshl_b32 s36, s15, 2")
    a(f"s_add_u32 s36, s36, {CNT_OFF}")
    a(f"v_mov_b32 v{VCR}, s36")
    a("s_lshl_b32 s37, s14, 8")
    a(f"s_add_u32 s37, s37, {SCR_OFF}")
    a("v_lshlrev_b32 v4, 2, v2")
    a(f"v_add_u32 v{VCA}, s37, v4")
    a("v_cmp_eq_u32 vcc, 0, v2")
    a("s_nop 1")
    a(f"v_cndmask_b32 v{VCA}, v{VCA}, v{VCR}, vcc")
    a("s_waitcnt lgkmcnt(0)")
    a("v_readfirstlane_b32 s46, v6")
    a(f"v_mfma_f32_32x32x16_bf16 {vr(S[0],16)}, {vr(K,4)}, {vr(Q,4)}, 0")
    a(f"v_mfma_f32_32x32x16_bf16 {vr(S[0],16)}, {vr(K+4,4)}, {vr(Q+4,4)}, {vr(S[0],16)}")
    lg = Lgkm(a)
    a(f"ds_read_b128 {vr(K,4)}, v{VC} offset:8192"); lg.issue("K")
    a(f"ds_read_b128 {vr(K+4,4)}, v{VC} offset:{8192+1024}"); lg.issue("K")
    a(f"ds_read_b128 {vr(V,4)}, v{VC} offset:2048"); lg.issue("V")
    a(f"ds_read_b128 {vr(V+4,4)}, v{VC} offset:3072"); lg.issue("V")
    a("s_nop 7")
    PRIO = E("PRIO", 1)
    def at_step(i, own):
        X = S[i & 1]; Y = S[(i+1) & 1]; PX = P[i & 1]; PY = P[(i+1) & 1]
        ex = lambda r: a(f"v_exp_f32 v{X+r}, v{X+r}")
        cv = lambda r: a(f"v_cvt_pk_bf16_f32 v{PX+r}, v{X+2*r}, v{X+2*r+1}")
        def kread():
            t = i + 2
            if own and t >= 4: return
            b = VC if t < 4 else VN
            off = (t % 4)*8192
            a(f"ds_read_b128 {vr(K,4)}, v{b} offset:{off}"); lg.issue("K")
            a(f"ds_read_b128 {vr(K+4,4)}, v{b} offset:{off+1024}"); lg.issue("K")
        def vread():
            off = i*8192 + 2048
            a(f"ds_read_b128 {vr(V,4)}, v{VC} offset:{off}"); lg.issue("V")
            a(f"ds_read_b128 {vr(V+4,4)}, v{VC} offset:{off+1024}"); lg.issue("V")
        def dma1(q):
            if own or E("DMAMODE", 1) == 0: return
            a(f"s_add_u32 m0, s38, {q*8192}")
            if q: a(f"s_add_u32 s39, s37, s{50+q}")
            else: a("s_mov_b32 s39, s37")
            a(f"buffer_load_dwordx4 v{VD}, s[28:31], s39 offen sc1 lds")
        qk0 = f"v_mfma_f32_32x32x16_bf16 {vr(Y,16)}, {vr(K,4)}, {vr(Q,4)}, 0"
        qk1 = f"v_mfma_f32_32x32x16_bf16 {vr(Y,16)}, {vr(K+4,4)}, {vr(Q+4,4)}, {vr(Y,16)}"
        pv0 = f"v_mfma_f32_32x32x16_bf16 {vr(O,16)}, {vr(V,4)}, {vr(PY,4)}, {vr(O,16)}"
        pv1 = f"v_mfma_f32_32x32x16_bf16 {vr(O,16)}, {vr(V+4,4)}, {vr(PY+4,4)}, {vr(O,16)}"
        smf = f"v_smfmac_f32_16x16x64_bf16 {vr(L,4)}, {vr(ONES,4)}, {vr(PY,8)}, v{IDX}"
        bk = []
        if i == 3 and not own:
            bk = ["s_add_u32 s23, s23, 1", "s_add_u32 s48, s48, 32768", "s_and_b32 s48, s48, 0x18000",
                  "s_add_u32 s49, s49, 32768", "s_and_b32 s49, s49, 0x18000", "s_add_u32 s38, s49, s21",
                  "s_add_u32 s55, s55, s56", "s_and_b32 s55, s55, s57", "s_add_u32 s37, s20, s55", "s_add_u32 s47, s47, 4"]
        def fill(n):
            for _ in range(n):
                if bk: a(bk.pop(0))
        if PRIO: a(f"s_setprio {3-i}")
        if own and i == 3:
            has_qk = False
        else:
            has_qk = True
        if own and i == E("FLAGSTEP", 2):
            a("s_cmp_lt_u32 s14, 4")
            a("s_cbranch_scc1 L_flag_out")
            a.label("L_flag_back")
        if has_qk:
            lg.need(["K"]); a(qk0)
        ex(0); ex(1); ex(2); ex(3)
        if has_qk: a(qk1)
        if i == 2 and not own:
            lg.need(["C"])
            a(f"v_readfirstlane_b32 s36, v{VCV}")
            ex(4)
            a("s_cmp_ge_u32 s36, s47")
            a("s_cbranch_scc0 L_cnt_spin")
            a.label("L_cnt_back")
            kread(); ex(5); cv(0); ex(6); cv(1)
        else:
            kread(); ex(4); ex(5); cv(0); ex(6); cv(1)
        lg.need(["V"])
        if i == 0 and not own:
            a("s_waitcnt vmcnt(4)")
            a(f"ds_add_u32 v{VCA}, v{VONE}"); lg.issue("A")
        a(pv0); ex(7); ex(8); cv(2)
        if i >= 2: dma1(2*(i-2))
        ex(9); cv(3)
        a(pv1)
        if i == 1 and not own:
            a(f"ds_read_b32 v{VCV}, v{VCR}"); lg.issue("C")
        if i >= 2: dma1(2*(i-2)+1)
        ex(10); fill(2); ex(11); fill(2); cv(4); fill(1); ex(12); fill(2); cv(5)
        a(smf); vread(); fill(1); ex(13); fill(2); ex(14); cv(6); ex(15)
        if i == 3:
            a(f"v_mov_b32 v{VC}, v{VN}")
            cv(7)
            if not own: a(f"v_add_u32 v{VN}, s48, v{VB}")
        else:
            a("s_nop 0")
            cv(7)
        assert not bk
    for i in range(4): at_step(i, True)
    stamp(a, 5)
    a("s_cmp_eq_u32 s14, 7")
    a("s_cbranch_scc0 L_at_nopoll")
    a("s_lshl_b32 s36, s10, 8")
    a(f"s_add_u32 s36, s36, {FLG_OFF}")
    a("v_lshlrev_b32 v4, 2, v2")
    a("v_add_u32 v4, s36, v4")
    poll(a, "f", 4)
    a.label("L_at_nopoll")
    a("s_barrier")
    stamp(a, 6)
    def kvstage(st):
        a(f"s_add_u32 s36, s11, {st}")
        a("s_and_b32 s36, s36, 15")
        a("s_lshl_b32 s36, s36, 14")
        a("s_add_u32 s36, s36, s20")
        for kk in range(4):
            a(f"s_add_u32 m0, s21, {st*AT_SLOT + kk*8192}")
            a(f"s_add_u32 s39, s36, {kk*4096}")
            a(f"buffer_load_dwordx4 v3, s[24:27], s39 offen sc1 lds")
    kvstage(1); kvstage(2)
    a("s_mov_b32 s23, 1")
    a(f"s_mov_b32 s48, {2*AT_SLOT}")
    a(f"v_add_u32 v{VN}, s48, v{VB}")
    a("s_mov_b32 s49, 0")
    a("s_mov_b32 s38, s21")
    a("s_add_u32 s55, s11, 4")
    a("s_and_b32 s55, s55, 15")
    a("s_lshl_b32 s55, s55, 14")
    a("s_mov_b32 s56, 16384"); a("s_mov_b32 s57, 0x3c000")
    a("s_add_u32 s37, s20, s55")
    a("s_mov_b32 s47, 4")
    a("s_mov_b32 s59, 13")
    a("s_waitcnt vmcnt(4)")
    a("s_barrier")
    kvstage(3)
    stamp(a, 7)
    a(f"ds_read_b128 {vr(K,4)}, v{VC}")
    a(f"ds_read_b128 {vr(K+4,4)}, v{VC} offset:1024")
    a("s_waitcnt lgkmcnt(0)")
    a(f"v_mfma_f32_32x32x16_bf16 {vr(S[0],16)}, {vr(K,4)}, {vr(Q,4)}, 0")
    a(f"v_mfma_f32_32x32x16_bf16 {vr(S[0],16)}, {vr(K+4,4)}, {vr(Q+4,4)}, {vr(S[0],16)}")
    a(f"ds_read_b128 {vr(K,4)}, v{VC} offset:8192")
    a(f"ds_read_b128 {vr(K+4,4)}, v{VC} offset:{8192+1024}")
    a("s_waitcnt lgkmcnt(0)")
    a("s_nop 7")
    stamp(a, 14)
    lg.q = ["K", "K", "V", "V"]
    a.raw(".p2align 6")
    a.label("L_at_loop")
    for i in range(4): at_step(i, False)
    assert lg.q == ["K", "K", "V", "V"], lg.q
    a("s_cmp_eq_u32 s23, s59")
    a("s_cbranch_scc0 L_at_loop")
    a("s_cmp_eq_u32 s23, 16")
    a("s_cbranch_scc1 L_at_tail")
    stamp(a, 15)
    a("s_mov_b32 s59, 16")
    a("s_mov_b32 s51, 131072"); a("s_mov_b32 s52, 262144"); a("s_mov_b32 s53, 393216")
    a("s_lshl_b32 s39, s11, 7")
    a("s_sub_u32 s36, 0x200000, s39")
    a("s_add_u32 s28, s40, s39"); a("s_addc_u32 s29, s41, 0"); a("s_mov_b32 s30, s36"); a("s_mov_b32 s31, 0x20000")
    a("s_lshl_b32 s20, s14, 14")
    a("s_mov_b32 s55, 0"); a("s_mov_b32 s56, 524288"); a("s_mov_b32 s57, -1")
    a("s_mov_b32 s37, s20")
    a("v_lshrrev_b32 v4, 3, v2")
    a("v_lshlrev_b32 v4, 11, v4")
    a("v_and_b32 v5, 7, v2")
    a("v_lshrrev_b32 v6, 4, v2")
    a("v_and_b32 v6, 1, v6")
    a("v_lshlrev_b32 v6, 2, v6")
    a("v_xor_b32 v5, v5, v6")
    a("v_lshlrev_b32 v5, 4, v5")
    a(f"v_add_u32 v{VD}, v4, v5")
    a("s_branch L_at_loop")
    a.label("L_cnt_spin")
    a("s_mov_b32 s39, 0")
    a.label("L_cnt_spin2")
    a(f"ds_read_b32 v{VCV}, v{VCR}")
    a("s_waitcnt lgkmcnt(0)")
    a(f"v_readfirstlane_b32 s36, v{VCV}")
    a("s_add_u32 s39, s39, 1")
    a(f"s_cmp_ge_u32 s39, {POLL_MAX*16}")
    a("s_cbranch_scc1 L_cnt_back")
    a("s_cmp_ge_u32 s36, s47")
    a("s_cbranch_scc0 L_cnt_spin2")
    a("s_branch L_cnt_back")
    a.label("L_at_tail")
    a("s_setprio 0")
    PL = P[1]
    a("s_waitcnt lgkmcnt(0)")
    a(f"v_mfma_f32_32x32x16_bf16 {vr(O,16)}, {vr(V,4)}, {vr(PL,4)}, {vr(O,16)}")
    a(f"v_mfma_f32_32x32x16_bf16 {vr(O,16)}, {vr(V+4,4)}, {vr(PL+4,4)}, {vr(O,16)}")
    a(f"v_smfmac_f32_16x16x64_bf16 {vr(L,4)}, {vr(ONES,4)}, {vr(PL,8)}, v{IDX}")
    stamp(a, 8)
    a("s_nop 8")
    a("s_nop 7")
    a(f"v_add_f32 v{L}, v{L}, v{L+1}")
    a(f"v_mov_b32 v4, {f32bits(2.0**-40)}")
    a(f"v_mov_b32 v5, {f32bits(2.0**40)}")
    a(f"v_cmp_nge_f32 vcc, v{L}, v4")
    a(f"v_cmp_nle_f32 s[44:45], v{L}, v5")
    a("s_or_b64 s[44:45], s[44:45], vcc")
    a(f"v_mov_b32 v5, {f32bits(2.0**100)}")
    for r in range(16):
        a(f"v_cmp_nlt_f32 vcc, abs(v{O+r}), v5")
        a("s_or_b64 s[44:45], s[44:45], vcc")
    a("s_cmp_lg_u64 s[44:45], 0")
    a("s_cbranch_scc1 L_at_slow")
    a.label("L_at_fin")
    a(f"v_rcp_f32 v4, v{L}")
    a("s_nop 0")
    for r in range(16): a(f"v_mul_f32 v{O+r}, v{O+r}, v4")
    for r in range(8): a(f"v_cvt_pk_bf16_f32 v{P[0]+r}, v{O+2*r}, v{O+2*r+1}")
    a("s_lshl_b32 s19, s18, 6")
    a("s_lshl_b32 s36, s17, 1")
    a("s_add_u32 s19, s19, s36")
    a("s_lshl_b32 s19, s19, 10")
    a(f"s_add_u32 s19, s19, {OF_OFF}")
    a(f"buffer_store_dwordx4 {vr(P[0],4)}, v3, s[24:27], s19 offen sc1")
    a(f"buffer_store_dwordx4 {vr(P[0]+4,4)}, v3, s[24:27], s19 offen offset:1024 sc1")
    srd(a, 32, 42, None, 0x400000)
    a("s_barrier")
    for q in range(4):
        a(f"s_add_u32 m0, s21, {3*AT_SLOT + q*8192}")
        a(f"s_add_u32 s39, s37, s{50+q}" if q else "s_mov_b32 s39, s37")
        a(f"buffer_load_dwordx4 v{VD}, s[28:31], s39 offen lds")
    a("s_waitcnt vmcnt(4)")
    a("s_lshl_b32 s36, s11, 9")
    a("s_lshl_b32 s37, s16, 7")
    a("s_add_u32 s36, s36, s37")
    a("s_lshl_b32 s37, s10, 3")
    a("s_add_u32 s36, s36, s37")
    a("s_lshl_b32 s37, s15, 2")
    a("s_add_u32 s36, s36, s37")
    a(f"s_add_u32 s36, s36, {FLG_OFF+8192}")
    a("v_mov_b32 v5, s36")
    a("v_mov_b32 v6, s46")
    a("s_mov_b64 exec, 1")
    a("buffer_store_dword v6, v5, s[24:27], 0 offen sc1")
    a("s_mov_b64 exec, -1")
    stamp(a, 9)
    a("v_lshrrev_b32 v5, 5, v2")
    a("v_and_b32 v6, 15, v2")
    a("v_lshrrev_b32 v6, 2, v6")
    a("v_lshlrev_b32 v7, 2, v5")
    a("v_add_u32 v7, v7, v6")
    a("v_lshlrev_b32 v7, 7, v7")
    a("v_lshrrev_b32 v8, 4, v2")
    a("v_and_b32 v8, 1, v8")
    a("v_lshlrev_b32 v8, 1, v8")
    a("v_and_b32 v9, 3, v2")
    a("v_lshrrev_b32 v10, 1, v9")
    a("v_add_u32 v8, v8, v10")
    a("v_lshrrev_b32 v10, 1, v6")
    a("v_lshlrev_b32 v10, 2, v10")
    a("v_xor_b32 v8, v8, v10")
    a("v_lshlrev_b32 v8, 4, v8")
    a("v_add_u32 v7, v7, v8")
    a("v_and_b32 v9, 1, v9")
    a("v_lshlrev_b32 v9, 3, v9")
    a("v_add_u32 v7, v7, v9")
    a("s_lshl_b32 s36, s15, 16")
    a(f"s_add_u32 s36, s36, {WO_LDS}")
    a("v_add_u32 v12, s36, v7")
    a("v_xor_b32 v13, 64, v12")
    ACC = 16
    for r in range(32): a(f"v_mov_b32 v{ACC+r}, 0")
    a("s_lshl_b32 s36, s10, 9")
    a("s_lshl_b32 s37, s16, 7")
    a("s_add_u32 s36, s36, s37")
    a("s_lshl_b32 s37, s15, 6")
    a("s_add_u32 s36, s36, s37")
    a(f"s_add_u32 s36, s36, {FLG_OFF+8192}")
    a("v_and_b32 v4, 15, v2")
    a("v_lshlrev_b32 v4, 2, v4")
    a("v_add_u32 v4, s36, v4")
    poll(a, "g", 4)
    stamp(a, 10)
    OFR = 64
    a("s_lshl_b32 s36, s10, 2")
    a("s_add_u32 s36, s36, s16")
    a("s_lshl_b32 s36, s36, 6")
    a("s_lshl_b32 s37, s15, 5")
    a("s_add_u32 s36, s36, s37")
    a("s_lshl_b32 s36, s36, 10")
    a(f"s_add_u32 s36, s36, {OF_OFF}")
    for k in range(32):
        if k % 4 == 0 and k: a("s_add_u32 s36, s36, 4096")
        a(f"buffer_load_dwordx4 {vr(OFR+4*k,4)}, v3, s[24:27], s36 offen offset:{(k%4)*1024} sc1")
    a("s_barrier")
    WF = [48, 56]
    lg = Lgkm(a)
    def wreads(setb, kk):
        return [f"ds_read_b64_tr_b16 {vr(setb+4*ct+2*jj,2)}, v{12+ct} offset:{kk*2048+jj*1024}" for ct in range(2) for jj in range(2)]
    for ins in wreads(WF[0], 0): a(ins); lg.issue("w0")
    for kk in range(32):
        cur = WF[kk & 1]; nxt = WF[(kk+1) & 1]
        if kk < 31:
            for ins in wreads(nxt, kk+1): a(ins); lg.issue(f"w{(kk+1)&1}")
        lg.need([f"w{kk&1}"])
        if kk % 2 == 0: a(f"s_waitcnt vmcnt({30-kk})")
        for ct in range(2):
            a(f"v_mfma_f32_32x32x16_bf16 {vr(ACC+16*ct,16)}, {vr(cur+4*ct,4)}, {vr(OFR+4*kk,4)}, {vr(ACC+16*ct,16)}")
    stamp(a, 11)
    a("s_lshl_b32 s36, s14, 12")
    a(f"s_add_u32 s36, s36, {XCH_OFF}")
    a("v_add_u32 v5, s36, v3")
    a("s_xor_b32 s36, s14, 4")
    a("s_lshl_b32 s36, s36, 12")
    a(f"s_add_u32 s36, s36, {XCH_OFF}")
    a("v_add_u32 v6, s36, v3")
    a("s_nop 9")
    a("s_cmp_eq_u32 s15, 0")
    a("s_cbranch_scc1 L_op_kh0")
    for q in range(4): a(f"ds_write_b128 v5, {vr(ACC+4*q,4)} offset:{q*1024}")
    for r in range(16): a(f"v_mov_b32 v{48+r}, v{ACC+16+r}")
    a("s_branch L_op_x")
    a.label("L_op_kh0")
    for q in range(4): a(f"ds_write_b128 v5, {vr(ACC+16+4*q,4)} offset:{q*1024}")
    for r in range(16): a(f"v_mov_b32 v{48+r}, v{ACC+r}")
    a.label("L_op_x")
    a("s_waitcnt lgkmcnt(0)")
    a("s_barrier")
    for q in range(4): a(f"ds_read_b128 {vr(64+4*q,4)}, v6 offset:{q*1024}")
    a("s_waitcnt lgkmcnt(0)")
    for r in range(16): a(f"v_add_f32 v{48+r}, v{48+r}, v{64+r}")
    for r in range(8): a(f"v_cvt_pk_bf16_f32 v{64+r}, v{48+2*r}, v{48+2*r+1}")
    a("v_and_b32 v5, 31, v2")
    a("v_lshlrev_b32 v5, 11, v5")
    a("v_lshrrev_b32 v6, 5, v2")
    a("v_lshlrev_b32 v6, 4, v6")
    a("v_add_u32 v5, v5, v6")
    for g in (0, 2):
        a(f"v_permlane32_swap_b32 v{64+2*g}, v{64+2*g+2}")
        a(f"v_permlane32_swap_b32 v{64+2*g+1}, v{64+2*g+3}")
    a("s_lshl_b32 s36, s10, 2")
    a("s_add_u32 s36, s36, s16")
    a("s_lshl_b32 s36, s36, 16")
    a("s_lshl_b32 s37, s11, 7")
    a("s_add_u32 s36, s36, s37")
    a("s_lshl_b32 s37, s15, 6")
    a("s_add_u32 s36, s36, s37")
    a(f"buffer_store_dwordx4 {vr(64,4)}, v5, s[32:35], s36 offen")
    a(f"buffer_store_dwordx4 {vr(68,4)}, v5, s[32:35], s36 offen offset:32")
    if STAMP:
        a("s_waitcnt vmcnt(0)")
        stamp(a, 12); stamp_rt(a, 13); stamp_store(a, 16)
    a("s_endpgm")
    a.label("L_flag_out")
    a("s_waitcnt vmcnt(0)")
    a("s_lshl_b32 s36, s10, 8")
    a("s_lshl_b32 s39, s11, 4")
    a("s_add_u32 s36, s36, s39")
    a("s_lshl_b32 s39, s14, 2")
    a("s_add_u32 s36, s36, s39")
    a(f"s_add_u32 s36, s36, {FLG_OFF}")
    a("v_mov_b32 v4, s36")
    a("v_mov_b32 v5, s46")
    a("s_mov_b64 exec, 1")
    a("buffer_store_dword v5, v4, s[24:27], 0 offen sc1")
    a("s_mov_b64 exec, -1")
    a("s_branch L_flag_back")
    a.label("L_at_slow")
    X = S[0]; PX = P[0]
    a(f"v_mov_b32 v{M}, 0xff800000")
    a(f"v_mov_b32 v{L}, 0")
    for r in range(16): a(f"v_mov_b32 v{O+r}, 0")
    a("s_lshl_b32 s36, s17, 18")
    a("s_mov_b32 s47, 0")
    a.label("L_at_slow_loop")
    a(f"buffer_load_dwordx4 {vr(K,4)}, v3, s[24:27], s36 offen sc1")
    a(f"buffer_load_dwordx4 {vr(K+4,4)}, v3, s[24:27], s36 offen offset:1024 sc1")
    a(f"buffer_load_dwordx4 {vr(V,4)}, v3, s[24:27], s36 offen offset:2048 sc1")
    a(f"buffer_load_dwordx4 {vr(V+4,4)}, v3, s[24:27], s36 offen offset:3072 sc1")
    a("s_waitcnt vmcnt(0)")
    a(f"v_mfma_f32_32x32x16_bf16 {vr(X,16)}, {vr(K,4)}, {vr(Q,4)}, 0")
    a(f"v_mfma_f32_32x32x16_bf16 {vr(X,16)}, {vr(K+4,4)}, {vr(Q+4,4)}, {vr(X,16)}")
    a("s_nop 15"); a("s_nop 3")
    a(f"v_max_f32 v4, v{X}, v{X+1}")
    for r in range(2, 16): a(f"v_max_f32 v4, v4, v{X+r}")
    a("v_mov_b32 v5, v4")
    a("s_nop 1")
    a("v_permlane32_swap_b32 v4, v5")
    a("s_nop 1")
    a("v_max_f32 v4, v4, v5")
    a(f"v_max_f32 v4, v4, v{M}")
    a(f"v_sub_f32 v5, v{M}, v4")
    a("v_exp_f32 v5, v5")
    a(f"v_mov_b32 v{M}, v4")
    for r in range(16): a(f"v_sub_f32 v{X+r}, v{X+r}, v4")
    for r in range(16): a(f"v_exp_f32 v{X+r}, v{X+r}")
    a("s_nop 0")
    for r in range(8): a(f"v_cvt_pk_bf16_f32 v{PX+r}, v{X+2*r}, v{X+2*r+1}")
    a(f"v_mul_f32 v{L}, v{L}, v5")
    for r in range(16): a(f"v_mul_f32 v{O+r}, v{O+r}, v5")
    for r in range(8):
        a(f"v_lshlrev_b32 v6, 16, v{PX+r}")
        a(f"v_and_b32 v7, 0xffff0000, v{PX+r}")
        a(f"v_add_f32 v{L}, v{L}, v6")
        a(f"v_add_f32 v{L}, v{L}, v7")
    a("s_nop 1")
    a(f"v_mfma_f32_32x32x16_bf16 {vr(O,16)}, {vr(V,4)}, {vr(PX,4)}, {vr(O,16)}")
    a(f"v_mfma_f32_32x32x16_bf16 {vr(O,16)}, {vr(V+4,4)}, {vr(PX+4,4)}, {vr(O,16)}")
    a("s_nop 15"); a("s_nop 3")
    a("s_add_u32 s36, s36, 4096")
    a("s_add_u32 s47, s47, 1")
    a("s_cmp_lt_u32 s47, 64")
    a("s_cbranch_scc1 L_at_slow_loop")
    a(f"v_mov_b32 v5, v{L}")
    a(f"v_mov_b32 v4, v{L}")
    a("s_nop 1")
    a("v_permlane32_swap_b32 v4, v5")
    a("s_nop 1")
    a(f"v_add_f32 v{L}, v4, v5")
    a("s_branch L_at_fin")
    a.label("L_end")
    a("s_endpgm")
    return a.text()

HEADER = """; Fused multi-head attention: QKV projection -> softmax attention -> output projection, one persistent launch.
; @launch grid=(256,1,1) block=(512,1,1) lds=163840
"""
def main(out):
    vg = 256 if STAMP else 244
    sg = 96 if STAMP else 64
    txt = HEADER + '.amdgcn_target "amdgcn-amd-amdhsa--gfx950"\n.text\n' + gen()
    txt += f""".section .rodata,"a"
.p2align 6
.amdhsa_kernel {KNAME}
  .amdhsa_next_free_vgpr {vg}
  .amdhsa_next_free_sgpr {sg}
  .amdhsa_accum_offset {(vg+3)//4*4}
  .amdhsa_group_segment_fixed_size 0
  .amdhsa_kernarg_size 48
  .amdhsa_user_sgpr_count 2
  .amdhsa_user_sgpr_kernarg_segment_ptr 1
  .amdhsa_system_sgpr_workgroup_id_x 1
.end_amdhsa_kernel
"""
    open(out, "w").write(txt)
if __name__ == "__main__":
    main(sys.argv[1] if len(sys.argv) > 1 else "cdna_kernels/%s.s" % NAME)
```

```python
import sys, os, struct
NAME = "standalone__softmax_full_mha__prompt"
KNAME = NAME + "_kernel"
E = lambda k, d=0: int(os.environ.get(k, str(d)))
STAMP = E("STAMP")
STAMP_OFF = 32 << 20

class A:
    def __init__(self): self.l = []
    def __call__(self, s): self.l.append("    " + s)
    def label(self, s): self.l.append(s + ":")
    def raw(self, s): self.l.append(s)
    def text(self): return "\n".join(self.l) + "\n"
def vr(b, n=1): return f"v{b}" if n == 1 else f"v[{b}:{b+n-1}]"
def f32bits(x): return struct.unpack('<I', struct.pack('<f', x))[0]

class Lgkm:
    def __init__(self, a): self.a = a; self.q = []
    def issue(self, tag): self.q.append(tag)
    def need(self, tags):
        idx = -1
        for i, t in enumerate(self.q):
            if t in tags: idx = i
        if idx < 0: return
        n = len(self.q) - 1 - idx
        assert n <= 15
        self.a(f"s_waitcnt lgkmcnt({n})")
        self.q = self.q[idx+1:]
    def all(self):
        if self.q:
            self.a("s_waitcnt lgkmcnt(0)")
            self.q = []

KVF_OFF = 0
OF_OFF  = 8 << 20
FLG_OFF = 12 << 20
WS_USED = 13 << 20
QSCALE = 0.17677669529663687 * 1.4426950408889634
G1_NSLOT = 4; G1_SLOT = 40960
AT_SLOT = 32768
QX_OFF = 131072
AT_R = 4
WO_LDS = 0
CNT_OFF = 147456 + 64
SCR_OFF = 147456 + 1024
XCH_OFF = 131072
EP_OFF = 147456
POLL_MAX = 40000

def stamp(a, k):
    if STAMP:
        a(f"s_memtime s[{60+2*k}:{61+2*k}]"); a("s_waitcnt lgkmcnt(0)")
def stamp_rt(a, k):
    if STAMP:
        a(f"s_memrealtime s[{60+2*k}:{61+2*k}]"); a("s_waitcnt lgkmcnt(0)")
def stamp_store(a, n):
    if STAMP:
        a(f"s_lshl_b32 s58, s2, 3"); a(f"s_add_u32 s58, s58, s14"); a(f"s_lshl_b32 s58, s58, 7")
        a(f"s_add_u32 s58, s58, {STAMP_OFF}")
        a(f"s_add_u32 s56, s8, s58"); a(f"s_addc_u32 s57, s9, 0")
        a("v_mov_b32 v254, 0")
        for k in range(n):
            a(f"v_mov_b32 v255, s{60+2*k}")
            a(f"global_store_dword v254, v255, s[56:57] offset:{4*k}")
        a("s_waitcnt vmcnt(0)")

DBGT = E("DBGT")
def dbgt(a, slot, neg=False):
    if DBGT:
        a("s_memrealtime s[92:93]")
        a("s_waitcnt lgkmcnt(0)")
        if neg: a("s_not_b32 s92, s92")
        a("v_mov_b32 v250, s92")
        a(f"v_mov_b32 v251, {slot*4}")
        a("s_mov_b64 s[94:95], exec")
        a("s_mov_b64 exec, 1")
        a("global_atomic_umax v251, v250, s[90:91] sc1")
        a("s_mov_b64 exec, s[94:95]")

def srd(a, d, plo, off, nrec):
    if off is None:
        a(f"s_mov_b32 s{d}, s{plo}"); a(f"s_mov_b32 s{d+1}, s{plo+1}")
    else:
        a(f"s_add_u32 s{d}, s{plo}, {off}"); a(f"s_addc_u32 s{d+1}, s{plo+1}, 0")
    a(f"s_mov_b32 s{d+2}, {nrec}"); a(f"s_mov_b32 s{d+3}, 0x20000")

def poll(a, name, voff, nlanes_mask_all=True):
    a(f"s_mov_b32 s47, 0")
    a.label(f"L_poll_{name}")
    a(f"buffer_load_dword v5, v{voff}, s[24:27], 0 offen sc1")
    a("s_waitcnt vmcnt(0)")
    a("v_cmp_ne_u32 vcc, s46, v5")
    a("s_add_u32 s47, s47, 1")
    a("s_cmp_eq_u64 vcc, 0")
    a(f"s_cbranch_scc1 L_poll_{name}_done")
    a(f"s_cmp_ge_u32 s47, {POLL_MAX}")
    a(f"s_cbranch_scc1 L_poll_{name}_done")
    a("s_sleep 1")
    a(f"s_branch L_poll_{name}")
    a.label(f"L_poll_{name}_done")

def gen():
    a = A()
    a.raw(f".globl {KNAME}\n.p2align 8\n.type {KNAME},@function\n{KNAME}:")
    a("s_cmp_ge_u32 s2, 256")
    a("s_cbranch_scc1 L_end")
    a("s_load_dwordx4 s[4:7], s[0:1], 0")
    a("s_load_dwordx2 s[8:9], s[0:1], 40")
    a("s_load_dwordx4 s[40:43], s[0:1], 16")
    a("s_load_dwordx2 s[44:45], s[0:1], 32")
    a("s_and_b32 s12, s2, 7")
    a("s_lshr_b32 s11, s2, 3")
    a("s_lshr_b32 s10, s12, 1")
    a("s_lshl_b32 s10, s10, 2")
    a("s_and_b32 s13, s11, 3")
    a("s_add_u32 s10, s10, s13")
    a("s_lshr_b32 s11, s11, 2")
    a("s_lshl_b32 s13, s13, 1")
    a("s_add_u32 s13, s13, s11")
    a("s_lshl_b32 s13, s13, 1")
    a("s_and_b32 s13, s13, %d" % E("ROTMASK", 0))
    a("s_and_b32 s12, s12, 1")
    a("s_lshl_b32 s12, s12, 3")
    a("s_add_u32 s11, s11, s12")
    a("v_lshrrev_b32 v1, 6, v0")
    a("v_and_b32 v2, 63, v0")
    a("v_lshlrev_b32 v3, 4, v2")
    a("v_readfirstlane_b32 s14, v1")
    a("s_waitcnt lgkmcnt(0)")
    stamp_rt(a, 0); stamp(a, 1)
    if DBGT:
        a("s_mov_b32 s90, s44"); a("s_mov_b32 s91, s45")
    dbgt(a, 1, True); dbgt(a, 2)
    srd(a, 24, 8, None, WS_USED)
    a("s_cmp_lt_u32 s14, 4")
    a("s_cbranch_scc1 L_g1_compute")
    a("s_sub_u32 s15, s14, 4")
    a("s_lshl_b32 s16, s11, 18")
    a("s_sub_u32 s17, 0x400000, s16")
    a("s_add_u32 s28, s4, s16"); a("s_addc_u32 s29, s5, 0"); a("s_mov_b32 s30, s17"); a("s_mov_b32 s31, 0x20000")
    a("s_lshl_b32 s16, s10, 7")
    a("s_sub_u32 s17, 0x600000, s16")
    a("s_add_u32 s32, s6, s16"); a("s_addc_u32 s33, s7, 0"); a("s_mov_b32 s34, s17"); a("s_mov_b32 s35, 0x20000")
    a("v_lshrrev_b32 v4, 3, v2")
    a("v_lshlrev_b32 v5, 11, v4")
    a("v_and_b32 v6, 7, v2")
    a("v_lshrrev_b32 v7, 4, v2")
    a("v_xor_b32 v8, v6, v7")
    a("v_lshlrev_b32 v8, 4, v8")
    a("v_add_u32 v5, v5, v8")
    a("s_lshl_b32 s16, s15, 16")
    a("v_add_u32 v10, s16, v5")
    a("v_xor_b32 v11, 64, v10")
    a("v_mul_u32_u24 v5, 6144, v4")
    a("v_and_b32 v7, 1, v7")
    a("v_lshlrev_b32 v7, 2, v7")
    a("v_xor_b32 v8, v6, v7")
    a("v_lshlrev_b32 v8, 4, v8")
    a("v_add_u32 v5, v5, v8")
    a("s_mul_i32 s16, s15, 98304")
    a("v_add_u32 v12, s16, v5")
    a("s_lshl_b32 s18, s15, 12")
    a("s_lshl_b32 s19, s15, 11")
    a("s_add_u32 s19, s19, 16384")
    a("s_mov_b32 s20, s13")
    a("s_mov_b32 s36, 0")
    def issue_stage():
        a("s_lshl_b32 s21, s20, 7")
        a("s_mul_i32 s22, s20, 393216")
        a("s_add_u32 s37, s36, s18")
        a("s_add_u32 s39, s36, s19")
        for i in range(4):
            a(f"s_add_u32 m0, s37, {i*1024}")
            a(f"s_add_u32 s38, s21, {i*16384}")
            a(f"buffer_load_dwordx4 v{10+(i&1)}, s[28:31], s38 offen lds")
        for t in range(3):
            for kb in range(2):
                a(f"s_add_u32 m0, s39, {t*8192+kb*1024}")
                a(f"s_add_u32 s38, s22, {t*2048+kb*49152}")
                a(f"buffer_load_dwordx4 v12, s[32:35], s38 offen lds")
        a("s_add_u32 s20, s20, 1")
        a("s_and_b32 s20, s20, 15")
        a(f"s_add_u32 s36, s36, {G1_SLOT}")
        a(f"s_cmp_eq_u32 s36, {G1_SLOT*G1_NSLOT}")
        a("s_cselect_b32 s36, 0, s36")
    issue_stage(); issue_stage()
    a("s_waitcnt vmcnt(10)")
    a("s_barrier")
    dbgt(a, 13, True); dbgt(a, 14)
    issue_stage(); issue_stage()
    a("s_mov_b32 s23, 0")
    a.label("L_g1_ldloop")
    a(f"s_waitcnt vmcnt({10*(G1_NSLOT-2)})")
    a("s_barrier")
    issue_stage()
    a("s_add_u32 s23, s23, 1")
    a(f"s_cmp_lt_u32 s23, {16-G1_NSLOT}")
    a("s_cbranch_scc1 L_g1_ldloop")
    for k in range(G1_NSLOT):
        a(f"s_waitcnt vmcnt({10*max(0, G1_NSLOT-2-k)})")
        a("s_barrier")
    a("s_branch L_g1_done")
    a.label("L_g1_compute")
    ACC = 128; SETS = [64, 84]; XA = 104; WA = 108
    a("s_cmp_eq_u32 s14, 0")
    a("s_cbranch_scc0 L_nocas")
    a("s_memrealtime s[16:17]")
    a("s_waitcnt lgkmcnt(0)")
    a("s_or_b32 s16, s16, 1")
    a("v_mov_b32 v240, s16")
    a("v_mov_b32 v241, 0")
    a("v_mov_b32 v243, 0")
    a("s_mov_b64 exec, 1")
    a("global_atomic_cmpswap v242, v243, v[240:241], s[44:45] sc0 sc1")
    a("s_mov_b64 exec, -1")
    a.label("L_nocas")
    a("s_lshl_b32 s16, s2, 13")
    a("s_lshl_b32 s17, s14, 11")
    a("s_add_u32 s16, s16, s17")
    a("v_add_u32 v4, s16, v3")
    a("global_load_dwordx4 v[224:227], v4, s[40:41]")
    a("global_load_dwordx4 v[228:231], v4, s[40:41] offset:1024")
    if E("PREF", 1):
        a("s_lshl_b32 s16, s2, 14")
        a("s_lshl_b32 s17, s14, 12")
        a("s_add_u32 s16, s16, s17")
        a("v_add_u32 v4, s16, v3")
        for q in range(4): a(f"global_load_dwordx4 v[{16+4*q}:{19+4*q}], v4, s[4:5] offset:{q*1024}")
        a("s_mul_i32 s16, s2, 24576")
        a("s_mul_i32 s17, s14, 6144")
        a("s_add_u32 s16, s16, s17")
        a("v_add_u32 v4, s16, v3")
        for q in range(4): a(f"global_load_dwordx4 v[{32+4*q}:{35+4*q}], v4, s[6:7] offset:{q*1024}")
        a("v_add_u32 v4, 4096, v4")
        for q in range(2): a(f"global_load_dwordx4 v[{48+4*q}:{51+4*q}], v4, s[6:7] offset:{q*1024}")
    a("s_getpc_b64 s[16:17]")
    a.label("L_pc")
    a("s_sub_u32 s16, s16, L_pc-" + KNAME)
    a("s_subb_u32 s17, s17, 0")
    a("v_lshlrev_b32 v4, 7, v2")
    a("s_lshl_b32 s18, s14, 13")
    a("v_add_u32 v4, s18, v4")
    a("v_cmp_gt_u32 vcc, L_end-" + KNAME + ", v4")
    a("s_and_saveexec_b64 s[18:19], vcc")
    a("s_cbranch_execz L_nocode")
    a("global_load_dword v232, v4, s[16:17]")
    a.label("L_nocode")
    a("s_mov_b64 exec, s[18:19]")
    a("s_lshr_b32 s15, s14, 1")
    a("s_and_b32 s16, s14, 1")
    a("v_and_b32 v4, 31, v2")
    a("s_lshl_b32 s17, s15, 6")
    a("v_add_u32 v4, s17, v4")
    a("v_lshlrev_b32 v4, 7, v4")
    a("v_lshrrev_b32 v5, 1, v2")
    a("v_and_b32 v5, 7, v5")
    a("v_lshrrev_b32 v6, 5, v2")
    a("v_xor_b32 v5, v5, v6")
    for ks in range(4):
        a(f"v_xor_b32 v7, {2*ks}, v5")
        a(f"v_lshlrev_b32 v7, 4, v7")
        a(f"v_add_u32 v{XA+ks}, v4, v7")
    a("v_and_b32 v7, 15, v2")
    a("v_lshrrev_b32 v7, 2, v7")
    a("v_lshlrev_b32 v8, 3, v6")
    a("v_add_u32 v8, v8, v7")
    a("v_lshlrev_b32 v8, 7, v8")
    a("v_lshrrev_b32 v9, 4, v2")
    a("v_and_b32 v9, 1, v9")
    a("v_lshlrev_b32 v9, 1, v9")
    a("v_and_b32 v10, 3, v2")
    a("v_lshrrev_b32 v11, 1, v10")
    a("v_add_u32 v9, v9, v11")
    a("s_lshl_b32 s17, s16, 2")
    a("v_add_u32 v9, s17, v9")
    a("v_lshrrev_b32 v11, 1, v7")
    a("v_lshlrev_b32 v11, 2, v11")
    a("v_xor_b32 v9, v9, v11")
    a("v_lshlrev_b32 v9, 4, v9")
    a("v_add_u32 v8, v8, v9")
    a("v_and_b32 v10, 1, v10")
    a("v_lshlrev_b32 v10, 3, v10")
    a("v_add_u32 v8, v8, v10")
    a(f"v_add_u32 v{WA}, 16384, v8")
    for r in range(96): a(f"v_mov_b32 v{ACC+r}, 0")
    a("s_mov_b32 s18, 0")
    a(f"s_mov_b32 s21, {-(G1_NSLOT-1)*G1_SLOT & 0xffffffff}")
    a(f"s_mov_b32 s22, {G1_SLOT}")
    a("s_barrier")
    stamp(a, 2)
    lg = Lgkm(a)
    def reads(setb, ks, tagp):
        x0, x1, w0, w1, w2 = setb, setb+4, setb+8, setb+12, setb+16
        return [(tagp+"x0", f"ds_read_b128 {vr(x0,4)}, v{XA+ks}"),
                (tagp+"w0", f"ds_read_b64_tr_b16 {vr(w0,2)}, v{WA} offset:{ks*2048}"),
                (tagp+"w0", f"ds_read_b64_tr_b16 {vr(w0+2,2)}, v{WA} offset:{ks*2048+512}"),
                (tagp+"x1", f"ds_read_b128 {vr(x1,4)}, v{XA+ks} offset:4096"),
                (tagp+"w1", f"ds_read_b64_tr_b16 {vr(w1,2)}, v{WA} offset:{8192+ks*2048}"),
                (tagp+"w1", f"ds_read_b64_tr_b16 {vr(w1+2,2)}, v{WA} offset:{8192+ks*2048+512}"),
                (tagp+"w2", f"ds_read_b64_tr_b16 {vr(w2,2)}, v{WA} offset:{16384+ks*2048}"),
                (tagp+"w2", f"ds_read_b64_tr_b16 {vr(w2+2,2)}, v{WA} offset:{16384+ks*2048+512}")]
    def mfma(setb, i, t):
        x = setb + 4*i; w = setb + 8 + 4*t; acc = ACC + 16*(i*3+t)
        if t < 2: return f"v_mfma_f32_32x32x16_bf16 {vr(acc,16)}, {vr(w,4)}, {vr(x,4)}, {vr(acc,16)}"
        return f"v_mfma_f32_32x32x16_bf16 {vr(acc,16)}, {vr(x,4)}, {vr(w,4)}, {vr(acc,16)}"
    for tag, ins in reads(SETS[0], 0, "A"):
        a(ins); lg.issue(tag)
    a.raw(".p2align 6")
    a.label("L_g1_loop")
    order = [(0,1),(0,2),(1,1),(1,2),(0,0),(1,0)]
    needs = [["x0","w1"],["w2"],["x1"],[],["w0"],[]]
    def reads2(setb, ks, tagp):
        R = reads(setb, ks, tagp)
        return [R[0], R[4], R[5], R[6], R[7], R[3], R[1], R[2]]
    a.l = a.l[:-10]; lg.q = []
    for tag, ins in reads2(SETS[0], 0, "A"):
        a(ins); lg.issue(tag)
    a.raw(".p2align 6")
    a.label("L_g1_loop")
    for ks in range(4):
        cur = SETS[ks & 1]; nxt = SETS[(ks+1) & 1]
        cp = "AB"[ks & 1]; np_ = "AB"[(ks+1) & 1]
        if ks == 3:
            lg.all()
            a("s_add_u32 s18, s18, 1")
            a("s_and_b32 s19, s18, %d" % (G1_NSLOT-1))
            a("s_cmp_eq_u32 s19, 0")
            a("s_cselect_b32 s20, s21, s22")
            for k in range(4): a(f"v_add_u32 v{XA+k}, s20, v{XA+k}")
            a(f"v_add_u32 v{WA}, s20, v{WA}")
            a("s_barrier")
        R = reads2(nxt, (ks+1) & 3, np_)
        slots = [[], R[0:2], R[2:4], R[4:6], R[6:8], []]
        for k in range(6):
            for tag, ins in slots[k]:
                a(ins); lg.issue(tag)
            lg.need([cp+t for t in needs[k]])
            a(mfma(cur, *order[k]))
    a("s_cmp_lt_u32 s18, 16")
    a("s_cbranch_scc1 L_g1_loop")
    a("s_waitcnt lgkmcnt(0) vmcnt(0)")
    stamp(a, 3)
    a("s_lshl_b32 s17, s10, 1")
    a("s_add_u32 s17, s17, s16")
    a("s_lshl_b32 s19, s11, 2")
    a("s_lshl_b32 s20, s15, 1")
    a("s_add_u32 s19, s19, s20")
    a("s_lshl_b32 s20, s17, 6")
    a("s_add_u32 s20, s20, s19")
    a("s_lshl_b32 s22, s20, 12")
    a("s_lshl_b32 s20, s15, 14")
    a("s_lshl_b32 s21, s16, 12")
    a("s_add_u32 s20, s20, s21")
    a("v_add_u32 v4, s20, v3")
    a("s_lshl_b32 s20, s16, 2")
    a("s_lshl_b32 s21, s15, 1")
    a("s_add_u32 s20, s20, s21")
    a("s_lshl_b32 s20, s20, 11")
    a(f"s_add_u32 s20, s20, {QX_OFF}")
    a("v_add_u32 v5, s20, v3")
    a(f"s_mov_b32 s23, {f32bits(QSCALE)}")
    a("s_nop 7")
    T = 64
    n = 0
    for i in range(2):
        for t in (1, 2):
            acc = ACC + 16*(i*3+t); base = T + 8*(n % 4); n += 1
            for r in range(8): a(f"v_cvt_pk_bf16_f32 v{base+r}, v{acc+2*r}, v{acc+2*r+1}")
            o = i*4096 + (t-1)*2048
            a(f"s_add_u32 s28, s22, {o}")
            a(f"buffer_store_dwordx4 {vr(base,4)}, v3, s[24:27], s28 offen sc1")
            a(f"buffer_store_dwordx4 {vr(base+4,4)}, v3, s[24:27], s28 offen offset:1024 sc1")
            a(f"ds_write_b128 v4, {vr(base,4)} offset:{i*8192+(t-1)*2048}")
            a(f"ds_write_b128 v4, {vr(base+4,4)} offset:{i*8192+(t-1)*2048+1024}")
    for i in range(2):
        acc = ACC + 16*(i*3); base = 96 + 8*i
        for r in range(16): a(f"v_mul_f32 v{acc+r}, s23, v{acc+r}")
        for r in range(8): a(f"v_cvt_pk_bf16_f32 v{base+r}, v{acc+2*r}, v{acc+2*r+1}")
        a(f"ds_write_b128 v5, {vr(base,4)} offset:{i*2048}")
        a(f"ds_write_b128 v5, {vr(base+4,4)} offset:{i*2048+1024}")
    a("s_cmp_eq_u32 s14, 0")
    a("s_cbranch_scc0 L_noep")
    a("v_cmp_eq_u32 vcc, 0, v242")
    a("s_nop 1")
    a("v_cndmask_b32 v242, v242, v240, vcc")
    a(f"v_mov_b32 v6, {EP_OFF}")
    a("s_mov_b64 exec, 1")
    a("ds_write_b32 v6, v242")
    a("v_mov_b32 v7, 0")
    a(f"ds_write_b64 v6, v[7:8] offset:64" if False else f"ds_write_b32 v6, v7 offset:64")
    a(f"ds_write_b32 v6, v7 offset:68")
    a("s_mov_b64 exec, -1")
    a.label("L_noep")
    a("s_waitcnt lgkmcnt(0)")
    a.label("L_g1_done")
    a("s_barrier")
    dbgt(a, 3, True); dbgt(a, 4)
    stamp(a, 4)
    Q, K, V = 8, 16, 24
    S = [32, 48]; P = [64, 72]; O = 80; L = 96; ONES = 100; IDX = 104; VC = 105; VN = 106; M = 107; VB = 108; VD = 109
    a("s_lshr_b32 s15, s14, 2")
    a("s_and_b32 s16, s14, 3")
    a("s_lshl_b32 s17, s10, 1")
    a("s_add_u32 s17, s17, s15")
    a("s_lshl_b32 s18, s11, 2")
    a("s_add_u32 s18, s18, s16")
    a("s_lshl_b32 s20, s14, 11")
    a(f"s_add_u32 s20, s20, {QX_OFF}")
    a("v_add_u32 v4, s20, v3")
    a(f"ds_read_b128 {vr(Q,4)}, v4")
    a(f"ds_read_b128 {vr(Q+4,4)}, v4 offset:1024")
    a(f"v_mov_b32 v6, {EP_OFF}")
    a("ds_read_b32 v6, v6")
    a("s_lshl_b32 s22, s15, 12")
    a(f"v_add_u32 v{VB}, s22, v3")
    a(f"v_mov_b32 v{VC}, v{VB}")
    a(f"v_add_u32 v{VN}, {AT_SLOT}, v{VB}")
    a(f"ds_read_b128 {vr(K,4)}, v{VC}")
    a(f"ds_read_b128 {vr(K+4,4)}, v{VC} offset:1024")
    for r in range(16): a(f"v_mov_b32 v{O+r}, 0")
    for r in range(4): a(f"v_mov_b32 v{L+r}, 0")
    for r in range(8): a(f"v_mov_b32 v{P[1]+r}, 0")
    a("v_and_b32 v4, 6, v2")
    a("v_mov_b32 v5, 0x3f803f80")
    a("v_cmp_eq_u32 vcc, 0, v4")
    a("s_nop 1")
    a(f"v_cndmask_b32 v{ONES}, 0, v5, vcc")
    a(f"v_cndmask_b32 v{ONES+1}, 0, v5, vcc")
    a("v_cmp_eq_u32 vcc, 4, v4")
    a("s_nop 1")
    a(f"v_cndmask_b32 v{ONES+2}, 0, v5, vcc")
    a(f"v_cndmask_b32 v{ONES+3}, 0, v5, vcc")
    a("v_and_b32 v4, 1, v2")
    a("v_mov_b32 v5, 0x44444444")
    a("v_mov_b32 v7, 0xeeeeeeee")
    a("v_cmp_eq_u32 vcc, 0, v4")
    a("s_nop 1")
    a(f"v_cndmask_b32 v{IDX}, v7, v5, vcc")
    VONE = 110; VCA = 111; VCR = 112; VCV = 113
    a("s_lshl_b32 s20, s17, 18")
    a("s_lshl_b32 s21, s16, 10")
    a("s_add_u32 s20, s20, s21")
    a("s_lshl_b32 s21, s14, 10")
    a("s_mov_b32 s51, 4096"); a("s_mov_b32 s52, 8192"); a("s_mov_b32 s53, 12288")
    for q in range(4): a(f"s_mov_b32 s{28+q}, s{24+q}")
    a(f"v_mov_b32 v{VD}, v3")
    a(f"v_mov_b32 v{VONE}, 1")
    a("s_lshl_b32 s36, s15, 2")
    a(f"s_add_u32 s36, s36, {CNT_OFF}")
    a(f"v_mov_b32 v{VCR}, s36")
    a("s_lshl_b32 s37, s14, 8")
    a(f"s_add_u32 s37, s37, {SCR_OFF}")
    a("v_lshlrev_b32 v4, 2, v2")
    a(f"v_add_u32 v{VCA}, s37, v4")
    a("v_cmp_eq_u32 vcc, 0, v2")
    a("s_nop 1")
    a(f"v_cndmask_b32 v{VCA}, v{VCA}, v{VCR}, vcc")
    a("s_waitcnt lgkmcnt(0)")
    a("v_readfirstlane_b32 s46, v6")
    a(f"v_mfma_f32_32x32x16_bf16 {vr(S[0],16)}, {vr(K,4)}, {vr(Q,4)}, 0")
    a(f"v_mfma_f32_32x32x16_bf16 {vr(S[0],16)}, {vr(K+4,4)}, {vr(Q+4,4)}, {vr(S[0],16)}")
    lg = Lgkm(a)
    a(f"ds_read_b128 {vr(K,4)}, v{VC} offset:8192"); lg.issue("K")
    a(f"ds_read_b128 {vr(K+4,4)}, v{VC} offset:{8192+1024}"); lg.issue("K")
    a(f"ds_read_b128 {vr(V,4)}, v{VC} offset:2048"); lg.issue("V")
    a(f"ds_read_b128 {vr(V+4,4)}, v{VC} offset:3072"); lg.issue("V")
    a("s_nop 7")
    PRIO = E("PRIO", 1)
    def at_step(i, own):
        X = S[i & 1]; Y = S[(i+1) & 1]; PX = P[i & 1]; PY = P[(i+1) & 1]
        ex = lambda r: a(f"v_exp_f32 v{X+r}, v{X+r}")
        cv = lambda r: a(f"v_cvt_pk_bf16_f32 v{PX+r}, v{X+2*r}, v{X+2*r+1}")
        def kread():
            t = i + 2
            if own and t >= 4: return
            b = VC if t < 4 else VN
            off = (t % 4)*8192
            a(f"ds_read_b128 {vr(K,4)}, v{b} offset:{off}"); lg.issue("K")
            a(f"ds_read_b128 {vr(K+4,4)}, v{b} offset:{off+1024}"); lg.issue("K")
        def vread():
            off = i*8192 + 2048
            a(f"ds_read_b128 {vr(V,4)}, v{VC} offset:{off}"); lg.issue("V")
            a(f"ds_read_b128 {vr(V+4,4)}, v{VC} offset:{off+1024}"); lg.issue("V")
        def dma1(q):
            if own or E("DMAMODE", 1) == 0: return
            a(f"s_add_u32 m0, s38, {q*8192}")
            if q: a(f"s_add_u32 s39, s37, s{50+q}")
            else: a("s_mov_b32 s39, s37")
            a(f"buffer_load_dwordx4 v{VD}, s[28:31], s39 offen sc1 lds")
        qk0 = f"v_mfma_f32_32x32x16_bf16 {vr(Y,16)}, {vr(K,4)}, {vr(Q,4)}, 0"
        qk1 = f"v_mfma_f32_32x32x16_bf16 {vr(Y,16)}, {vr(K+4,4)}, {vr(Q+4,4)}, {vr(Y,16)}"
        pv0 = f"v_mfma_f32_32x32x16_bf16 {vr(O,16)}, {vr(V,4)}, {vr(PY,4)}, {vr(O,16)}"
        pv1 = f"v_mfma_f32_32x32x16_bf16 {vr(O,16)}, {vr(V+4,4)}, {vr(PY+4,4)}, {vr(O,16)}"
        smf = f"v_smfmac_f32_16x16x64_bf16 {vr(L,4)}, {vr(ONES,4)}, {vr(PY,8)}, v{IDX}"
        bk = []
        if i == 3 and not own:
            bk = ["s_add_u32 s23, s23, 1", "s_add_u32 s48, s48, 32768", "s_and_b32 s48, s48, 0x18000",
                  "s_add_u32 s49, s49, 32768", "s_and_b32 s49, s49, 0x18000", "s_add_u32 s38, s49, s21",
                  "s_add_u32 s55, s55, s56", "s_and_b32 s55, s55, s57", "s_add_u32 s37, s20, s55", "s_add_u32 s47, s47, 4"]
        def fill(n):
            for _ in range(n):
                if bk: a(bk.pop(0))
        if PRIO: a(f"s_setprio {3-i}")
        if own and i == 3:
            has_qk = False
        else:
            has_qk = True
        if own and i == E("FLAGSTEP", 2):
            a("s_cmp_lt_u32 s14, 4")
            a("s_cbranch_scc1 L_flag_out")
            a.label("L_flag_back")
        if has_qk:
            lg.need(["K"]); a(qk0)
        ex(0); ex(1); ex(2); ex(3)
        if has_qk: a(qk1)
        if i == 2 and not own:
            lg.need(["C"])
            a(f"v_readfirstlane_b32 s36, v{VCV}")
            ex(4)
            a("s_cmp_ge_u32 s36, s47")
            a("s_cbranch_scc0 L_cnt_spin")
            a.label("L_cnt_back")
            kread(); ex(5); cv(0); ex(6); cv(1)
        else:
            kread(); ex(4); ex(5); cv(0); ex(6); cv(1)
        lg.need(["V"])
        if i == 0 and not own:
            a("s_waitcnt vmcnt(4)")
            a(f"ds_add_u32 v{VCA}, v{VONE}"); lg.issue("A")
        a(pv0); ex(7); ex(8); cv(2)
        if i >= 2: dma1(2*(i-2))
        ex(9); cv(3)
        a(pv1)
        if i == 1 and not own:
            a(f"ds_read_b32 v{VCV}, v{VCR}"); lg.issue("C")
        if i >= 2: dma1(2*(i-2)+1)
        ex(10); fill(2); ex(11); fill(2); cv(4); fill(1); ex(12); fill(2); cv(5)
        a(smf); vread(); fill(1); ex(13); fill(2); ex(14); cv(6); ex(15)
        if i == 3:
            a(f"v_mov_b32 v{VC}, v{VN}")
            cv(7)
            if not own: a(f"v_add_u32 v{VN}, s48, v{VB}")
        else:
            a("s_nop 0")
            cv(7)
        assert not bk
    for i in range(4): at_step(i, True)
    stamp(a, 5)
    a("s_cmp_eq_u32 s14, 7")
    a("s_cbranch_scc0 L_at_nopoll")
    a("s_lshl_b32 s36, s10, 8")
    a(f"s_add_u32 s36, s36, {FLG_OFF}")
    a("v_lshlrev_b32 v4, 2, v2")
    a("v_add_u32 v4, s36, v4")
    poll(a, "f", 4)
    a.label("L_at_nopoll")
    a("s_barrier")
    stamp(a, 6)
    def kvstage(st):
        a(f"s_add_u32 s36, s11, {st}")
        a("s_and_b32 s36, s36, 15")
        a("s_lshl_b32 s36, s36, 14")
        a("s_add_u32 s36, s36, s20")
        for kk in range(4):
            a(f"s_add_u32 m0, s21, {st*AT_SLOT + kk*8192}")
            a(f"s_add_u32 s39, s36, {kk*4096}")
            a(f"buffer_load_dwordx4 v3, s[24:27], s39 offen sc1 lds")
    kvstage(1); kvstage(2)
    a("s_mov_b32 s23, 1")
    a(f"s_mov_b32 s48, {2*AT_SLOT}")
    a(f"v_add_u32 v{VN}, s48, v{VB}")
    a("s_mov_b32 s49, 0")
    a("s_mov_b32 s38, s21")
    a("s_add_u32 s55, s11, 4")
    a("s_and_b32 s55, s55, 15")
    a("s_lshl_b32 s55, s55, 14")
    a("s_mov_b32 s56, 16384"); a("s_mov_b32 s57, 0x3c000")
    a("s_add_u32 s37, s20, s55")
    a("s_mov_b32 s47, 4")
    a("s_mov_b32 s59, 13")
    a("s_waitcnt vmcnt(4)")
    a("s_barrier")
    kvstage(3)
    stamp(a, 7)
    a(f"ds_read_b128 {vr(K,4)}, v{VC}")
    a(f"ds_read_b128 {vr(K+4,4)}, v{VC} offset:1024")
    a("s_waitcnt lgkmcnt(0)")
    a(f"v_mfma_f32_32x32x16_bf16 {vr(S[0],16)}, {vr(K,4)}, {vr(Q,4)}, 0")
    a(f"v_mfma_f32_32x32x16_bf16 {vr(S[0],16)}, {vr(K+4,4)}, {vr(Q+4,4)}, {vr(S[0],16)}")
    a(f"ds_read_b128 {vr(K,4)}, v{VC} offset:8192")
    a(f"ds_read_b128 {vr(K+4,4)}, v{VC} offset:{8192+1024}")
    a("s_waitcnt lgkmcnt(0)")
    a("s_nop 7")
    stamp(a, 14)
    dbgt(a, 5, True); dbgt(a, 6)
    lg.q = ["K", "K", "V", "V"]
    a.raw(".p2align 6")
    a.label("L_at_loop")
    for i in range(4): at_step(i, False)
    assert lg.q == ["K", "K", "V", "V"], lg.q
    a("s_cmp_eq_u32 s23, s59")
    a("s_cbranch_scc0 L_at_loop")
    a("s_cmp_eq_u32 s23, 16")
    a("s_cbranch_scc1 L_at_tail")
    stamp(a, 15)
    a("s_mov_b32 s59, 16")
    a("s_mov_b32 s51, 131072"); a("s_mov_b32 s52, 262144"); a("s_mov_b32 s53, 393216")
    a("s_lshl_b32 s39, s11, 7")
    a("s_sub_u32 s36, 0x200000, s39")
    a("s_add_u32 s28, s40, s39"); a("s_addc_u32 s29, s41, 0"); a("s_mov_b32 s30, s36"); a("s_mov_b32 s31, 0x20000")
    a("s_lshl_b32 s20, s14, 14")
    a("s_mov_b32 s55, 0"); a("s_mov_b32 s56, 524288"); a("s_mov_b32 s57, -1")
    a("s_mov_b32 s37, s20")
    a("v_lshrrev_b32 v4, 3, v2")
    a("v_lshlrev_b32 v4, 11, v4")
    a("v_and_b32 v5, 7, v2")
    a("v_lshrrev_b32 v6, 4, v2")
    a("v_and_b32 v6, 1, v6")
    a("v_lshlrev_b32 v6, 2, v6")
    a("v_xor_b32 v5, v5, v6")
    a("v_lshlrev_b32 v5, 4, v5")
    a(f"v_add_u32 v{VD}, v4, v5")
    a("s_branch L_at_loop")
    a.label("L_cnt_spin")
    a("s_mov_b32 s39, 0")
    a.label("L_cnt_spin2")
    a(f"ds_read_b32 v{VCV}, v{VCR}")
    a("s_waitcnt lgkmcnt(0)")
    a(f"v_readfirstlane_b32 s36, v{VCV}")
    a("s_add_u32 s39, s39, 1")
    a(f"s_cmp_ge_u32 s39, {POLL_MAX*16}")
    a("s_cbranch_scc1 L_cnt_back")
    a("s_cmp_ge_u32 s36, s47")
    a("s_cbranch_scc0 L_cnt_spin2")
    a("s_branch L_cnt_back")
    a.label("L_at_tail")
    a("s_setprio 0")
    PL = P[1]
    a("s_waitcnt lgkmcnt(0)")
    a(f"v_mfma_f32_32x32x16_bf16 {vr(O,16)}, {vr(V,4)}, {vr(PL,4)}, {vr(O,16)}")
    a(f"v_mfma_f32_32x32x16_bf16 {vr(O,16)}, {vr(V+4,4)}, {vr(PL+4,4)}, {vr(O,16)}")
    a(f"v_smfmac_f32_16x16x64_bf16 {vr(L,4)}, {vr(ONES,4)}, {vr(PL,8)}, v{IDX}")
    stamp(a, 8)
    dbgt(a, 7, True); dbgt(a, 8)
    a("s_nop 8")
    a("s_nop 7")
    a(f"v_add_f32 v{L}, v{L}, v{L+1}")
    a(f"v_mov_b32 v4, {f32bits(2.0**-40)}")
    a(f"v_mov_b32 v5, {f32bits(2.0**40)}")
    a(f"v_cmp_nge_f32 vcc, v{L}, v4")
    a(f"v_cmp_nle_f32 s[44:45], v{L}, v5")
    a("s_or_b64 s[44:45], s[44:45], vcc")
    a(f"v_mov_b32 v5, {f32bits(2.0**100)}")
    for r in range(16):
        a(f"v_cmp_nlt_f32 vcc, abs(v{O+r}), v5")
        a("s_or_b64 s[44:45], s[44:45], vcc")
    a("s_cmp_lg_u64 s[44:45], 0")
    a("s_cbranch_scc1 L_at_slow")
    a.label("L_at_fin")
    a(f"v_rcp_f32 v4, v{L}")
    a("s_nop 0")
    for r in range(16): a(f"v_mul_f32 v{O+r}, v{O+r}, v4")
    for r in range(8): a(f"v_cvt_pk_bf16_f32 v{P[0]+r}, v{O+2*r}, v{O+2*r+1}")
    a("s_lshl_b32 s19, s18, 6")
    a("s_lshl_b32 s36, s17, 1")
    a("s_add_u32 s19, s19, s36")
    a("s_lshl_b32 s19, s19, 10")
    a(f"s_add_u32 s19, s19, {OF_OFF}")
    a(f"buffer_store_dwordx4 {vr(P[0],4)}, v3, s[24:27], s19 offen sc1")
    a(f"buffer_store_dwordx4 {vr(P[0]+4,4)}, v3, s[24:27], s19 offen offset:1024 sc1")
    srd(a, 32, 42, None, 0x400000)
    a("s_barrier")
    for q in range(4):
        a(f"s_add_u32 m0, s21, {3*AT_SLOT + q*8192}")
        a(f"s_add_u32 s39, s37, s{50+q}" if q else "s_mov_b32 s39, s37")
        a(f"buffer_load_dwordx4 v{VD}, s[28:31], s39 offen lds")
    a("s_waitcnt vmcnt(4)")
    a("s_lshl_b32 s36, s11, 9")
    a("s_lshl_b32 s37, s16, 7")
    a("s_add_u32 s36, s36, s37")
    a("s_lshl_b32 s37, s10, 3")
    a("s_add_u32 s36, s36, s37")
    a("s_lshl_b32 s37, s15, 2")
    a("s_add_u32 s36, s36, s37")
    a(f"s_add_u32 s36, s36, {FLG_OFF+8192}")
    a("v_mov_b32 v5, s36")
    a("v_mov_b32 v6, s46")
    a("s_mov_b64 exec, 1")
    a("buffer_store_dword v6, v5, s[24:27], 0 offen sc1")
    a("s_mov_b64 exec, -1")
    stamp(a, 9)
    a("v_lshrrev_b32 v5, 5, v2")
    a("v_and_b32 v6, 15, v2")
    a("v_lshrrev_b32 v6, 2, v6")
    a("v_lshlrev_b32 v7, 2, v5")
    a("v_add_u32 v7, v7, v6")
    a("v_lshlrev_b32 v7, 7, v7")
    a("v_lshrrev_b32 v8, 4, v2")
    a("v_and_b32 v8, 1, v8")
    a("v_lshlrev_b32 v8, 1, v8")
    a("v_and_b32 v9, 3, v2")
    a("v_lshrrev_b32 v10, 1, v9")
    a("v_add_u32 v8, v8, v10")
    a("v_lshrrev_b32 v10, 1, v6")
    a("v_lshlrev_b32 v10, 2, v10")
    a("v_xor_b32 v8, v8, v10")
    a("v_lshlrev_b32 v8, 4, v8")
    a("v_add_u32 v7, v7, v8")
    a("v_and_b32 v9, 1, v9")
    a("v_lshlrev_b32 v9, 3, v9")
    a("v_add_u32 v7, v7, v9")
    a("s_lshl_b32 s36, s15, 16")
    a(f"s_add_u32 s36, s36, {WO_LDS}")
    a("v_add_u32 v12, s36, v7")
    a("v_xor_b32 v13, 64, v12")
    ACC = 16
    for r in range(32): a(f"v_mov_b32 v{ACC+r}, 0")
    a("s_lshl_b32 s36, s10, 9")
    a("s_lshl_b32 s37, s16, 7")
    a("s_add_u32 s36, s36, s37")
    a("s_lshl_b32 s37, s15, 6")
    a("s_add_u32 s36, s36, s37")
    a(f"s_add_u32 s36, s36, {FLG_OFF+8192}")
    a("v_and_b32 v4, 15, v2")
    a("v_lshlrev_b32 v4, 2, v4")
    a("v_add_u32 v4, s36, v4")
    poll(a, "g", 4)
    stamp(a, 10)
    dbgt(a, 9, True); dbgt(a, 10)
    OFR = 64
    a("s_lshl_b32 s36, s10, 2")
    a("s_add_u32 s36, s36, s16")
    a("s_lshl_b32 s36, s36, 6")
    a("s_lshl_b32 s37, s15, 5")
    a("s_add_u32 s36, s36, s37")
    a("s_lshl_b32 s36, s36, 10")
    a(f"s_add_u32 s36, s36, {OF_OFF}")
    for k in range(32):
        if k % 4 == 0 and k: a("s_add_u32 s36, s36, 4096")
        a(f"buffer_load_dwordx4 {vr(OFR+4*k,4)}, v3, s[24:27], s36 offen offset:{(k%4)*1024} sc1")
    a("s_barrier")
    WF = [48, 56]
    lg = Lgkm(a)
    def wreads(setb, kk):
        return [f"ds_read_b64_tr_b16 {vr(setb+4*ct+2*jj,2)}, v{12+ct} offset:{kk*2048+jj*1024}" for ct in range(2) for jj in range(2)]
    for ins in wreads(WF[0], 0): a(ins); lg.issue("w0")
    for kk in range(32):
        cur = WF[kk & 1]; nxt = WF[(kk+1) & 1]
        if kk < 31:
            for ins in wreads(nxt, kk+1): a(ins); lg.issue(f"w{(kk+1)&1}")
        lg.need([f"w{kk&1}"])
        if kk % 2 == 0: a(f"s_waitcnt vmcnt({30-kk})")
        for ct in range(2):
            a(f"v_mfma_f32_32x32x16_bf16 {vr(ACC+16*ct,16)}, {vr(cur+4*ct,4)}, {vr(OFR+4*kk,4)}, {vr(ACC+16*ct,16)}")
    stamp(a, 11)
    a("s_lshl_b32 s36, s14, 12")
    a(f"s_add_u32 s36, s36, {XCH_OFF}")
    a("v_add_u32 v5, s36, v3")
    a("s_xor_b32 s36, s14, 4")
    a("s_lshl_b32 s36, s36, 12")
    a(f"s_add_u32 s36, s36, {XCH_OFF}")
    a("v_add_u32 v6, s36, v3")
    a("s_nop 9")
    a("s_cmp_eq_u32 s15, 0")
    a("s_cbranch_scc1 L_op_kh0")
    for q in range(4): a(f"ds_write_b128 v5, {vr(ACC+4*q,4)} offset:{q*1024}")
    for r in range(16): a(f"v_mov_b32 v{48+r}, v{ACC+16+r}")
    a("s_branch L_op_x")
    a.label("L_op_kh0")
    for q in range(4): a(f"ds_write_b128 v5, {vr(ACC+16+4*q,4)} offset:{q*1024}")
    for r in range(16): a(f"v_mov_b32 v{48+r}, v{ACC+r}")
    a.label("L_op_x")
    a("s_waitcnt lgkmcnt(0)")
    a("s_barrier")
    for q in range(4): a(f"ds_read_b128 {vr(64+4*q,4)}, v6 offset:{q*1024}")
    a("s_waitcnt lgkmcnt(0)")
    for r in range(16): a(f"v_add_f32 v{48+r}, v{48+r}, v{64+r}")
    for r in range(8): a(f"v_cvt_pk_bf16_f32 v{64+r}, v{48+2*r}, v{48+2*r+1}")
    a("v_and_b32 v5, 31, v2")
    a("v_lshlrev_b32 v5, 11, v5")
    a("v_lshrrev_b32 v6, 5, v2")
    a("v_lshlrev_b32 v6, 4, v6")
    a("v_add_u32 v5, v5, v6")
    for g in (0, 2):
        a(f"v_permlane32_swap_b32 v{64+2*g}, v{64+2*g+2}")
        a(f"v_permlane32_swap_b32 v{64+2*g+1}, v{64+2*g+3}")
    a("s_lshl_b32 s36, s10, 2")
    a("s_add_u32 s36, s36, s16")
    a("s_lshl_b32 s36, s36, 16")
    a("s_lshl_b32 s37, s11, 7")
    a("s_add_u32 s36, s36, s37")
    a("s_lshl_b32 s37, s15, 6")
    a("s_add_u32 s36, s36, s37")
    a(f"buffer_store_dwordx4 {vr(64,4)}, v5, s[32:35], s36 offen")
    a(f"buffer_store_dwordx4 {vr(68,4)}, v5, s[32:35], s36 offen offset:32")
    if STAMP:
        a("s_waitcnt vmcnt(0)")
        stamp(a, 12); stamp_rt(a, 13); stamp_store(a, 16)
    if DBGT:
        a("s_waitcnt vmcnt(0)")
        dbgt(a, 11, True); dbgt(a, 12)
    a("s_endpgm")
    a.label("L_flag_out")
    a("s_waitcnt vmcnt(0)")
    a("s_lshl_b32 s36, s10, 8")
    a("s_lshl_b32 s39, s11, 4")
    a("s_add_u32 s36, s36, s39")
    a("s_lshl_b32 s39, s14, 2")
    a("s_add_u32 s36, s36, s39")
    a(f"s_add_u32 s36, s36, {FLG_OFF}")
    a("v_mov_b32 v4, s36")
    a("v_mov_b32 v5, s46")
    a("s_mov_b64 exec, 1")
    a("buffer_store_dword v5, v4, s[24:27], 0 offen sc1")
    a("s_mov_b64 exec, -1")
    a("s_branch L_flag_back")
    a.label("L_at_slow")
    X = S[0]; PX = P[0]
    a(f"v_mov_b32 v{M}, 0xff800000")
    a(f"v_mov_b32 v{L}, 0")
    for r in range(16): a(f"v_mov_b32 v{O+r}, 0")
    a("s_lshl_b32 s36, s17, 18")
    a("s_mov_b32 s47, 0")
    a.label("L_at_slow_loop")
    a(f"buffer_load_dwordx4 {vr(K,4)}, v3, s[24:27], s36 offen sc1")
    a(f"buffer_load_dwordx4 {vr(K+4,4)}, v3, s[24:27], s36 offen offset:1024 sc1")
    a(f"buffer_load_dwordx4 {vr(V,4)}, v3, s[24:27], s36 offen offset:2048 sc1")
    a(f"buffer_load_dwordx4 {vr(V+4,4)}, v3, s[24:27], s36 offen offset:3072 sc1")
    a("s_waitcnt vmcnt(0)")
    a(f"v_mfma_f32_32x32x16_bf16 {vr(X,16)}, {vr(K,4)}, {vr(Q,4)}, 0")
    a(f"v_mfma_f32_32x32x16_bf16 {vr(X,16)}, {vr(K+4,4)}, {vr(Q+4,4)}, {vr(X,16)}")
    a("s_nop 15"); a("s_nop 3")
    a(f"v_max_f32 v4, v{X}, v{X+1}")
    for r in range(2, 16): a(f"v_max_f32 v4, v4, v{X+r}")
    a("v_mov_b32 v5, v4")
    a("s_nop 1")
    a("v_permlane32_swap_b32 v4, v5")
    a("s_nop 1")
    a("v_max_f32 v4, v4, v5")
    a(f"v_max_f32 v4, v4, v{M}")
    a(f"v_sub_f32 v5, v{M}, v4")
    a("v_exp_f32 v5, v5")
    a(f"v_mov_b32 v{M}, v4")
    for r in range(16): a(f"v_sub_f32 v{X+r}, v{X+r}, v4")
    for r in range(16): a(f"v_exp_f32 v{X+r}, v{X+r}")
    a("s_nop 0")
    for r in range(8): a(f"v_cvt_pk_bf16_f32 v{PX+r}, v{X+2*r}, v{X+2*r+1}")
    a(f"v_mul_f32 v{L}, v{L}, v5")
    for r in range(16): a(f"v_mul_f32 v{O+r}, v{O+r}, v5")
    for r in range(8):
        a(f"v_lshlrev_b32 v6, 16, v{PX+r}")
        a(f"v_and_b32 v7, 0xffff0000, v{PX+r}")
        a(f"v_add_f32 v{L}, v{L}, v6")
        a(f"v_add_f32 v{L}, v{L}, v7")
    a("s_nop 1")
    a(f"v_mfma_f32_32x32x16_bf16 {vr(O,16)}, {vr(V,4)}, {vr(PX,4)}, {vr(O,16)}")
    a(f"v_mfma_f32_32x32x16_bf16 {vr(O,16)}, {vr(V+4,4)}, {vr(PX+4,4)}, {vr(O,16)}")
    a("s_nop 15"); a("s_nop 3")
    a("s_add_u32 s36, s36, 4096")
    a("s_add_u32 s47, s47, 1")
    a("s_cmp_lt_u32 s47, 64")
    a("s_cbranch_scc1 L_at_slow_loop")
    a(f"v_mov_b32 v5, v{L}")
    a(f"v_mov_b32 v4, v{L}")
    a("s_nop 1")
    a("v_permlane32_swap_b32 v4, v5")
    a("s_nop 1")
    a(f"v_add_f32 v{L}, v4, v5")
    a("s_branch L_at_fin")
    a.label("L_end")
    a("s_endpgm")
    return a.text()

HEADER = """; Fused multi-head attention: QKV projection -> softmax attention -> output projection, one persistent launch.
; @launch grid=(256,1,1) block=(512,1,1) lds=163840
"""
def main(out):
    vg = 256 if (STAMP or DBGT) else 244
    sg = 96 if (STAMP or DBGT) else 64
    txt = HEADER + '.amdgcn_target "amdgcn-amd-amdhsa--gfx950"\n.text\n' + gen()
    txt += f""".section .rodata,"a"
.p2align 6
.amdhsa_kernel {KNAME}
  .amdhsa_next_free_vgpr {vg}
  .amdhsa_next_free_sgpr {sg}
  .amdhsa_accum_offset {(vg+3)//4*4}
  .amdhsa_group_segment_fixed_size 0
  .amdhsa_kernarg_size 48
  .amdhsa_user_sgpr_count 2
  .amdhsa_user_sgpr_kernarg_segment_ptr 1
  .amdhsa_system_sgpr_workgroup_id_x 1
.end_amdhsa_kernel
"""
    open(out, "w").write(txt)
if __name__ == "__main__":
    main(sys.argv[1] if len(sys.argv) > 1 else "cdna_kernels/%s.s" % NAME)
```

```python
import sys, os, struct
NAME = "standalone__softmax_full_mha__prompt"
KNAME = NAME + "_kernel"
E = lambda k, d=0: int(os.environ.get(k, str(d)))
STAMP = E("STAMP")
STAMP_OFF = 32 << 20

class A:
    def __init__(self): self.l = []
    def __call__(self, s): self.l.append("    " + s)
    def label(self, s): self.l.append(s + ":")
    def raw(self, s): self.l.append(s)
    def text(self): return "\n".join(self.l) + "\n"
def vr(b, n=1): return f"v{b}" if n == 1 else f"v[{b}:{b+n-1}]"
def f32bits(x): return struct.unpack('<I', struct.pack('<f', x))[0]

class Lgkm:
    def __init__(self, a): self.a = a; self.q = []
    def issue(self, tag): self.q.append(tag)
    def need(self, tags):
        idx = -1
        for i, t in enumerate(self.q):
            if t in tags: idx = i
        if idx < 0: return
        n = len(self.q) - 1 - idx
        assert n <= 15
        self.a(f"s_waitcnt lgkmcnt({n})")
        self.q = self.q[idx+1:]
    def all(self):
        if self.q:
            self.a("s_waitcnt lgkmcnt(0)")
            self.q = []

KVF_OFF = 0
OF_OFF  = 8 << 20
FLG_OFF = 12 << 20
WS_USED = 13 << 20
QSCALE = 0.17677669529663687 * 1.4426950408889634
G1_NSLOT = 4; G1_SLOT = 40960
AT_SLOT = 32768
QX_OFF = 131072
AT_R = 4
WO_LDS = 0
CNT_OFF = 147456 + 64
SCR_OFF = 147456 + 1024
XCH_OFF = 131072
EP_OFF = 147456
POLL_MAX = 40000

def stamp(a, k):
    if STAMP:
        a(f"s_memtime s[{60+2*k}:{61+2*k}]"); a("s_waitcnt lgkmcnt(0)")
def stamp_rt(a, k):
    if STAMP:
        a(f"s_memrealtime s[{60+2*k}:{61+2*k}]"); a("s_waitcnt lgkmcnt(0)")
def stamp_store(a, n):
    if STAMP:
        a(f"s_lshl_b32 s58, s2, 3"); a(f"s_add_u32 s58, s58, s14"); a(f"s_lshl_b32 s58, s58, 7")
        a(f"s_add_u32 s58, s58, {STAMP_OFF}")
        a(f"s_add_u32 s56, s8, s58"); a(f"s_addc_u32 s57, s9, 0")
        a("v_mov_b32 v254, 0")
        for k in range(n):
            a(f"v_mov_b32 v255, s{60+2*k}")
            a(f"global_store_dword v254, v255, s[56:57] offset:{4*k}")
        a("s_waitcnt vmcnt(0)")

DBGT = E("DBGT")
DSLOT = {1:0, 13:1, 3:2, 5:3, 7:4, 9:5, 11:6}
def dbgt(a, slot, neg=False):
    if DBGT and neg:
        i = DSLOT[slot]
        a(f"s_memrealtime s[{60+2*i}:{61+2*i}]")
        a("s_waitcnt lgkmcnt(0)")
        if slot == 11:
            a(f"s_and_b32 s92, s2, 0x7f")
            a("s_cmp_eq_u32 s92, 0")
            a("s_cbranch_scc0 L_dbg_skip")
            a("s_cmp_eq_u32 s14, 4")
            a("s_cbranch_scc0 L_dbg_skip")
            a("s_lshr_b32 s92, s2, 7")
            a("s_mul_i32 s92, s92, 28")
            a("v_mov_b32 v251, s92")
            for k in range(7):
                a(f"v_mov_b32 v250, s{60+2*k}")
                a(f"global_store_dword v251, v250, s[90:91] offset:{4+4*k}")
            a.label("L_dbg_skip")

def srd(a, d, plo, off, nrec):
    if off is None:
        a(f"s_mov_b32 s{d}, s{plo}"); a(f"s_mov_b32 s{d+1}, s{plo+1}")
    else:
        a(f"s_add_u32 s{d}, s{plo}, {off}"); a(f"s_addc_u32 s{d+1}, s{plo+1}, 0")
    a(f"s_mov_b32 s{d+2}, {nrec}"); a(f"s_mov_b32 s{d+3}, 0x20000")

def poll(a, name, voff, nlanes_mask_all=True):
    a(f"s_mov_b32 s47, 0")
    a.label(f"L_poll_{name}")
    a(f"buffer_load_dword v5, v{voff}, s[24:27], 0 offen sc1")
    a("s_waitcnt vmcnt(0)")
    a("v_cmp_ne_u32 vcc, s46, v5")
    a("s_add_u32 s47, s47, 1")
    a("s_cmp_eq_u64 vcc, 0")
    a(f"s_cbranch_scc1 L_poll_{name}_done")
    a(f"s_cmp_ge_u32 s47, {POLL_MAX}")
    a(f"s_cbranch_scc1 L_poll_{name}_done")
    a("s_sleep 1")
    a(f"s_branch L_poll_{name}")
    a.label(f"L_poll_{name}_done")

def gen():
    a = A()
    a.raw(f".globl {KNAME}\n.p2align 8\n.type {KNAME},@function\n{KNAME}:")
    a("s_cmp_ge_u32 s2, 256")
    a("s_cbranch_scc1 L_end")
    a("s_load_dwordx4 s[4:7], s[0:1], 0")
    a("s_load_dwordx2 s[8:9], s[0:1], 40")
    a("s_load_dwordx4 s[40:43], s[0:1], 16")
    a("s_load_dwordx2 s[44:45], s[0:1], 32")
    a("s_and_b32 s12, s2, 7")
    a("s_lshr_b32 s11, s2, 3")
    a("s_lshr_b32 s10, s12, 1")
    a("s_lshl_b32 s10, s10, 2")
    a("s_and_b32 s13, s11, 3")
    a("s_add_u32 s10, s10, s13")
    a("s_lshr_b32 s11, s11, 2")
    a("s_lshl_b32 s13, s13, 1")
    a("s_add_u32 s13, s13, s11")
    a("s_lshl_b32 s13, s13, 1")
    a("s_and_b32 s13, s13, %d" % E("ROTMASK", 0))
    a("s_and_b32 s12, s12, 1")
    a("s_lshl_b32 s12, s12, 3")
    a("s_add_u32 s11, s11, s12")
    a("v_lshrrev_b32 v1, 6, v0")
    a("v_and_b32 v2, 63, v0")
    a("v_lshlrev_b32 v3, 4, v2")
    a("v_readfirstlane_b32 s14, v1")
    a("s_waitcnt lgkmcnt(0)")
    stamp_rt(a, 0); stamp(a, 1)
    if DBGT:
        a("s_mov_b32 s90, s44"); a("s_mov_b32 s91, s45")
    dbgt(a, 1, True); dbgt(a, 2)
    srd(a, 24, 8, None, WS_USED)
    a("s_cmp_lt_u32 s14, 4")
    a("s_cbranch_scc1 L_g1_compute")
    a("s_sub_u32 s15, s14, 4")
    a("s_lshl_b32 s16, s11, 18")
    a("s_sub_u32 s17, 0x400000, s16")
    a("s_add_u32 s28, s4, s16"); a("s_addc_u32 s29, s5, 0"); a("s_mov_b32 s30, s17"); a("s_mov_b32 s31, 0x20000")
    a("s_lshl_b32 s16, s10, 7")
    a("s_sub_u32 s17, 0x600000, s16")
    a("s_add_u32 s32, s6, s16"); a("s_addc_u32 s33, s7, 0"); a("s_mov_b32 s34, s17"); a("s_mov_b32 s35, 0x20000")
    a("v_lshrrev_b32 v4, 3, v2")
    a("v_lshlrev_b32 v5, 11, v4")
    a("v_and_b32 v6, 7, v2")
    a("v_lshrrev_b32 v7, 4, v2")
    a("v_xor_b32 v8, v6, v7")
    a("v_lshlrev_b32 v8, 4, v8")
    a("v_add_u32 v5, v5, v8")
    a("s_lshl_b32 s16, s15, 16")
    a("v_add_u32 v10, s16, v5")
    a("v_xor_b32 v11, 64, v10")
    a("v_mul_u32_u24 v5, 6144, v4")
    a("v_and_b32 v7, 1, v7")
    a("v_lshlrev_b32 v7, 2, v7")
    a("v_xor_b32 v8, v6, v7")
    a("v_lshlrev_b32 v8, 4, v8")
    a("v_add_u32 v5, v5, v8")
    a("s_mul_i32 s16, s15, 98304")
    a("v_add_u32 v12, s16, v5")
    a("s_lshl_b32 s18, s15, 12")
    a("s_lshl_b32 s19, s15, 11")
    a("s_add_u32 s19, s19, 16384")
    a("s_mov_b32 s20, s13")
    a("s_mov_b32 s36, 0")
    def issue_stage():
        a("s_lshl_b32 s21, s20, 7")
        a("s_mul_i32 s22, s20, 393216")
        a("s_add_u32 s37, s36, s18")
        a("s_add_u32 s39, s36, s19")
        for i in range(4):
            a(f"s_add_u32 m0, s37, {i*1024}")
            a(f"s_add_u32 s38, s21, {i*16384}")
            a(f"buffer_load_dwordx4 v{10+(i&1)}, s[28:31], s38 offen lds")
        for t in range(3):
            for kb in range(2):
                a(f"s_add_u32 m0, s39, {t*8192+kb*1024}")
                a(f"s_add_u32 s38, s22, {t*2048+kb*49152}")
                a(f"buffer_load_dwordx4 v12, s[32:35], s38 offen lds")
        a("s_add_u32 s20, s20, 1")
        a("s_and_b32 s20, s20, 15")
        a(f"s_add_u32 s36, s36, {G1_SLOT}")
        a(f"s_cmp_eq_u32 s36, {G1_SLOT*G1_NSLOT}")
        a("s_cselect_b32 s36, 0, s36")
    issue_stage(); issue_stage()
    a("s_waitcnt vmcnt(10)")
    a("s_barrier")
    dbgt(a, 13, True); dbgt(a, 14)
    issue_stage(); issue_stage()
    a("s_mov_b32 s23, 0")
    a.label("L_g1_ldloop")
    a(f"s_waitcnt vmcnt({10*(G1_NSLOT-2)})")
    a("s_barrier")
    issue_stage()
    a("s_add_u32 s23, s23, 1")
    a(f"s_cmp_lt_u32 s23, {16-G1_NSLOT}")
    a("s_cbranch_scc1 L_g1_ldloop")
    for k in range(G1_NSLOT):
        a(f"s_waitcnt vmcnt({10*max(0, G1_NSLOT-2-k)})")
        a("s_barrier")
    a("s_branch L_g1_done")
    a.label("L_g1_compute")
    ACC = 128; SETS = [64, 84]; XA = 104; WA = 108
    a("s_cmp_eq_u32 s14, 0")
    a("s_cbranch_scc0 L_nocas")
    a("s_memrealtime s[16:17]")
    a("s_waitcnt lgkmcnt(0)")
    a("s_or_b32 s16, s16, 1")
    a("v_mov_b32 v240, s16")
    a("v_mov_b32 v241, 0")
    a("v_mov_b32 v243, 0")
    a("s_mov_b64 exec, 1")
    a("global_atomic_cmpswap v242, v243, v[240:241], s[44:45] sc0 sc1")
    a("s_mov_b64 exec, -1")
    a.label("L_nocas")
    a("s_lshl_b32 s16, s2, 13")
    a("s_lshl_b32 s17, s14, 11")
    a("s_add_u32 s16, s16, s17")
    a("v_add_u32 v4, s16, v3")
    a("global_load_dwordx4 v[224:227], v4, s[40:41]")
    a("global_load_dwordx4 v[228:231], v4, s[40:41] offset:1024")
    if E("PREF", 1):
        a("s_lshl_b32 s16, s2, 14")
        a("s_lshl_b32 s17, s14, 12")
        a("s_add_u32 s16, s16, s17")
        a("v_add_u32 v4, s16, v3")
        for q in range(4): a(f"global_load_dwordx4 v[{16+4*q}:{19+4*q}], v4, s[4:5] offset:{q*1024}")
        a("s_mul_i32 s16, s2, 24576")
        a("s_mul_i32 s17, s14, 6144")
        a("s_add_u32 s16, s16, s17")
        a("v_add_u32 v4, s16, v3")
        for q in range(4): a(f"global_load_dwordx4 v[{32+4*q}:{35+4*q}], v4, s[6:7] offset:{q*1024}")
        a("v_add_u32 v4, 4096, v4")
        for q in range(2): a(f"global_load_dwordx4 v[{48+4*q}:{51+4*q}], v4, s[6:7] offset:{q*1024}")
    a("s_getpc_b64 s[16:17]")
    a.label("L_pc")
    a("s_sub_u32 s16, s16, L_pc-" + KNAME)
    a("s_subb_u32 s17, s17, 0")
    a("v_lshlrev_b32 v4, 7, v2")
    a("s_lshl_b32 s18, s14, 13")
    a("v_add_u32 v4, s18, v4")
    a("v_cmp_gt_u32 vcc, L_end-" + KNAME + ", v4")
    a("s_and_saveexec_b64 s[18:19], vcc")
    a("s_cbranch_execz L_nocode")
    a("global_load_dword v232, v4, s[16:17]")
    a.label("L_nocode")
    a("s_mov_b64 exec, s[18:19]")
    a("s_lshr_b32 s15, s14, 1")
    a("s_and_b32 s16, s14, 1")
    a("v_and_b32 v4, 31, v2")
    a("s_lshl_b32 s17, s15, 6")
    a("v_add_u32 v4, s17, v4")
    a("v_lshlrev_b32 v4, 7, v4")
    a("v_lshrrev_b32 v5, 1, v2")
    a("v_and_b32 v5, 7, v5")
    a("v_lshrrev_b32 v6, 5, v2")
    a("v_xor_b32 v5, v5, v6")
    for ks in range(4):
        a(f"v_xor_b32 v7, {2*ks}, v5")
        a(f"v_lshlrev_b32 v7, 4, v7")
        a(f"v_add_u32 v{XA+ks}, v4, v7")
    a("v_and_b32 v7, 15, v2")
    a("v_lshrrev_b32 v7, 2, v7")
    a("v_lshlrev_b32 v8, 3, v6")
    a("v_add_u32 v8, v8, v7")
    a("v_lshlrev_b32 v8, 7, v8")
    a("v_lshrrev_b32 v9, 4, v2")
    a("v_and_b32 v9, 1, v9")
    a("v_lshlrev_b32 v9, 1, v9")
    a("v_and_b32 v10, 3, v2")
    a("v_lshrrev_b32 v11, 1, v10")
    a("v_add_u32 v9, v9, v11")
    a("s_lshl_b32 s17, s16, 2")
    a("v_add_u32 v9, s17, v9")
    a("v_lshrrev_b32 v11, 1, v7")
    a("v_lshlrev_b32 v11, 2, v11")
    a("v_xor_b32 v9, v9, v11")
    a("v_lshlrev_b32 v9, 4, v9")
    a("v_add_u32 v8, v8, v9")
    a("v_and_b32 v10, 1, v10")
    a("v_lshlrev_b32 v10, 3, v10")
    a("v_add_u32 v8, v8, v10")
    a(f"v_add_u32 v{WA}, 16384, v8")
    for r in range(96): a(f"v_mov_b32 v{ACC+r}, 0")
    a("s_mov_b32 s18, 0")
    a(f"s_mov_b32 s21, {-(G1_NSLOT-1)*G1_SLOT & 0xffffffff}")
    a(f"s_mov_b32 s22, {G1_SLOT}")
    a("s_barrier")
    stamp(a, 2)
    lg = Lgkm(a)
    def reads(setb, ks, tagp):
        x0, x1, w0, w1, w2 = setb, setb+4, setb+8, setb+12, setb+16
        return [(tagp+"x0", f"ds_read_b128 {vr(x0,4)}, v{XA+ks}"),
                (tagp+"w0", f"ds_read_b64_tr_b16 {vr(w0,2)}, v{WA} offset:{ks*2048}"),
                (tagp+"w0", f"ds_read_b64_tr_b16 {vr(w0+2,2)}, v{WA} offset:{ks*2048+512}"),
                (tagp+"x1", f"ds_read_b128 {vr(x1,4)}, v{XA+ks} offset:4096"),
                (tagp+"w1", f"ds_read_b64_tr_b16 {vr(w1,2)}, v{WA} offset:{8192+ks*2048}"),
                (tagp+"w1", f"ds_read_b64_tr_b16 {vr(w1+2,2)}, v{WA} offset:{8192+ks*2048+512}"),
                (tagp+"w2", f"ds_read_b64_tr_b16 {vr(w2,2)}, v{WA} offset:{16384+ks*2048}"),
                (tagp+"w2", f"ds_read_b64_tr_b16 {vr(w2+2,2)}, v{WA} offset:{16384+ks*2048+512}")]
    def mfma(setb, i, t):
        x = setb + 4*i; w = setb + 8 + 4*t; acc = ACC + 16*(i*3+t)
        if t < 2: return f"v_mfma_f32_32x32x16_bf16 {vr(acc,16)}, {vr(w,4)}, {vr(x,4)}, {vr(acc,16)}"
        return f"v_mfma_f32_32x32x16_bf16 {vr(acc,16)}, {vr(x,4)}, {vr(w,4)}, {vr(acc,16)}"
    for tag, ins in reads(SETS[0], 0, "A"):
        a(ins); lg.issue(tag)
    a.raw(".p2align 6")
    a.label("L_g1_loop")
    order = [(0,1),(0,2),(1,1),(1,2),(0,0),(1,0)]
    needs = [["x0","w1"],["w2"],["x1"],[],["w0"],[]]
    def reads2(setb, ks, tagp):
        R = reads(setb, ks, tagp)
        return [R[0], R[4], R[5], R[6], R[7], R[3], R[1], R[2]]
    a.l = a.l[:-10]; lg.q = []
    for tag, ins in reads2(SETS[0], 0, "A"):
        a(ins); lg.issue(tag)
    a.raw(".p2align 6")
    a.label("L_g1_loop")
    for ks in range(4):
        cur = SETS[ks & 1]; nxt = SETS[(ks+1) & 1]
        cp = "AB"[ks & 1]; np_ = "AB"[(ks+1) & 1]
        if ks == 3:
            lg.all()
            a("s_add_u32 s18, s18, 1")
            a("s_and_b32 s19, s18, %d" % (G1_NSLOT-1))
            a("s_cmp_eq_u32 s19, 0")
            a("s_cselect_b32 s20, s21, s22")
            for k in range(4): a(f"v_add_u32 v{XA+k}, s20, v{XA+k}")
            a(f"v_add_u32 v{WA}, s20, v{WA}")
            a("s_barrier")
        R = reads2(nxt, (ks+1) & 3, np_)
        slots = [[], R[0:2], R[2:4], R[4:6], R[6:8], []]
        for k in range(6):
            for tag, ins in slots[k]:
                a(ins); lg.issue(tag)
            lg.need([cp+t for t in needs[k]])
            a(mfma(cur, *order[k]))
    a("s_cmp_lt_u32 s18, 16")
    a("s_cbranch_scc1 L_g1_loop")
    a("s_waitcnt lgkmcnt(0) vmcnt(0)")
    stamp(a, 3)
    a("s_lshl_b32 s17, s10, 1")
    a("s_add_u32 s17, s17, s16")
    a("s_lshl_b32 s19, s11, 2")
    a("s_lshl_b32 s20, s15, 1")
    a("s_add_u32 s19, s19, s20")
    a("s_lshl_b32 s20, s17, 6")
    a("s_add_u32 s20, s20, s19")
    a("s_lshl_b32 s22, s20, 12")
    a("s_lshl_b32 s20, s15, 14")
    a("s_lshl_b32 s21, s16, 12")
    a("s_add_u32 s20, s20, s21")
    a("v_add_u32 v4, s20, v3")
    a("s_lshl_b32 s20, s16, 2")
    a("s_lshl_b32 s21, s15, 1")
    a("s_add_u32 s20, s20, s21")
    a("s_lshl_b32 s20, s20, 11")
    a(f"s_add_u32 s20, s20, {QX_OFF}")
    a("v_add_u32 v5, s20, v3")
    a(f"s_mov_b32 s23, {f32bits(QSCALE)}")
    a("s_nop 7")
    T = 64
    n = 0
    for i in range(2):
        for t in (1, 2):
            acc = ACC + 16*(i*3+t); base = T + 8*(n % 4); n += 1
            for r in range(8): a(f"v_cvt_pk_bf16_f32 v{base+r}, v{acc+2*r}, v{acc+2*r+1}")
            o = i*4096 + (t-1)*2048
            a(f"s_add_u32 s28, s22, {o}")
            a(f"buffer_store_dwordx4 {vr(base,4)}, v3, s[24:27], s28 offen sc1")
            a(f"buffer_store_dwordx4 {vr(base+4,4)}, v3, s[24:27], s28 offen offset:1024 sc1")
            a(f"ds_write_b128 v4, {vr(base,4)} offset:{i*8192+(t-1)*2048}")
            a(f"ds_write_b128 v4, {vr(base+4,4)} offset:{i*8192+(t-1)*2048+1024}")
    for i in range(2):
        acc = ACC + 16*(i*3); base = 96 + 8*i
        for r in range(16): a(f"v_mul_f32 v{acc+r}, s23, v{acc+r}")
        for r in range(8): a(f"v_cvt_pk_bf16_f32 v{base+r}, v{acc+2*r}, v{acc+2*r+1}")
        a(f"ds_write_b128 v5, {vr(base,4)} offset:{i*2048}")
        a(f"ds_write_b128 v5, {vr(base+4,4)} offset:{i*2048+1024}")
    a("s_cmp_eq_u32 s14, 0")
    a("s_cbranch_scc0 L_noep")
    a("v_cmp_eq_u32 vcc, 0, v242")
    a("s_nop 1")
    a("v_cndmask_b32 v242, v242, v240, vcc")
    a(f"v_mov_b32 v6, {EP_OFF}")
    a("s_mov_b64 exec, 1")
    a("ds_write_b32 v6, v242")
    a("v_mov_b32 v7, 0")
    a(f"ds_write_b64 v6, v[7:8] offset:64" if False else f"ds_write_b32 v6, v7 offset:64")
    a(f"ds_write_b32 v6, v7 offset:68")
    a("s_mov_b64 exec, -1")
    a.label("L_noep")
    a("s_waitcnt lgkmcnt(0)")
    a.label("L_g1_done")
    a("s_barrier")
    dbgt(a, 3, True); dbgt(a, 4)
    stamp(a, 4)
    Q, K, V = 8, 16, 24
    S = [32, 48]; P = [64, 72]; O = 80; L = 96; ONES = 100; IDX = 104; VC = 105; VN = 106; M = 107; VB = 108; VD = 109
    a("s_lshr_b32 s15, s14, 2")
    a("s_and_b32 s16, s14, 3")
    a("s_lshl_b32 s17, s10, 1")
    a("s_add_u32 s17, s17, s15")
    a("s_lshl_b32 s18, s11, 2")
    a("s_add_u32 s18, s18, s16")
    a("s_lshl_b32 s20, s14, 11")
    a(f"s_add_u32 s20, s20, {QX_OFF}")
    a("v_add_u32 v4, s20, v3")
    a(f"ds_read_b128 {vr(Q,4)}, v4")
    a(f"ds_read_b128 {vr(Q+4,4)}, v4 offset:1024")
    a(f"v_mov_b32 v6, {EP_OFF}")
    a("ds_read_b32 v6, v6")
    a("s_lshl_b32 s22, s15, 12")
    a(f"v_add_u32 v{VB}, s22, v3")
    a(f"v_mov_b32 v{VC}, v{VB}")
    a(f"v_add_u32 v{VN}, {AT_SLOT}, v{VB}")
    a(f"ds_read_b128 {vr(K,4)}, v{VC}")
    a(f"ds_read_b128 {vr(K+4,4)}, v{VC} offset:1024")
    for r in range(16): a(f"v_mov_b32 v{O+r}, 0")
    for r in range(4): a(f"v_mov_b32 v{L+r}, 0")
    for r in range(8): a(f"v_mov_b32 v{P[1]+r}, 0")
    a("v_and_b32 v4, 6, v2")
    a("v_mov_b32 v5, 0x3f803f80")
    a("v_cmp_eq_u32 vcc, 0, v4")
    a("s_nop 1")
    a(f"v_cndmask_b32 v{ONES}, 0, v5, vcc")
    a(f"v_cndmask_b32 v{ONES+1}, 0, v5, vcc")
    a("v_cmp_eq_u32 vcc, 4, v4")
    a("s_nop 1")
    a(f"v_cndmask_b32 v{ONES+2}, 0, v5, vcc")
    a(f"v_cndmask_b32 v{ONES+3}, 0, v5, vcc")
    a("v_and_b32 v4, 1, v2")
    a("v_mov_b32 v5, 0x44444444")
    a("v_mov_b32 v7, 0xeeeeeeee")
    a("v_cmp_eq_u32 vcc, 0, v4")
    a("s_nop 1")
    a(f"v_cndmask_b32 v{IDX}, v7, v5, vcc")
    VONE = 110; VCA = 111; VCR = 112; VCV = 113
    a("s_lshl_b32 s20, s17, 18")
    a("s_lshl_b32 s21, s16, 10")
    a("s_add_u32 s20, s20, s21")
    a("s_lshl_b32 s21, s14, 10")
    a("s_mov_b32 s51, 4096"); a("s_mov_b32 s52, 8192"); a("s_mov_b32 s53, 12288")
    for q in range(4): a(f"s_mov_b32 s{28+q}, s{24+q}")
    a(f"v_mov_b32 v{VD}, v3")
    a(f"v_mov_b32 v{VONE}, 1")
    a("s_lshl_b32 s36, s15, 2")
    a(f"s_add_u32 s36, s36, {CNT_OFF}")
    a(f"v_mov_b32 v{VCR}, s36")
    a("s_lshl_b32 s37, s14, 8")
    a(f"s_add_u32 s37, s37, {SCR_OFF}")
    a("v_lshlrev_b32 v4, 2, v2")
    a(f"v_add_u32 v{VCA}, s37, v4")
    a("v_cmp_eq_u32 vcc, 0, v2")
    a("s_nop 1")
    a(f"v_cndmask_b32 v{VCA}, v{VCA}, v{VCR}, vcc")
    a("s_waitcnt lgkmcnt(0)")
    a("v_readfirstlane_b32 s46, v6")
    a(f"v_mfma_f32_32x32x16_bf16 {vr(S[0],16)}, {vr(K,4)}, {vr(Q,4)}, 0")
    a(f"v_mfma_f32_32x32x16_bf16 {vr(S[0],16)}, {vr(K+4,4)}, {vr(Q+4,4)}, {vr(S[0],16)}")
    lg = Lgkm(a)
    a(f"ds_read_b128 {vr(K,4)}, v{VC} offset:8192"); lg.issue("K")
    a(f"ds_read_b128 {vr(K+4,4)}, v{VC} offset:{8192+1024}"); lg.issue("K")
    a(f"ds_read_b128 {vr(V,4)}, v{VC} offset:2048"); lg.issue("V")
    a(f"ds_read_b128 {vr(V+4,4)}, v{VC} offset:3072"); lg.issue("V")
    a("s_nop 7")
    PRIO = E("PRIO", 1)
    def at_step(i, own):
        X = S[i & 1]; Y = S[(i+1) & 1]; PX = P[i & 1]; PY = P[(i+1) & 1]
        ex = lambda r: a(f"v_exp_f32 v{X+r}, v{X+r}")
        cv = lambda r: a(f"v_cvt_pk_bf16_f32 v{PX+r}, v{X+2*r}, v{X+2*r+1}")
        def kread():
            t = i + 2
            if own and t >= 4: return
            b = VC if t < 4 else VN
            off = (t % 4)*8192
            a(f"ds_read_b128 {vr(K,4)}, v{b} offset:{off}"); lg.issue("K")
            a(f"ds_read_b128 {vr(K+4,4)}, v{b} offset:{off+1024}"); lg.issue("K")
        def vread():
            off = i*8192 + 2048
            a(f"ds_read_b128 {vr(V,4)}, v{VC} offset:{off}"); lg.issue("V")
            a(f"ds_read_b128 {vr(V+4,4)}, v{VC} offset:{off+1024}"); lg.issue("V")
        def dma1(q):
            if own or E("DMAMODE", 1) == 0: return
            a(f"s_add_u32 m0, s38, {q*8192}")
            if q: a(f"s_add_u32 s39, s37, s{50+q}")
            else: a("s_mov_b32 s39, s37")
            a(f"buffer_load_dwordx4 v{VD}, s[28:31], s39 offen sc1 lds")
        qk0 = f"v_mfma_f32_32x32x16_bf16 {vr(Y,16)}, {vr(K,4)}, {vr(Q,4)}, 0"
        qk1 = f"v_mfma_f32_32x32x16_bf16 {vr(Y,16)}, {vr(K+4,4)}, {vr(Q+4,4)}, {vr(Y,16)}"
        pv0 = f"v_mfma_f32_32x32x16_bf16 {vr(O,16)}, {vr(V,4)}, {vr(PY,4)}, {vr(O,16)}"
        pv1 = f"v_mfma_f32_32x32x16_bf16 {vr(O,16)}, {vr(V+4,4)}, {vr(PY+4,4)}, {vr(O,16)}"
        smf = f"v_smfmac_f32_16x16x64_bf16 {vr(L,4)}, {vr(ONES,4)}, {vr(PY,8)}, v{IDX}"
        bk = []
        if i == 3 and not own:
            bk = ["s_add_u32 s23, s23, 1", "s_add_u32 s48, s48, 32768", "s_and_b32 s48, s48, 0x18000",
                  "s_add_u32 s49, s49, 32768", "s_and_b32 s49, s49, 0x18000", "s_add_u32 s38, s49, s21",
                  "s_add_u32 s55, s55, s56", "s_and_b32 s55, s55, s57", "s_add_u32 s37, s20, s55", "s_add_u32 s47, s47, 4"]
        def fill(n):
            for _ in range(n):
                if bk: a(bk.pop(0))
        if PRIO: a(f"s_setprio {3-i}")
        if own and i == 3:
            has_qk = False
        else:
            has_qk = True
        if own and i == E("FLAGSTEP", 2):
            a("s_cmp_lt_u32 s14, 4")
            a("s_cbranch_scc1 L_flag_out")
            a.label("L_flag_back")
        if has_qk:
            lg.need(["K"]); a(qk0)
        ex(0); ex(1); ex(2); ex(3)
        if has_qk: a(qk1)
        if i == 2 and not own:
            lg.need(["C"])
            a(f"v_readfirstlane_b32 s36, v{VCV}")
            ex(4)
            a("s_cmp_ge_u32 s36, s47")
            a("s_cbranch_scc0 L_cnt_spin")
            a.label("L_cnt_back")
            kread(); ex(5); cv(0); ex(6); cv(1)
        else:
            kread(); ex(4); ex(5); cv(0); ex(6); cv(1)
        lg.need(["V"])
        if i == 0 and not own:
            a("s_waitcnt vmcnt(4)")
            a(f"ds_add_u32 v{VCA}, v{VONE}"); lg.issue("A")
        a(pv0); ex(7); ex(8); cv(2)
        if i >= 2: dma1(2*(i-2))
        ex(9); cv(3)
        a(pv1)
        if i == 1 and not own:
            a(f"ds_read_b32 v{VCV}, v{VCR}"); lg.issue("C")
        if i >= 2: dma1(2*(i-2)+1)
        ex(10); fill(2); ex(11); fill(2); cv(4); fill(1); ex(12); fill(2); cv(5)
        a(smf); vread(); fill(1); ex(13); fill(2); ex(14); cv(6); ex(15)
        if i == 3:
            a(f"v_mov_b32 v{VC}, v{VN}")
            cv(7)
            if not own: a(f"v_add_u32 v{VN}, s48, v{VB}")
        else:
            a("s_nop 0")
            cv(7)
        assert not bk
    for i in range(4): at_step(i, True)
    stamp(a, 5)
    a("s_cmp_eq_u32 s14, 7")
    a("s_cbranch_scc0 L_at_nopoll")
    a("s_lshl_b32 s36, s10, 8")
    a(f"s_add_u32 s36, s36, {FLG_OFF}")
    a("v_lshlrev_b32 v4, 2, v2")
    a("v_add_u32 v4, s36, v4")
    poll(a, "f", 4)
    a.label("L_at_nopoll")
    a("s_barrier")
    stamp(a, 6)
    def kvstage(st):
        a(f"s_add_u32 s36, s11, {st}")
        a("s_and_b32 s36, s36, 15")
        a("s_lshl_b32 s36, s36, 14")
        a("s_add_u32 s36, s36, s20")
        for kk in range(4):
            a(f"s_add_u32 m0, s21, {st*AT_SLOT + kk*8192}")
            a(f"s_add_u32 s39, s36, {kk*4096}")
            a(f"buffer_load_dwordx4 v3, s[24:27], s39 offen sc1 lds")
    kvstage(1); kvstage(2)
    a("s_mov_b32 s23, 1")
    a(f"s_mov_b32 s48, {2*AT_SLOT}")
    a(f"v_add_u32 v{VN}, s48, v{VB}")
    a("s_mov_b32 s49, 0")
    a("s_mov_b32 s38, s21")
    a("s_add_u32 s55, s11, 4")
    a("s_and_b32 s55, s55, 15")
    a("s_lshl_b32 s55, s55, 14")
    a("s_mov_b32 s56, 16384"); a("s_mov_b32 s57, 0x3c000")
    a("s_add_u32 s37, s20, s55")
    a("s_mov_b32 s47, 4")
    a("s_mov_b32 s59, 13")
    a("s_waitcnt vmcnt(4)")
    a("s_barrier")
    kvstage(3)
    stamp(a, 7)
    a(f"ds_read_b128 {vr(K,4)}, v{VC}")
    a(f"ds_read_b128 {vr(K+4,4)}, v{VC} offset:1024")
    a("s_waitcnt lgkmcnt(0)")
    a(f"v_mfma_f32_32x32x16_bf16 {vr(S[0],16)}, {vr(K,4)}, {vr(Q,4)}, 0")
    a(f"v_mfma_f32_32x32x16_bf16 {vr(S[0],16)}, {vr(K+4,4)}, {vr(Q+4,4)}, {vr(S[0],16)}")
    a(f"ds_read_b128 {vr(K,4)}, v{VC} offset:8192")
    a(f"ds_read_b128 {vr(K+4,4)}, v{VC} offset:{8192+1024}")
    a("s_waitcnt lgkmcnt(0)")
    a("s_nop 7")
    stamp(a, 14)
    dbgt(a, 5, True); dbgt(a, 6)
    lg.q = ["K", "K", "V", "V"]
    a.raw(".p2align 6")
    a.label("L_at_loop")
    for i in range(4): at_step(i, False)
    assert lg.q == ["K", "K", "V", "V"], lg.q
    a("s_cmp_eq_u32 s23, s59")
    a("s_cbranch_scc0 L_at_loop")
    a("s_cmp_eq_u32 s23, 16")
    a("s_cbranch_scc1 L_at_tail")
    stamp(a, 15)
    a("s_mov_b32 s59, 16")
    a("s_mov_b32 s51, 131072"); a("s_mov_b32 s52, 262144"); a("s_mov_b32 s53, 393216")
    a("s_lshl_b32 s39, s11, 7")
    a("s_sub_u32 s36, 0x200000, s39")
    a("s_add_u32 s28, s40, s39"); a("s_addc_u32 s29, s41, 0"); a("s_mov_b32 s30, s36"); a("s_mov_b32 s31, 0x20000")
    a("s_lshl_b32 s20, s14, 14")
    a("s_mov_b32 s55, 0"); a("s_mov_b32 s56, 524288"); a("s_mov_b32 s57, -1")
    a("s_mov_b32 s37, s20")
    a("v_lshrrev_b32 v4, 3, v2")
    a("v_lshlrev_b32 v4, 11, v4")
    a("v_and_b32 v5, 7, v2")
    a("v_lshrrev_b32 v6, 4, v2")
    a("v_and_b32 v6, 1, v6")
    a("v_lshlrev_b32 v6, 2, v6")
    a("v_xor_b32 v5, v5, v6")
    a("v_lshlrev_b32 v5, 4, v5")
    a(f"v_add_u32 v{VD}, v4, v5")
    a("s_branch L_at_loop")
    a.label("L_cnt_spin")
    a("s_mov_b32 s39, 0")
    a.label("L_cnt_spin2")
    a(f"ds_read_b32 v{VCV}, v{VCR}")
    a("s_waitcnt lgkmcnt(0)")
    a(f"v_readfirstlane_b32 s36, v{VCV}")
    a("s_add_u32 s39, s39, 1")
    a(f"s_cmp_ge_u32 s39, {POLL_MAX*16}")
    a("s_cbranch_scc1 L_cnt_back")
    a("s_cmp_ge_u32 s36, s47")
    a("s_cbranch_scc0 L_cnt_spin2")
    a("s_branch L_cnt_back")
    a.label("L_at_tail")
    a("s_setprio 0")
    PL = P[1]
    a("s_waitcnt lgkmcnt(0)")
    a(f"v_mfma_f32_32x32x16_bf16 {vr(O,16)}, {vr(V,4)}, {vr(PL,4)}, {vr(O,16)}")
    a(f"v_mfma_f32_32x32x16_bf16 {vr(O,16)}, {vr(V+4,4)}, {vr(PL+4,4)}, {vr(O,16)}")
    a(f"v_smfmac_f32_16x16x64_bf16 {vr(L,4)}, {vr(ONES,4)}, {vr(PL,8)}, v{IDX}")
    stamp(a, 8)
    dbgt(a, 7, True); dbgt(a, 8)
    a("s_nop 8")
    a("s_nop 7")
    a(f"v_add_f32 v{L}, v{L}, v{L+1}")
    a(f"v_mov_b32 v4, {f32bits(2.0**-40)}")
    a(f"v_mov_b32 v5, {f32bits(2.0**40)}")
    a(f"v_cmp_nge_f32 vcc, v{L}, v4")
    a(f"v_cmp_nle_f32 s[44:45], v{L}, v5")
    a("s_or_b64 s[44:45], s[44:45], vcc")
    a(f"v_mov_b32 v5, {f32bits(2.0**100)}")
    for r in range(16):
        a(f"v_cmp_nlt_f32 vcc, abs(v{O+r}), v5")
        a("s_or_b64 s[44:45], s[44:45], vcc")
    a("s_cmp_lg_u64 s[44:45], 0")
    a("s_cbranch_scc1 L_at_slow")
    a.label("L_at_fin")
    a(f"v_rcp_f32 v4, v{L}")
    a("s_nop 0")
    for r in range(16): a(f"v_mul_f32 v{O+r}, v{O+r}, v4")
    for r in range(8): a(f"v_cvt_pk_bf16_f32 v{P[0]+r}, v{O+2*r}, v{O+2*r+1}")
    a("s_lshl_b32 s19, s18, 6")
    a("s_lshl_b32 s36, s17, 1")
    a("s_add_u32 s19, s19, s36")
    a("s_lshl_b32 s19, s19, 10")
    a(f"s_add_u32 s19, s19, {OF_OFF}")
    a(f"buffer_store_dwordx4 {vr(P[0],4)}, v3, s[24:27], s19 offen sc1")
    a(f"buffer_store_dwordx4 {vr(P[0]+4,4)}, v3, s[24:27], s19 offen offset:1024 sc1")
    srd(a, 32, 42, None, 0x400000)
    a("s_barrier")
    for q in range(4):
        a(f"s_add_u32 m0, s21, {3*AT_SLOT + q*8192}")
        a(f"s_add_u32 s39, s37, s{50+q}" if q else "s_mov_b32 s39, s37")
        a(f"buffer_load_dwordx4 v{VD}, s[28:31], s39 offen lds")
    a("s_waitcnt vmcnt(4)")
    a("s_lshl_b32 s36, s11, 9")
    a("s_lshl_b32 s37, s16, 7")
    a("s_add_u32 s36, s36, s37")
    a("s_lshl_b32 s37, s10, 3")
    a("s_add_u32 s36, s36, s37")
    a("s_lshl_b32 s37, s15, 2")
    a("s_add_u32 s36, s36, s37")
    a(f"s_add_u32 s36, s36, {FLG_OFF+8192}")
    a("v_mov_b32 v5, s36")
    a("v_mov_b32 v6, s46")
    a("s_mov_b64 exec, 1")
    a("buffer_store_dword v6, v5, s[24:27], 0 offen sc1")
    a("s_mov_b64 exec, -1")
    stamp(a, 9)
    a("v_lshrrev_b32 v5, 5, v2")
    a("v_and_b32 v6, 15, v2")
    a("v_lshrrev_b32 v6, 2, v6")
    a("v_lshlrev_b32 v7, 2, v5")
    a("v_add_u32 v7, v7, v6")
    a("v_lshlrev_b32 v7, 7, v7")
    a("v_lshrrev_b32 v8, 4, v2")
    a("v_and_b32 v8, 1, v8")
    a("v_lshlrev_b32 v8, 1, v8")
    a("v_and_b32 v9, 3, v2")
    a("v_lshrrev_b32 v10, 1, v9")
    a("v_add_u32 v8, v8, v10")
    a("v_lshrrev_b32 v10, 1, v6")
    a("v_lshlrev_b32 v10, 2, v10")
    a("v_xor_b32 v8, v8, v10")
    a("v_lshlrev_b32 v8, 4, v8")
    a("v_add_u32 v7, v7, v8")
    a("v_and_b32 v9, 1, v9")
    a("v_lshlrev_b32 v9, 3, v9")
    a("v_add_u32 v7, v7, v9")
    a("s_lshl_b32 s36, s15, 16")
    a(f"s_add_u32 s36, s36, {WO_LDS}")
    a("v_add_u32 v12, s36, v7")
    a("v_xor_b32 v13, 64, v12")
    ACC = 16
    for r in range(32): a(f"v_mov_b32 v{ACC+r}, 0")
    a("s_lshl_b32 s36, s10, 9")
    a("s_lshl_b32 s37, s16, 7")
    a("s_add_u32 s36, s36, s37")
    a("s_lshl_b32 s37, s15, 6")
    a("s_add_u32 s36, s36, s37")
    a(f"s_add_u32 s36, s36, {FLG_OFF+8192}")
    a("v_and_b32 v4, 15, v2")
    a("v_lshlrev_b32 v4, 2, v4")
    a("v_add_u32 v4, s36, v4")
    poll(a, "g", 4)
    stamp(a, 10)
    dbgt(a, 9, True); dbgt(a, 10)
    OFR = 64
    a("s_lshl_b32 s36, s10, 2")
    a("s_add_u32 s36, s36, s16")
    a("s_lshl_b32 s36, s36, 6")
    a("s_lshl_b32 s37, s15, 5")
    a("s_add_u32 s36, s36, s37")
    a("s_lshl_b32 s36, s36, 10")
    a(f"s_add_u32 s36, s36, {OF_OFF}")
    for k in range(32):
        if k % 4 == 0 and k: a("s_add_u32 s36, s36, 4096")
        a(f"buffer_load_dwordx4 {vr(OFR+4*k,4)}, v3, s[24:27], s36 offen offset:{(k%4)*1024} sc1")
    a("s_barrier")
    WF = [48, 56]
    lg = Lgkm(a)
    def wreads(setb, kk):
        return [f"ds_read_b64_tr_b16 {vr(setb+4*ct+2*jj,2)}, v{12+ct} offset:{kk*2048+jj*1024}" for ct in range(2) for jj in range(2)]
    for ins in wreads(WF[0], 0): a(ins); lg.issue("w0")
    for kk in range(32):
        cur = WF[kk & 1]; nxt = WF[(kk+1) & 1]
        if kk < 31:
            for ins in wreads(nxt, kk+1): a(ins); lg.issue(f"w{(kk+1)&1}")
        lg.need([f"w{kk&1}"])
        if kk % 2 == 0: a(f"s_waitcnt vmcnt({30-kk})")
        for ct in range(2):
            a(f"v_mfma_f32_32x32x16_bf16 {vr(ACC+16*ct,16)}, {vr(cur+4*ct,4)}, {vr(OFR+4*kk,4)}, {vr(ACC+16*ct,16)}")
    stamp(a, 11)
    a("s_lshl_b32 s36, s14, 12")
    a(f"s_add_u32 s36, s36, {XCH_OFF}")
    a("v_add_u32 v5, s36, v3")
    a("s_xor_b32 s36, s14, 4")
    a("s_lshl_b32 s36, s36, 12")
    a(f"s_add_u32 s36, s36, {XCH_OFF}")
    a("v_add_u32 v6, s36, v3")
    a("s_nop 9")
    a("s_cmp_eq_u32 s15, 0")
    a("s_cbranch_scc1 L_op_kh0")
    for q in range(4): a(f"ds_write_b128 v5, {vr(ACC+4*q,4)} offset:{q*1024}")
    for r in range(16): a(f"v_mov_b32 v{48+r}, v{ACC+16+r}")
    a("s_branch L_op_x")
    a.label("L_op_kh0")
    for q in range(4): a(f"ds_write_b128 v5, {vr(ACC+16+4*q,4)} offset:{q*1024}")
    for r in range(16): a(f"v_mov_b32 v{48+r}, v{ACC+r}")
    a.label("L_op_x")
    a("s_waitcnt lgkmcnt(0)")
    a("s_barrier")
    for q in range(4): a(f"ds_read_b128 {vr(64+4*q,4)}, v6 offset:{q*1024}")
    a("s_waitcnt lgkmcnt(0)")
    for r in range(16): a(f"v_add_f32 v{48+r}, v{48+r}, v{64+r}")
    for r in range(8): a(f"v_cvt_pk_bf16_f32 v{64+r}, v{48+2*r}, v{48+2*r+1}")
    a("v_and_b32 v5, 31, v2")
    a("v_lshlrev_b32 v5, 11, v5")
    a("v_lshrrev_b32 v6, 5, v2")
    a("v_lshlrev_b32 v6, 4, v6")
    a("v_add_u32 v5, v5, v6")
    for g in (0, 2):
        a(f"v_permlane32_swap_b32 v{64+2*g}, v{64+2*g+2}")
        a(f"v_permlane32_swap_b32 v{64+2*g+1}, v{64+2*g+3}")
    a("s_lshl_b32 s36, s10, 2")
    a("s_add_u32 s36, s36, s16")
    a("s_lshl_b32 s36, s36, 16")
    a("s_lshl_b32 s37, s11, 7")
    a("s_add_u32 s36, s36, s37")
    a("s_lshl_b32 s37, s15, 6")
    a("s_add_u32 s36, s36, s37")
    a(f"buffer_store_dwordx4 {vr(64,4)}, v5, s[32:35], s36 offen")
    a(f"buffer_store_dwordx4 {vr(68,4)}, v5, s[32:35], s36 offen offset:32")
    if STAMP:
        a("s_waitcnt vmcnt(0)")
        stamp(a, 12); stamp_rt(a, 13); stamp_store(a, 16)
    if DBGT:
        a("s_waitcnt vmcnt(0)")
        dbgt(a, 11, True); dbgt(a, 12)
    a("s_endpgm")
    a.label("L_flag_out")
    a("s_waitcnt vmcnt(0)")
    a("s_lshl_b32 s36, s10, 8")
    a("s_lshl_b32 s39, s11, 4")
    a("s_add_u32 s36, s36, s39")
    a("s_lshl_b32 s39, s14, 2")
    a("s_add_u32 s36, s36, s39")
    a(f"s_add_u32 s36, s36, {FLG_OFF}")
    a("v_mov_b32 v4, s36")
    a("v_mov_b32 v5, s46")
    a("s_mov_b64 exec, 1")
    a("buffer_store_dword v5, v4, s[24:27], 0 offen sc1")
    a("s_mov_b64 exec, -1")
    a("s_branch L_flag_back")
    a.label("L_at_slow")
    X = S[0]; PX = P[0]
    a(f"v_mov_b32 v{M}, 0xff800000")
    a(f"v_mov_b32 v{L}, 0")
    for r in range(16): a(f"v_mov_b32 v{O+r}, 0")
    a("s_lshl_b32 s36, s17, 18")
    a("s_mov_b32 s47, 0")
    a.label("L_at_slow_loop")
    a(f"buffer_load_dwordx4 {vr(K,4)}, v3, s[24:27], s36 offen sc1")
    a(f"buffer_load_dwordx4 {vr(K+4,4)}, v3, s[24:27], s36 offen offset:1024 sc1")
    a(f"buffer_load_dwordx4 {vr(V,4)}, v3, s[24:27], s36 offen offset:2048 sc1")
    a(f"buffer_load_dwordx4 {vr(V+4,4)}, v3, s[24:27], s36 offen offset:3072 sc1")
    a("s_waitcnt vmcnt(0)")
    a(f"v_mfma_f32_32x32x16_bf16 {vr(X,16)}, {vr(K,4)}, {vr(Q,4)}, 0")
    a(f"v_mfma_f32_32x32x16_bf16 {vr(X,16)}, {vr(K+4,4)}, {vr(Q+4,4)}, {vr(X,16)}")
    a("s_nop 15"); a("s_nop 3")
    a(f"v_max_f32 v4, v{X}, v{X+1}")
    for r in range(2, 16): a(f"v_max_f32 v4, v4, v{X+r}")
    a("v_mov_b32 v5, v4")
    a("s_nop 1")
    a("v_permlane32_swap_b32 v4, v5")
    a("s_nop 1")
    a("v_max_f32 v4, v4, v5")
    a(f"v_max_f32 v4, v4, v{M}")
    a(f"v_sub_f32 v5, v{M}, v4")
    a("v_exp_f32 v5, v5")
    a(f"v_mov_b32 v{M}, v4")
    for r in range(16): a(f"v_sub_f32 v{X+r}, v{X+r}, v4")
    for r in range(16): a(f"v_exp_f32 v{X+r}, v{X+r}")
    a("s_nop 0")
    for r in range(8): a(f"v_cvt_pk_bf16_f32 v{PX+r}, v{X+2*r}, v{X+2*r+1}")
    a(f"v_mul_f32 v{L}, v{L}, v5")
    for r in range(16): a(f"v_mul_f32 v{O+r}, v{O+r}, v5")
    for r in range(8):
        a(f"v_lshlrev_b32 v6, 16, v{PX+r}")
        a(f"v_and_b32 v7, 0xffff0000, v{PX+r}")
        a(f"v_add_f32 v{L}, v{L}, v6")
        a(f"v_add_f32 v{L}, v{L}, v7")
    a("s_nop 1")
    a(f"v_mfma_f32_32x32x16_bf16 {vr(O,16)}, {vr(V,4)}, {vr(PX,4)}, {vr(O,16)}")
    a(f"v_mfma_f32_32x32x16_bf16 {vr(O,16)}, {vr(V+4,4)}, {vr(PX+4,4)}, {vr(O,16)}")
    a("s_nop 15"); a("s_nop 3")
    a("s_add_u32 s36, s36, 4096")
    a("s_add_u32 s47, s47, 1")
    a("s_cmp_lt_u32 s47, 64")
    a("s_cbranch_scc1 L_at_slow_loop")
    a(f"v_mov_b32 v5, v{L}")
    a(f"v_mov_b32 v4, v{L}")
    a("s_nop 1")
    a("v_permlane32_swap_b32 v4, v5")
    a("s_nop 1")
    a(f"v_add_f32 v{L}, v4, v5")
    a("s_branch L_at_fin")
    a.label("L_end")
    a("s_endpgm")
    return a.text()

HEADER = """; Fused multi-head attention: QKV projection -> softmax attention -> output projection, one persistent launch.
; @launch grid=(256,1,1) block=(512,1,1) lds=163840
"""
def main(out):
    vg = 256 if (STAMP or DBGT) else 244
    sg = 96 if (STAMP or DBGT) else 64
    txt = HEADER + '.amdgcn_target "amdgcn-amd-amdhsa--gfx950"\n.text\n' + gen()
    txt += f""".section .rodata,"a"
.p2align 6
.amdhsa_kernel {KNAME}
  .amdhsa_next_free_vgpr {vg}
  .amdhsa_next_free_sgpr {sg}
  .amdhsa_accum_offset {(vg+3)//4*4}
  .amdhsa_group_segment_fixed_size 0
  .amdhsa_kernarg_size 48
  .amdhsa_user_sgpr_count 2
  .amdhsa_user_sgpr_kernarg_segment_ptr 1
  .amdhsa_system_sgpr_workgroup_id_x 1
.end_amdhsa_kernel
"""
    open(out, "w").write(txt)
if __name__ == "__main__":
    main(sys.argv[1] if len(sys.argv) > 1 else "cdna_kernels/%s.s" % NAME)
```

```python
import sys, os, struct
NAME = "standalone__softmax_full_mha__prompt"
KNAME = NAME + "_kernel"
E = lambda k, d=0: int(os.environ.get(k, str(d)))
STAMP = E("STAMP")
STAMP_OFF = 32 << 20

class A:
    def __init__(self): self.l = []
    def __call__(self, s): self.l.append("    " + s)
    def label(self, s): self.l.append(s + ":")
    def raw(self, s): self.l.append(s)
    def text(self): return "\n".join(self.l) + "\n"
def vr(b, n=1): return f"v{b}" if n == 1 else f"v[{b}:{b+n-1}]"
def f32bits(x): return struct.unpack('<I', struct.pack('<f', x))[0]

class Lgkm:
    def __init__(self, a): self.a = a; self.q = []
    def issue(self, tag): self.q.append(tag)
    def need(self, tags):
        idx = -1
        for i, t in enumerate(self.q):
            if t in tags: idx = i
        if idx < 0: return
        n = len(self.q) - 1 - idx
        assert n <= 15
        self.a(f"s_waitcnt lgkmcnt({n})")
        self.q = self.q[idx+1:]
    def all(self):
        if self.q:
            self.a("s_waitcnt lgkmcnt(0)")
            self.q = []

KVF_OFF = 0
OF_OFF  = 8 << 20
FLG_OFF = 12 << 20
WS_USED = 13 << 20
QSCALE = 0.17677669529663687 * 1.4426950408889634
G1_NSLOT = 4; G1_SLOT = 40960
AT_SLOT = 32768
QX_OFF = 131072
AT_R = 4
WO_LDS = 0
CNT_OFF = 147456 + 64
SCR_OFF = 147456 + 1024
XCH_OFF = 131072
EP_OFF = 147456
POLL_MAX = 40000

def stamp(a, k):
    if STAMP:
        a(f"s_memtime s[{60+2*k}:{61+2*k}]"); a("s_waitcnt lgkmcnt(0)")
def stamp_rt(a, k):
    if STAMP:
        a(f"s_memrealtime s[{60+2*k}:{61+2*k}]"); a("s_waitcnt lgkmcnt(0)")
def stamp_store(a, n):
    if STAMP:
        a(f"s_lshl_b32 s58, s2, 3"); a(f"s_add_u32 s58, s58, s14"); a(f"s_lshl_b32 s58, s58, 7")
        a(f"s_add_u32 s58, s58, {STAMP_OFF}")
        a(f"s_add_u32 s56, s8, s58"); a(f"s_addc_u32 s57, s9, 0")
        a("v_mov_b32 v254, 0")
        for k in range(n):
            a(f"v_mov_b32 v255, s{60+2*k}")
            a(f"global_store_dword v254, v255, s[56:57] offset:{4*k}")
        a("s_waitcnt vmcnt(0)")

DBGT = E("DBGT")
DSLOT = {1:0, 13:1, 3:2, 5:3, 7:4, 9:5, 11:6}
def dbgt(a, slot, neg=False):
    if DBGT and neg:
        i = DSLOT[slot]
        a(f"s_memrealtime s[{60+2*i}:{61+2*i}]")
        a("s_waitcnt lgkmcnt(0)")
        if slot == 11:
            a(f"s_and_b32 s92, s2, 0x7f")
            a("s_cmp_eq_u32 s92, 0")
            a("s_cbranch_scc0 L_dbg_skip")
            a("s_cmp_eq_u32 s14, 4")
            a("s_cbranch_scc0 L_dbg_skip")
            a("s_lshr_b32 s92, s2, 7")
            a("s_mul_i32 s92, s92, 28")
            a("v_mov_b32 v251, s92")
            for k in range(7):
                a(f"v_mov_b32 v250, s{60+2*k}")
                a(f"global_store_dword v251, v250, s[90:91] offset:{4+4*k}")
            a.label("L_dbg_skip")

def srd(a, d, plo, off, nrec):
    if off is None:
        a(f"s_mov_b32 s{d}, s{plo}"); a(f"s_mov_b32 s{d+1}, s{plo+1}")
    else:
        a(f"s_add_u32 s{d}, s{plo}, {off}"); a(f"s_addc_u32 s{d+1}, s{plo+1}, 0")
    a(f"s_mov_b32 s{d+2}, {nrec}"); a(f"s_mov_b32 s{d+3}, 0x20000")

def poll(a, name, voff, nlanes_mask_all=True):
    a(f"s_mov_b32 s47, 0")
    a.label(f"L_poll_{name}")
    a(f"buffer_load_dword v5, v{voff}, s[24:27], 0 offen sc1")
    a("s_waitcnt vmcnt(0)")
    a("v_cmp_ne_u32 vcc, s46, v5")
    a("s_add_u32 s47, s47, 1")
    a("s_cmp_eq_u64 vcc, 0")
    a(f"s_cbranch_scc1 L_poll_{name}_done")
    a(f"s_cmp_ge_u32 s47, {POLL_MAX}")
    a(f"s_cbranch_scc1 L_poll_{name}_done")
    a("s_sleep 1")
    a(f"s_branch L_poll_{name}")
    a.label(f"L_poll_{name}_done")

def gen():
    a = A()
    a.raw(f".globl {KNAME}\n.p2align 8\n.type {KNAME},@function\n{KNAME}:")
    a("s_cmp_ge_u32 s2, 256")
    a("s_cbranch_scc1 L_end")
    a("s_load_dwordx4 s[4:7], s[0:1], 0")
    a("s_load_dwordx2 s[8:9], s[0:1], 40")
    a("s_load_dwordx4 s[40:43], s[0:1], 16")
    a("s_load_dwordx2 s[44:45], s[0:1], 32")
    a("s_and_b32 s12, s2, 7")
    a("s_lshr_b32 s11, s2, 3")
    a("s_lshr_b32 s10, s12, 1")
    a("s_lshl_b32 s10, s10, 2")
    a("s_and_b32 s13, s11, 3")
    a("s_add_u32 s10, s10, s13")
    a("s_lshr_b32 s11, s11, 2")
    a("s_lshl_b32 s13, s13, 1")
    a("s_add_u32 s13, s13, s11")
    a("s_lshl_b32 s13, s13, 1")
    a("s_and_b32 s13, s13, %d" % E("ROTMASK", 0))
    a("s_and_b32 s12, s12, 1")
    a("s_lshl_b32 s12, s12, 3")
    a("s_add_u32 s11, s11, s12")
    a("v_lshrrev_b32 v1, 6, v0")
    a("v_and_b32 v2, 63, v0")
    a("v_lshlrev_b32 v3, 4, v2")
    a("v_readfirstlane_b32 s14, v1")
    a("s_waitcnt lgkmcnt(0)")
    stamp_rt(a, 0); stamp(a, 1)
    if DBGT:
        a("s_mov_b32 s90, s44"); a("s_mov_b32 s91, s45")
    dbgt(a, 1, True); dbgt(a, 2)
    srd(a, 24, 8, None, WS_USED)
    a("s_cmp_lt_u32 s14, 4")
    a("s_cbranch_scc1 L_g1_compute")
    a("s_sub_u32 s15, s14, 4")
    a("s_lshl_b32 s16, s11, 18")
    a("s_sub_u32 s17, 0x400000, s16")
    a("s_add_u32 s28, s4, s16"); a("s_addc_u32 s29, s5, 0"); a("s_mov_b32 s30, s17"); a("s_mov_b32 s31, 0x20000")
    a("s_lshl_b32 s16, s10, 7")
    a("s_sub_u32 s17, 0x600000, s16")
    a("s_add_u32 s32, s6, s16"); a("s_addc_u32 s33, s7, 0"); a("s_mov_b32 s34, s17"); a("s_mov_b32 s35, 0x20000")
    a("v_lshrrev_b32 v4, 3, v2")
    a("v_lshlrev_b32 v5, 11, v4")
    a("v_and_b32 v6, 7, v2")
    a("v_lshrrev_b32 v7, 4, v2")
    a("v_xor_b32 v8, v6, v7")
    a("v_lshlrev_b32 v8, 4, v8")
    a("v_add_u32 v5, v5, v8")
    a("s_lshl_b32 s16, s15, 16")
    a("v_add_u32 v10, s16, v5")
    a("v_xor_b32 v11, 64, v10")
    a("v_mul_u32_u24 v5, 6144, v4")
    a("v_and_b32 v7, 1, v7")
    a("v_lshlrev_b32 v7, 2, v7")
    a("v_xor_b32 v8, v6, v7")
    a("v_lshlrev_b32 v8, 4, v8")
    a("v_add_u32 v5, v5, v8")
    a("s_mul_i32 s16, s15, 98304")
    a("v_add_u32 v12, s16, v5")
    a("s_lshl_b32 s18, s15, 12")
    a("s_lshl_b32 s19, s15, 11")
    a("s_add_u32 s19, s19, 16384")
    a("s_mov_b32 s20, s13")
    a("s_mov_b32 s36, 0")
    first = [True]
    if E("DIAG1"): stamp(a, 4)
    def issue_stage():
        a("s_lshl_b32 s21, s20, 7")
        a("s_mul_i32 s22, s20, 393216")
        a("s_add_u32 s37, s36, s18")
        a("s_add_u32 s39, s36, s19")
        for i in range(4):
            a(f"s_add_u32 m0, s37, {i*1024}")
            a(f"s_add_u32 s38, s21, {i*16384}")
            a(f"buffer_load_dwordx4 v{10+(i&1)}, s[28:31], s38 offen lds")
            if E("DIAG1") and first[0] and i in (0, 3): stamp(a, 5 if i == 0 else 6)
        for t in range(3):
            for kb in range(2):
                a(f"s_add_u32 m0, s39, {t*8192+kb*1024}")
                a(f"s_add_u32 s38, s22, {t*2048+kb*49152}")
                a(f"buffer_load_dwordx4 v12, s[32:35], s38 offen lds")
                if E("DIAG1") and first[0] and kb == 0 and t == 0: stamp(a, 7)
        first[0] = False
        a("s_add_u32 s20, s20, 1")
        a("s_and_b32 s20, s20, 15")
        a(f"s_add_u32 s36, s36, {G1_SLOT}")
        a(f"s_cmp_eq_u32 s36, {G1_SLOT*G1_NSLOT}")
        a("s_cselect_b32 s36, 0, s36")
    issue_stage()
    stamp(a, 2)
    issue_stage()
    a("s_waitcnt vmcnt(10)")
    stamp(a, 3)
    a("s_barrier")
    if E("DIAG1"):
        a("s_waitcnt vmcnt(0)"); stamp(a, 8); stamp_rt(a, 13); stamp_store(a, 16); a("s_endpgm")
    dbgt(a, 13, True); dbgt(a, 14)
    issue_stage(); issue_stage()
    NPF = 0
    if E("LPF", 0):
        a("s_lshl_b32 s37, s2, 14")
        a("s_lshl_b32 s38, s15, 12")
        a("s_add_u32 s37, s37, s38")
        a("v_add_u32 v4, s37, v3")
        for q in range(4): a(f"global_load_dwordx4 v[16:19], v4, s[4:5] offset:{q*1024}")
        a("s_mul_i32 s37, s2, 24576")
        a("s_mul_i32 s38, s15, 6144")
        a("s_add_u32 s37, s37, s38")
        a("v_add_u32 v4, s37, v3")
        for q in range(4): a(f"global_load_dwordx4 v[16:19], v4, s[6:7] offset:{q*1024}")
        a("v_add_u32 v4, 4096, v4")
        for q in range(2): a(f"global_load_dwordx4 v[16:19], v4, s[6:7] offset:{q*1024}")
        NPF = 10
    if E("L2PF", 0):
        a("s_lshr_b32 s36, s2, 3")
        a("s_and_b32 s37, s36, 3")
        a("s_lshr_b32 s36, s36, 2")
        a("v_lshrrev_b32 v4, 3, v2")
        a("v_lshlrev_b32 v5, 11, v4")
        a("v_and_b32 v6, 7, v2")
        a("v_lshlrev_b32 v6, 4, v6")
        a("v_add_u32 v13, v5, v6")
        a("s_lshl_b32 s37, s37, 16")
        a("v_add_u32 v13, s37, v13")
        a("v_mul_u32_u24 v14, 6144, v4")
        a("v_add_u32 v14, v14, v6")
        a("s_mul_i32 s36, s36, 49152")
        a("v_add_u32 v14, s36, v14")
        for q in range(3):
            a(f"s_add_u32 s36, s15, {4+4*q}")
            a("s_add_u32 s36, s36, s13")
            a("s_and_b32 s36, s36, 15")
            a("s_lshl_b32 s37, s36, 7")
            a("s_mul_i32 s39, s36, 393216")
            for t in range(3):
                a(f"s_add_u32 s38, s39, {t*2048}")
                a(f"buffer_load_dwordx4 v[16:19], v14, s[32:35], s38 offen")
            for p in range(4):
                a(f"s_add_u32 s38, s37, {p*16384}")
                a(f"buffer_load_dwordx4 v[16:19], v13, s[28:31], s38 offen")
        NPF = 21
        a("s_mov_b32 s36, %d" % 0)
    a("s_mov_b32 s36, 0")
    for k in range(3):
        a(f"s_waitcnt vmcnt({20+NPF})")
        a("s_barrier")
        issue_stage()
    a("s_mov_b32 s23, 3")
    a.label("L_g1_ldloop")
    a(f"s_waitcnt vmcnt({10*(G1_NSLOT-2)})")
    a("s_barrier")
    issue_stage()
    a("s_add_u32 s23, s23, 1")
    a(f"s_cmp_lt_u32 s23, {16-G1_NSLOT}")
    a("s_cbranch_scc1 L_g1_ldloop")
    for k in range(G1_NSLOT):
        a(f"s_waitcnt vmcnt({10*max(0, G1_NSLOT-2-k)})")
        a("s_barrier")
    a("s_branch L_g1_done")
    a.label("L_g1_compute")
    ACC = 128; SETS = [64, 84]; XA = 104; WA = 108
    QPF = E("QPF", 1)
    def qpf(tag):
        a("s_cmp_eq_u32 s14, 3")
        a(f"s_cbranch_scc1 L_qpf_x{tag}")
        a("global_load_dwordx4 v[16:19], v14, s[6:7]")
        a("global_load_dwordx4 v[16:19], v14, s[6:7] offset:1024")
        a("v_add_u32 v14, 1572864, v14")
        a(f"s_branch L_qpf_done{tag}")
        a.label(f"L_qpf_x{tag}")
        a("global_load_dwordx4 v[16:19], v14, s[4:5]")
        a("v_add_u32 v13, 4096, v14")
        a("global_load_dwordx4 v[16:19], v15, s[4:5]")
        a("global_load_dwordx4 v[16:19], v13, s[4:5]")
        a("v_add_u32 v13, 4096, v15")
        a("v_add_u32 v14, 512, v14")
        a("global_load_dwordx4 v[16:19], v13, s[4:5]")
        a("v_add_u32 v15, 512, v15")
        a.label(f"L_qpf_done{tag}")
    if QPF:
        a("s_cmp_eq_u32 s14, 3")
        a("s_cbranch_scc1 L_qpf_setx")
        a("s_mul_i32 s16, s2, 6144")
        a("s_lshl_b32 s17, s14, 11")
        a("s_add_u32 s16, s16, s17")
        a("v_add_u32 v14, s16, v3")
        a("s_branch L_qpf_set")
        a.label("L_qpf_setx")
        a("v_lshrrev_b32 v14, 5, v2")
        a("v_lshlrev_b32 v14, 11, v14")
        a("v_and_b32 v15, 31, v2")
        a("v_lshlrev_b32 v15, 4, v15")
        a("v_add_u32 v14, v14, v15")
        a("s_lshl_b32 s16, s2, 14")
        a("v_add_u32 v14, s16, v14")
        a("v_add_u32 v15, 8192, v14")
        a.label("L_qpf_set")
        qpf("a")
    a("s_cmp_eq_u32 s14, 0")
    a("s_cbranch_scc0 L_nocas")
    a("s_memrealtime s[16:17]")
    a("s_waitcnt lgkmcnt(0)")
    a("s_or_b32 s16, s16, 1")
    a("v_mov_b32 v240, s16")
    a("v_mov_b32 v241, 0")
    a("v_mov_b32 v243, 0")
    a("s_mov_b64 exec, 1")
    a("global_atomic_cmpswap v242, v243, v[240:241], s[44:45] sc0 sc1")
    a("s_mov_b64 exec, -1")
    a.label("L_nocas")
    a("s_lshl_b32 s16, s2, 13")
    a("s_lshl_b32 s17, s14, 11")
    a("s_add_u32 s16, s16, s17")
    a("v_add_u32 v4, s16, v3")
    a("global_load_dwordx4 v[224:227], v4, s[40:41]")
    a("global_load_dwordx4 v[228:231], v4, s[40:41] offset:1024")
    a("s_getpc_b64 s[16:17]")
    a.label("L_pc")
    a("s_sub_u32 s16, s16, L_pc-" + KNAME)
    a("s_subb_u32 s17, s17, 0")
    a("v_lshlrev_b32 v4, 7, v2")
    a("s_lshl_b32 s18, s14, 13")
    a("v_add_u32 v4, s18, v4")
    a("v_cmp_gt_u32 vcc, L_end-" + KNAME + ", v4")
    a("s_and_saveexec_b64 s[18:19], vcc")
    a("s_cbranch_execz L_nocode")
    a("global_load_dword v232, v4, s[16:17]")
    a.label("L_nocode")
    a("s_mov_b64 exec, s[18:19]")
    a("s_lshr_b32 s15, s14, 1")
    a("s_and_b32 s16, s14, 1")
    a("v_and_b32 v4, 31, v2")
    a("s_lshl_b32 s17, s15, 6")
    a("v_add_u32 v4, s17, v4")
    a("v_lshlrev_b32 v4, 7, v4")
    a("v_lshrrev_b32 v5, 1, v2")
    a("v_and_b32 v5, 7, v5")
    a("v_lshrrev_b32 v6, 5, v2")
    a("v_xor_b32 v5, v5, v6")
    for ks in range(4):
        a(f"v_xor_b32 v7, {2*ks}, v5")
        a(f"v_lshlrev_b32 v7, 4, v7")
        a(f"v_add_u32 v{XA+ks}, v4, v7")
    a("v_and_b32 v7, 15, v2")
    a("v_lshrrev_b32 v7, 2, v7")
    a("v_lshlrev_b32 v8, 3, v6")
    a("v_add_u32 v8, v8, v7")
    a("v_lshlrev_b32 v8, 7, v8")
    a("v_lshrrev_b32 v9, 4, v2")
    a("v_and_b32 v9, 1, v9")
    a("v_lshlrev_b32 v9, 1, v9")
    a("v_and_b32 v10, 3, v2")
    a("v_lshrrev_b32 v11, 1, v10")
    a("v_add_u32 v9, v9, v11")
    a("s_lshl_b32 s17, s16, 2")
    a("v_add_u32 v9, s17, v9")
    a("v_lshrrev_b32 v11, 1, v7")
    a("v_lshlrev_b32 v11, 2, v11")
    a("v_xor_b32 v9, v9, v11")
    a("v_lshlrev_b32 v9, 4, v9")
    a("v_add_u32 v8, v8, v9")
    a("v_and_b32 v10, 1, v10")
    a("v_lshlrev_b32 v10, 3, v10")
    a("v_add_u32 v8, v8, v10")
    a(f"v_add_u32 v{WA}, 16384, v8")
    for r in range(96): a(f"v_mov_b32 v{ACC+r}, 0")
    if E("PREF", 0):
        a("s_lshl_b32 s19, s2, 14")
        a("s_lshl_b32 s17, s14, 12")
        a("s_add_u32 s19, s19, s17")
        a("v_add_u32 v4, s19, v3")
        for q in range(4): a(f"global_load_dwordx4 v[{16+4*q}:{19+4*q}], v4, s[4:5] offset:{q*1024}")
        a("s_mul_i32 s19, s2, 24576")
        a("s_mul_i32 s17, s14, 6144")
        a("s_add_u32 s19, s19, s17")
        a("v_add_u32 v4, s19, v3")
        for q in range(4): a(f"global_load_dwordx4 v[{32+4*q}:{35+4*q}], v4, s[6:7] offset:{q*1024}")
        a("v_add_u32 v4, 4096, v4")
        for q in range(2): a(f"global_load_dwordx4 v[{48+4*q}:{51+4*q}], v4, s[6:7] offset:{q*1024}")
    a("s_mov_b32 s18, 0")
    a(f"s_mov_b32 s21, {-(G1_NSLOT-1)*G1_SLOT & 0xffffffff}")
    a(f"s_mov_b32 s22, {G1_SLOT}")
    a("s_barrier")
    if E("DIAG1"):
        a("s_waitcnt vmcnt(0)"); a("s_endpgm")
    stamp(a, 2)
    if QPF: qpf("b")
    lg = Lgkm(a)
    def reads(setb, ks, tagp):
        x0, x1, w0, w1, w2 = setb, setb+4, setb+8, setb+12, setb+16
        return [(tagp+"x0", f"ds_read_b128 {vr(x0,4)}, v{XA+ks}"),
                (tagp+"w0", f"ds_read_b64_tr_b16 {vr(w0,2)}, v{WA} offset:{ks*2048}"),
                (tagp+"w0", f"ds_read_b64_tr_b16 {vr(w0+2,2)}, v{WA} offset:{ks*2048+512}"),
                (tagp+"x1", f"ds_read_b128 {vr(x1,4)}, v{XA+ks} offset:4096"),
                (tagp+"w1", f"ds_read_b64_tr_b16 {vr(w1,2)}, v{WA} offset:{8192+ks*2048}"),
                (tagp+"w1", f"ds_read_b64_tr_b16 {vr(w1+2,2)}, v{WA} offset:{8192+ks*2048+512}"),
                (tagp+"w2", f"ds_read_b64_tr_b16 {vr(w2,2)}, v{WA} offset:{16384+ks*2048}"),
                (tagp+"w2", f"ds_read_b64_tr_b16 {vr(w2+2,2)}, v{WA} offset:{16384+ks*2048+512}")]
    def mfma(setb, i, t):
        x = setb + 4*i; w = setb + 8 + 4*t; acc = ACC + 16*(i*3+t)
        if t < 2: return f"v_mfma_f32_32x32x16_bf16 {vr(acc,16)}, {vr(w,4)}, {vr(x,4)}, {vr(acc,16)}"
        return f"v_mfma_f32_32x32x16_bf16 {vr(acc,16)}, {vr(x,4)}, {vr(w,4)}, {vr(acc,16)}"
    for tag, ins in reads(SETS[0], 0, "A"):
        a(ins); lg.issue(tag)
    a.raw(".p2align 6")
    a.label("L_g1_loop")
    order = [(0,1),(0,2),(1,1),(1,2),(0,0),(1,0)]
    needs = [["x0","w1"],["w2"],["x1"],[],["w0"],[]]
    def reads2(setb, ks, tagp):
        R = reads(setb, ks, tagp)
        return [R[0], R[4], R[5], R[6], R[7], R[3], R[1], R[2]]
    a.l = a.l[:-10]; lg.q = []
    for tag, ins in reads2(SETS[0], 0, "A"):
        a(ins); lg.issue(tag)
    a.raw(".p2align 6")
    a.label("L_g1_loop")
    for ks in range(4):
        cur = SETS[ks & 1]; nxt = SETS[(ks+1) & 1]
        cp = "AB"[ks & 1]; np_ = "AB"[(ks+1) & 1]
        if ks == 3:
            lg.all()
            a("s_add_u32 s18, s18, 1")
            if QPF:
                a("s_and_b32 s19, s18, 11")
                a("s_cmp_eq_u32 s19, 2")
                a("s_cbranch_scc1 L_qpf_out")
                a.label("L_qpf_back")
            a("s_and_b32 s19, s18, %d" % (G1_NSLOT-1))
            a("s_cmp_eq_u32 s19, 0")
            a("s_cselect_b32 s20, s21, s22")
            for k in range(4): a(f"v_add_u32 v{XA+k}, s20, v{XA+k}")
            a(f"v_add_u32 v{WA}, s20, v{WA}")
            a("s_barrier")
        R = reads2(nxt, (ks+1) & 3, np_)
        slots = [[], R[0:2], R[2:4], R[4:6], R[6:8], []]
        for k in range(6):
            for tag, ins in slots[k]:
                a(ins); lg.issue(tag)
            lg.need([cp+t for t in needs[k]])
            a(mfma(cur, *order[k]))
    a("s_cmp_lt_u32 s18, 16")
    a("s_cbranch_scc1 L_g1_loop")
    a("s_waitcnt lgkmcnt(0) vmcnt(0)")
    stamp(a, 3)
    a("s_lshl_b32 s17, s10, 1")
    a("s_add_u32 s17, s17, s16")
    a("s_lshl_b32 s19, s11, 2")
    a("s_lshl_b32 s20, s15, 1")
    a("s_add_u32 s19, s19, s20")
    a("s_lshl_b32 s20, s17, 6")
    a("s_add_u32 s20, s20, s19")
    a("s_lshl_b32 s22, s20, 12")
    a("s_lshl_b32 s20, s15, 14")
    a("s_lshl_b32 s21, s16, 12")
    a("s_add_u32 s20, s20, s21")
    a("v_add_u32 v4, s20, v3")
    a("s_lshl_b32 s20, s16, 2")
    a("s_lshl_b32 s21, s15, 1")
    a("s_add_u32 s20, s20, s21")
    a("s_lshl_b32 s20, s20, 11")
    a(f"s_add_u32 s20, s20, {QX_OFF}")
    a("v_add_u32 v5, s20, v3")
    a(f"s_mov_b32 s23, {f32bits(QSCALE)}")
    a("s_nop 7")
    T = 64
    n = 0
    for i in range(2):
        for t in (1, 2):
            acc = ACC + 16*(i*3+t); base = T + 8*(n % 4); n += 1
            for r in range(8): a(f"v_cvt_pk_bf16_f32 v{base+r}, v{acc+2*r}, v{acc+2*r+1}")
            o = i*4096 + (t-1)*2048
            a(f"s_add_u32 s28, s22, {o}")
            a(f"buffer_store_dwordx4 {vr(base,4)}, v3, s[24:27], s28 offen sc1")
            a(f"buffer_store_dwordx4 {vr(base+4,4)}, v3, s[24:27], s28 offen offset:1024 sc1")
            a(f"ds_write_b128 v4, {vr(base,4)} offset:{i*8192+(t-1)*2048}")
            a(f"ds_write_b128 v4, {vr(base+4,4)} offset:{i*8192+(t-1)*2048+1024}")
    for i in range(2):
        acc = ACC + 16*(i*3); base = 96 + 8*i
        for r in range(16): a(f"v_mul_f32 v{acc+r}, s23, v{acc+r}")
        for r in range(8): a(f"v_cvt_pk_bf16_f32 v{base+r}, v{acc+2*r}, v{acc+2*r+1}")
        a(f"ds_write_b128 v5, {vr(base,4)} offset:{i*2048}")
        a(f"ds_write_b128 v5, {vr(base+4,4)} offset:{i*2048+1024}")
    a("s_cmp_eq_u32 s14, 0")
    a("s_cbranch_scc0 L_noep")
    a("v_cmp_eq_u32 vcc, 0, v242")
    a("s_nop 1")
    a("v_cndmask_b32 v242, v242, v240, vcc")
    a(f"v_mov_b32 v6, {EP_OFF}")
    a("s_mov_b64 exec, 1")
    a("ds_write_b32 v6, v242")
    a("v_mov_b32 v7, 0")
    a(f"ds_write_b64 v6, v[7:8] offset:64" if False else f"ds_write_b32 v6, v7 offset:64")
    a(f"ds_write_b32 v6, v7 offset:68")
    a("s_mov_b64 exec, -1")
    a.label("L_noep")
    a("s_waitcnt lgkmcnt(0)")
    a.label("L_g1_done")
    a("s_barrier")
    dbgt(a, 3, True); dbgt(a, 4)
    stamp(a, 4)
    Q, K, V = 8, 16, 24
    S = [32, 48]; P = [64, 72]; O = 80; L = 96; ONES = 100; IDX = 104; VC = 105; VN = 106; M = 107; VB = 108; VD = 109
    a("s_lshr_b32 s15, s14, 2")
    a("s_and_b32 s16, s14, 3")
    a("s_lshl_b32 s17, s10, 1")
    a("s_add_u32 s17, s17, s15")
    a("s_lshl_b32 s18, s11, 2")
    a("s_add_u32 s18, s18, s16")
    a("s_lshl_b32 s20, s14, 11")
    a(f"s_add_u32 s20, s20, {QX_OFF}")
    a("v_add_u32 v4, s20, v3")
    a(f"ds_read_b128 {vr(Q,4)}, v4")
    a(f"ds_read_b128 {vr(Q+4,4)}, v4 offset:1024")
    a(f"v_mov_b32 v6, {EP_OFF}")
    a("ds_read_b32 v6, v6")
    a("s_lshl_b32 s22, s15, 12")
    a(f"v_add_u32 v{VB}, s22, v3")
    a(f"v_mov_b32 v{VC}, v{VB}")
    a(f"v_add_u32 v{VN}, {AT_SLOT}, v{VB}")
    a(f"ds_read_b128 {vr(K,4)}, v{VC}")
    a(f"ds_read_b128 {vr(K+4,4)}, v{VC} offset:1024")
    for r in range(16): a(f"v_mov_b32 v{O+r}, 0")
    for r in range(4): a(f"v_mov_b32 v{L+r}, 0")
    for r in range(8): a(f"v_mov_b32 v{P[1]+r}, 0")
    a("v_and_b32 v4, 6, v2")
    a("v_mov_b32 v5, 0x3f803f80")
    a("v_cmp_eq_u32 vcc, 0, v4")
    a("s_nop 1")
    a(f"v_cndmask_b32 v{ONES}, 0, v5, vcc")
    a(f"v_cndmask_b32 v{ONES+1}, 0, v5, vcc")
    a("v_cmp_eq_u32 vcc, 4, v4")
    a("s_nop 1")
    a(f"v_cndmask_b32 v{ONES+2}, 0, v5, vcc")
    a(f"v_cndmask_b32 v{ONES+3}, 0, v5, vcc")
    a("v_and_b32 v4, 1, v2")
    a("v_mov_b32 v5, 0x44444444")
    a("v_mov_b32 v7, 0xeeeeeeee")
    a("v_cmp_eq_u32 vcc, 0, v4")
    a("s_nop 1")
    a(f"v_cndmask_b32 v{IDX}, v7, v5, vcc")
    VONE = 110; VCA = 111; VCR = 112; VCV = 113
    a("s_lshl_b32 s20, s17, 18")
    a("s_lshl_b32 s21, s16, 10")
    a("s_add_u32 s20, s20, s21")
    a("s_lshl_b32 s21, s14, 10")
    a("s_mov_b32 s51, 4096"); a("s_mov_b32 s52, 8192"); a("s_mov_b32 s53, 12288")
    for q in range(4): a(f"s_mov_b32 s{28+q}, s{24+q}")
    a(f"v_mov_b32 v{VD}, v3")
    a(f"v_mov_b32 v{VONE}, 1")
    a("s_lshl_b32 s36, s15, 2")
    a(f"s_add_u32 s36, s36, {CNT_OFF}")
    a(f"v_mov_b32 v{VCR}, s36")
    a("s_lshl_b32 s37, s14, 8")
    a(f"s_add_u32 s37, s37, {SCR_OFF}")
    a("v_lshlrev_b32 v4, 2, v2")
    a(f"v_add_u32 v{VCA}, s37, v4")
    a("v_cmp_eq_u32 vcc, 0, v2")
    a("s_nop 1")
    a(f"v_cndmask_b32 v{VCA}, v{VCA}, v{VCR}, vcc")
    a("s_waitcnt lgkmcnt(0)")
    a("v_readfirstlane_b32 s46, v6")
    a(f"v_mfma_f32_32x32x16_bf16 {vr(S[0],16)}, {vr(K,4)}, {vr(Q,4)}, 0")
    a(f"v_mfma_f32_32x32x16_bf16 {vr(S[0],16)}, {vr(K+4,4)}, {vr(Q+4,4)}, {vr(S[0],16)}")
    lg = Lgkm(a)
    a(f"ds_read_b128 {vr(K,4)}, v{VC} offset:8192"); lg.issue("K")
    a(f"ds_read_b128 {vr(K+4,4)}, v{VC} offset:{8192+1024}"); lg.issue("K")
    a(f"ds_read_b128 {vr(V,4)}, v{VC} offset:2048"); lg.issue("V")
    a(f"ds_read_b128 {vr(V+4,4)}, v{VC} offset:3072"); lg.issue("V")
    a("s_nop 7")
    PRIO = E("PRIO", 1)
    def at_step(i, own):
        X = S[i & 1]; Y = S[(i+1) & 1]; PX = P[i & 1]; PY = P[(i+1) & 1]
        ex = lambda r: a(f"v_exp_f32 v{X+r}, v{X+r}")
        cv = lambda r: a(f"v_cvt_pk_bf16_f32 v{PX+r}, v{X+2*r}, v{X+2*r+1}")
        def kread():
            t = i + 2
            if own and t >= 4: return
            b = VC if t < 4 else VN
            off = (t % 4)*8192
            a(f"ds_read_b128 {vr(K,4)}, v{b} offset:{off}"); lg.issue("K")
            a(f"ds_read_b128 {vr(K+4,4)}, v{b} offset:{off+1024}"); lg.issue("K")
        def vread():
            off = i*8192 + 2048
            a(f"ds_read_b128 {vr(V,4)}, v{VC} offset:{off}"); lg.issue("V")
            a(f"ds_read_b128 {vr(V+4,4)}, v{VC} offset:{off+1024}"); lg.issue("V")
        def dma1(q):
            if own or E("DMAMODE", 1) == 0: return
            a(f"s_add_u32 m0, s38, {q*8192}")
            if q: a(f"s_add_u32 s39, s37, s{50+q}")
            else: a("s_mov_b32 s39, s37")
            a(f"buffer_load_dwordx4 v{VD}, s[28:31], s39 offen sc1 lds")
        qk0 = f"v_mfma_f32_32x32x16_bf16 {vr(Y,16)}, {vr(K,4)}, {vr(Q,4)}, 0"
        qk1 = f"v_mfma_f32_32x32x16_bf16 {vr(Y,16)}, {vr(K+4,4)}, {vr(Q+4,4)}, {vr(Y,16)}"
        pv0 = f"v_mfma_f32_32x32x16_bf16 {vr(O,16)}, {vr(V,4)}, {vr(PY,4)}, {vr(O,16)}"
        pv1 = f"v_mfma_f32_32x32x16_bf16 {vr(O,16)}, {vr(V+4,4)}, {vr(PY+4,4)}, {vr(O,16)}"
        smf = f"v_smfmac_f32_16x16x64_bf16 {vr(L,4)}, {vr(ONES,4)}, {vr(PY,8)}, v{IDX}"
        bk = []
        if i == 3 and not own:
            bk = ["s_add_u32 s23, s23, 1", "s_add_u32 s48, s48, 32768", "s_and_b32 s48, s48, 0x18000",
                  "s_add_u32 s49, s49, 32768", "s_and_b32 s49, s49, 0x18000", "s_add_u32 s38, s49, s21",
                  "s_add_u32 s55, s55, s56", "s_and_b32 s55, s55, s57", "s_add_u32 s37, s20, s55", "s_add_u32 s47, s47, 4"]
        def fill(n):
            for _ in range(n):
                if bk: a(bk.pop(0))
        if PRIO: a(f"s_setprio {3-i}")
        if own and i == 3:
            has_qk = False
        else:
            has_qk = True
        if own and i == E("FLAGSTEP", 2):
            a("s_cmp_lt_u32 s14, 4")
            a("s_cbranch_scc1 L_flag_out")
            a.label("L_flag_back")
        if has_qk:
            lg.need(["K"]); a(qk0)
        ex(0); ex(1); ex(2); ex(3)
        if has_qk: a(qk1)
        if i == 2 and not own:
            lg.need(["C"])
            a(f"v_readfirstlane_b32 s36, v{VCV}")
            ex(4)
            a("s_cmp_ge_u32 s36, s47")
            a("s_cbranch_scc0 L_cnt_spin")
            a.label("L_cnt_back")
            kread(); ex(5); cv(0); ex(6); cv(1)
        else:
            kread(); ex(4); ex(5); cv(0); ex(6); cv(1)
        lg.need(["V"])
        if i == 0 and not own:
            a("s_waitcnt vmcnt(4)")
            a(f"ds_add_u32 v{VCA}, v{VONE}"); lg.issue("A")
        a(pv0); ex(7); ex(8); cv(2)
        if i >= 2: dma1(2*(i-2))
        ex(9); cv(3)
        a(pv1)
        if i == 1 and not own:
            a(f"ds_read_b32 v{VCV}, v{VCR}"); lg.issue("C")
        if i >= 2: dma1(2*(i-2)+1)
        ex(10); fill(2); ex(11); fill(2); cv(4); fill(1); ex(12); fill(2); cv(5)
        a(smf); vread(); fill(1); ex(13); fill(2); ex(14); cv(6); ex(15)
        if i == 3:
            a(f"v_mov_b32 v{VC}, v{VN}")
            cv(7)
            if not own: a(f"v_add_u32 v{VN}, s48, v{VB}")
        else:
            a("s_nop 0")
            cv(7)
        assert not bk
    for i in range(4): at_step(i, True)
    stamp(a, 5)
    a("s_cmp_eq_u32 s14, 7")
    a("s_cbranch_scc0 L_at_nopoll")
    a("s_lshl_b32 s36, s10, 8")
    a(f"s_add_u32 s36, s36, {FLG_OFF}")
    a("v_lshlrev_b32 v4, 2, v2")
    a("v_add_u32 v4, s36, v4")
    poll(a, "f", 4)
    a.label("L_at_nopoll")
    a("s_barrier")
    stamp(a, 6)
    def kvstage(st):
        a(f"s_add_u32 s36, s11, {st}")
        a("s_and_b32 s36, s36, 15")
        a("s_lshl_b32 s36, s36, 14")
        a("s_add_u32 s36, s36, s20")
        for kk in range(4):
            a(f"s_add_u32 m0, s21, {st*AT_SLOT + kk*8192}")
            a(f"s_add_u32 s39, s36, {kk*4096}")
            a(f"buffer_load_dwordx4 v3, s[24:27], s39 offen sc1 lds")
    kvstage(1); kvstage(2)
    a("s_mov_b32 s23, 1")
    a(f"s_mov_b32 s48, {2*AT_SLOT}")
    a(f"v_add_u32 v{VN}, s48, v{VB}")
    a("s_mov_b32 s49, 0")
    a("s_mov_b32 s38, s21")
    a("s_add_u32 s55, s11, 4")
    a("s_and_b32 s55, s55, 15")
    a("s_lshl_b32 s55, s55, 14")
    a("s_mov_b32 s56, 16384"); a("s_mov_b32 s57, 0x3c000")
    a("s_add_u32 s37, s20, s55")
    a("s_mov_b32 s47, 4")
    a("s_mov_b32 s59, 13")
    a("s_waitcnt vmcnt(4)")
    a("s_barrier")
    kvstage(3)
    stamp(a, 7)
    a(f"ds_read_b128 {vr(K,4)}, v{VC}")
    a(f"ds_read_b128 {vr(K+4,4)}, v{VC} offset:1024")
    a("s_waitcnt lgkmcnt(0)")
    a(f"v_mfma_f32_32x32x16_bf16 {vr(S[0],16)}, {vr(K,4)}, {vr(Q,4)}, 0")
    a(f"v_mfma_f32_32x32x16_bf16 {vr(S[0],16)}, {vr(K+4,4)}, {vr(Q+4,4)}, {vr(S[0],16)}")
    a(f"ds_read_b128 {vr(K,4)}, v{VC} offset:8192")
    a(f"ds_read_b128 {vr(K+4,4)}, v{VC} offset:{8192+1024}")
    a("s_waitcnt lgkmcnt(0)")
    a("s_nop 7")
    stamp(a, 14)
    dbgt(a, 5, True); dbgt(a, 6)
    lg.q = ["K", "K", "V", "V"]
    a.raw(".p2align 6")
    a.label("L_at_loop")
    for i in range(4): at_step(i, False)
    assert lg.q == ["K", "K", "V", "V"], lg.q
    a("s_cmp_eq_u32 s23, s59")
    a("s_cbranch_scc0 L_at_loop")
    a("s_cmp_eq_u32 s23, 16")
    a("s_cbranch_scc1 L_at_tail")
    stamp(a, 15)
    a("s_mov_b32 s59, 16")
    a("s_mov_b32 s51, 131072"); a("s_mov_b32 s52, 262144"); a("s_mov_b32 s53, 393216")
    a("s_lshl_b32 s39, s11, 7")
    a("s_sub_u32 s36, 0x200000, s39")
    a("s_add_u32 s28, s40, s39"); a("s_addc_u32 s29, s41, 0"); a("s_mov_b32 s30, s36"); a("s_mov_b32 s31, 0x20000")
    a("s_lshl_b32 s20, s14, 14")
    a("s_mov_b32 s55, 0"); a("s_mov_b32 s56, 524288"); a("s_mov_b32 s57, -1")
    a("s_mov_b32 s37, s20")
    a("v_lshrrev_b32 v4, 3, v2")
    a("v_lshlrev_b32 v4, 11, v4")
    a("v_and_b32 v5, 7, v2")
    a("v_lshrrev_b32 v6, 4, v2")
    a("v_and_b32 v6, 1, v6")
    a("v_lshlrev_b32 v6, 2, v6")
    a("v_xor_b32 v5, v5, v6")
    a("v_lshlrev_b32 v5, 4, v5")
    a(f"v_add_u32 v{VD}, v4, v5")
    a("s_branch L_at_loop")
    a.label("L_cnt_spin")
    a("s_mov_b32 s39, 0")
    a.label("L_cnt_spin2")
    a(f"ds_read_b32 v{VCV}, v{VCR}")
    a("s_waitcnt lgkmcnt(0)")
    a(f"v_readfirstlane_b32 s36, v{VCV}")
    a("s_add_u32 s39, s39, 1")
    a(f"s_cmp_ge_u32 s39, {POLL_MAX*16}")
    a("s_cbranch_scc1 L_cnt_back")
    a("s_cmp_ge_u32 s36, s47")
    a("s_cbranch_scc0 L_cnt_spin2")
    a("s_branch L_cnt_back")
    a.label("L_at_tail")
    a("s_setprio 0")
    PL = P[1]
    a("s_waitcnt lgkmcnt(0)")
    a(f"v_mfma_f32_32x32x16_bf16 {vr(O,16)}, {vr(V,4)}, {vr(PL,4)}, {vr(O,16)}")
    a(f"v_mfma_f32_32x32x16_bf16 {vr(O,16)}, {vr(V+4,4)}, {vr(PL+4,4)}, {vr(O,16)}")
    a(f"v_smfmac_f32_16x16x64_bf16 {vr(L,4)}, {vr(ONES,4)}, {vr(PL,8)}, v{IDX}")
    stamp(a, 8)
    dbgt(a, 7, True); dbgt(a, 8)
    a("s_nop 8")
    a("s_nop 7")
    a(f"v_add_f32 v{L}, v{L}, v{L+1}")
    a(f"v_mov_b32 v4, {f32bits(2.0**-40)}")
    a(f"v_mov_b32 v5, {f32bits(2.0**40)}")
    a(f"v_cmp_nge_f32 vcc, v{L}, v4")
    a(f"v_cmp_nle_f32 s[44:45], v{L}, v5")
    a("s_or_b64 s[44:45], s[44:45], vcc")
    a(f"v_mov_b32 v5, {f32bits(2.0**100)}")
    for r in range(16):
        a(f"v_cmp_nlt_f32 vcc, abs(v{O+r}), v5")
        a("s_or_b64 s[44:45], s[44:45], vcc")
    a("s_cmp_lg_u64 s[44:45], 0")
    a("s_cbranch_scc1 L_at_slow")
    a.label("L_at_fin")
    a(f"v_rcp_f32 v4, v{L}")
    a("s_nop 0")
    for r in range(16): a(f"v_mul_f32 v{O+r}, v{O+r}, v4")
    for r in range(8): a(f"v_cvt_pk_bf16_f32 v{P[0]+r}, v{O+2*r}, v{O+2*r+1}")
    a("s_lshl_b32 s19, s18, 6")
    a("s_lshl_b32 s36, s17, 1")
    a("s_add_u32 s19, s19, s36")
    a("s_lshl_b32 s19, s19, 10")
    a(f"s_add_u32 s19, s19, {OF_OFF}")
    a(f"buffer_store_dwordx4 {vr(P[0],4)}, v3, s[24:27], s19 offen sc1")
    a(f"buffer_store_dwordx4 {vr(P[0]+4,4)}, v3, s[24:27], s19 offen offset:1024 sc1")
    srd(a, 32, 42, None, 0x400000)
    a("s_barrier")
    for q in range(4):
        a(f"s_add_u32 m0, s21, {3*AT_SLOT + q*8192}")
        a(f"s_add_u32 s39, s37, s{50+q}" if q else "s_mov_b32 s39, s37")
        a(f"buffer_load_dwordx4 v{VD}, s[28:31], s39 offen lds")
    a("s_waitcnt vmcnt(4)")
    a("s_lshl_b32 s36, s11, 9")
    a("s_lshl_b32 s37, s16, 7")
    a("s_add_u32 s36, s36, s37")
    a("s_lshl_b32 s37, s10, 3")
    a("s_add_u32 s36, s36, s37")
    a("s_lshl_b32 s37, s15, 2")
    a("s_add_u32 s36, s36, s37")
    a(f"s_add_u32 s36, s36, {FLG_OFF+8192}")
    a("v_mov_b32 v5, s36")
    a("v_mov_b32 v6, s46")
    a("s_mov_b64 exec, 1")
    a("buffer_store_dword v6, v5, s[24:27], 0 offen sc1")
    a("s_mov_b64 exec, -1")
    stamp(a, 9)
    a("v_lshrrev_b32 v5, 5, v2")
    a("v_and_b32 v6, 15, v2")
    a("v_lshrrev_b32 v6, 2, v6")
    a("v_lshlrev_b32 v7, 2, v5")
    a("v_add_u32 v7, v7, v6")
    a("v_lshlrev_b32 v7, 7, v7")
    a("v_lshrrev_b32 v8, 4, v2")
    a("v_and_b32 v8, 1, v8")
    a("v_lshlrev_b32 v8, 1, v8")
    a("v_and_b32 v9, 3, v2")
    a("v_lshrrev_b32 v10, 1, v9")
    a("v_add_u32 v8, v8, v10")
    a("v_lshrrev_b32 v10, 1, v6")
    a("v_lshlrev_b32 v10, 2, v10")
    a("v_xor_b32 v8, v8, v10")
    a("v_lshlrev_b32 v8, 4, v8")
    a("v_add_u32 v7, v7, v8")
    a("v_and_b32 v9, 1, v9")
    a("v_lshlrev_b32 v9, 3, v9")
    a("v_add_u32 v7, v7, v9")
    a("s_lshl_b32 s36, s15, 16")
    a(f"s_add_u32 s36, s36, {WO_LDS}")
    a("v_add_u32 v12, s36, v7")
    a("v_xor_b32 v13, 64, v12")
    ACC = 16
    for r in range(32): a(f"v_mov_b32 v{ACC+r}, 0")
    a("s_lshl_b32 s36, s10, 9")
    a("s_lshl_b32 s37, s16, 7")
    a("s_add_u32 s36, s36, s37")
    a("s_lshl_b32 s37, s15, 6")
    a("s_add_u32 s36, s36, s37")
    a(f"s_add_u32 s36, s36, {FLG_OFF+8192}")
    a("v_and_b32 v4, 15, v2")
    a("v_lshlrev_b32 v4, 2, v4")
    a("v_add_u32 v4, s36, v4")
    poll(a, "g", 4)
    stamp(a, 10)
    dbgt(a, 9, True); dbgt(a, 10)
    OFR = 64
    a("s_lshl_b32 s36, s10, 2")
    a("s_add_u32 s36, s36, s16")
    a("s_lshl_b32 s36, s36, 6")
    a("s_lshl_b32 s37, s15, 5")
    a("s_add_u32 s36, s36, s37")
    a("s_lshl_b32 s36, s36, 10")
    a(f"s_add_u32 s36, s36, {OF_OFF}")
    for k in range(32):
        if k % 4 == 0 and k: a("s_add_u32 s36, s36, 4096")
        a(f"buffer_load_dwordx4 {vr(OFR+4*k,4)}, v3, s[24:27], s36 offen offset:{(k%4)*1024} sc1")
    a("s_barrier")
    WF = [48, 56]
    lg = Lgkm(a)
    def wreads(setb, kk):
        return [f"ds_read_b64_tr_b16 {vr(setb+4*ct+2*jj,2)}, v{12+ct} offset:{kk*2048+jj*1024}" for ct in range(2) for jj in range(2)]
    for ins in wreads(WF[0], 0): a(ins); lg.issue("w0")
    for kk in range(32):
        cur = WF[kk & 1]; nxt = WF[(kk+1) & 1]
        if kk < 31:
            for ins in wreads(nxt, kk+1): a(ins); lg.issue(f"w{(kk+1)&1}")
        lg.need([f"w{kk&1}"])
        if kk % 2 == 0: a(f"s_waitcnt vmcnt({30-kk})")
        for ct in range(2):
            a(f"v_mfma_f32_32x32x16_bf16 {vr(ACC+16*ct,16)}, {vr(cur+4*ct,4)}, {vr(OFR+4*kk,4)}, {vr(ACC+16*ct,16)}")
    stamp(a, 11)
    a("s_lshl_b32 s36, s14, 12")
    a(f"s_add_u32 s36, s36, {XCH_OFF}")
    a("v_add_u32 v5, s36, v3")
    a("s_xor_b32 s36, s14, 4")
    a("s_lshl_b32 s36, s36, 12")
    a(f"s_add_u32 s36, s36, {XCH_OFF}")
    a("v_add_u32 v6, s36, v3")
    a("s_nop 9")
    a("s_cmp_eq_u32 s15, 0")
    a("s_cbranch_scc1 L_op_kh0")
    for q in range(4): a(f"ds_write_b128 v5, {vr(ACC+4*q,4)} offset:{q*1024}")
    for r in range(16): a(f"v_mov_b32 v{48+r}, v{ACC+16+r}")
    a("s_branch L_op_x")
    a.label("L_op_kh0")
    for q in range(4): a(f"ds_write_b128 v5, {vr(ACC+16+4*q,4)} offset:{q*1024}")
    for r in range(16): a(f"v_mov_b32 v{48+r}, v{ACC+r}")
    a.label("L_op_x")
    a("s_waitcnt lgkmcnt(0)")
    a("s_barrier")
    for q in range(4): a(f"ds_read_b128 {vr(64+4*q,4)}, v6 offset:{q*1024}")
    a("s_waitcnt lgkmcnt(0)")
    for r in range(16): a(f"v_add_f32 v{48+r}, v{48+r}, v{64+r}")
    for r in range(8): a(f"v_cvt_pk_bf16_f32 v{64+r}, v{48+2*r}, v{48+2*r+1}")
    a("v_and_b32 v5, 31, v2")
    a("v_lshlrev_b32 v5, 11, v5")
    a("v_lshrrev_b32 v6, 5, v2")
    a("v_lshlrev_b32 v6, 4, v6")
    a("v_add_u32 v5, v5, v6")
    for g in (0, 2):
        a(f"v_permlane32_swap_b32 v{64+2*g}, v{64+2*g+2}")
        a(f"v_permlane32_swap_b32 v{64+2*g+1}, v{64+2*g+3}")
    a("s_lshl_b32 s36, s10, 2")
    a("s_add_u32 s36, s36, s16")
    a("s_lshl_b32 s36, s36, 16")
    a("s_lshl_b32 s37, s11, 7")
    a("s_add_u32 s36, s36, s37")
    a("s_lshl_b32 s37, s15, 6")
    a("s_add_u32 s36, s36, s37")
    a(f"buffer_store_dwordx4 {vr(64,4)}, v5, s[32:35], s36 offen")
    a(f"buffer_store_dwordx4 {vr(68,4)}, v5, s[32:35], s36 offen offset:32")
    if STAMP:
        a("s_waitcnt vmcnt(0)")
        stamp(a, 12); stamp_rt(a, 13); stamp_store(a, 16)
    if DBGT:
        a("s_waitcnt vmcnt(0)")
        dbgt(a, 11, True); dbgt(a, 12)
    a("s_endpgm")
    if QPF:
        a.label("L_qpf_out")
        qpf("c")
        a("s_branch L_qpf_back")
    a.label("L_flag_out")
    a("s_waitcnt vmcnt(0)")
    a("s_lshl_b32 s36, s10, 8")
    a("s_lshl_b32 s39, s11, 4")
    a("s_add_u32 s36, s36, s39")
    a("s_lshl_b32 s39, s14, 2")
    a("s_add_u32 s36, s36, s39")
    a(f"s_add_u32 s36, s36, {FLG_OFF}")
    a("v_mov_b32 v4, s36")
    a("v_mov_b32 v5, s46")
    a("s_mov_b64 exec, 1")
    a("buffer_store_dword v5, v4, s[24:27], 0 offen sc1")
    a("s_mov_b64 exec, -1")
    a("s_branch L_flag_back")
    a.label("L_at_slow")
    X = S[0]; PX = P[0]
    a(f"v_mov_b32 v{M}, 0xff800000")
    a(f"v_mov_b32 v{L}, 0")
    for r in range(16): a(f"v_mov_b32 v{O+r}, 0")
    a("s_lshl_b32 s36, s17, 18")
    a("s_mov_b32 s47, 0")
    a.label("L_at_slow_loop")
    a(f"buffer_load_dwordx4 {vr(K,4)}, v3, s[24:27], s36 offen sc1")
    a(f"buffer_load_dwordx4 {vr(K+4,4)}, v3, s[24:27], s36 offen offset:1024 sc1")
    a(f"buffer_load_dwordx4 {vr(V,4)}, v3, s[24:27], s36 offen offset:2048 sc1")
    a(f"buffer_load_dwordx4 {vr(V+4,4)}, v3, s[24:27], s36 offen offset:3072 sc1")
    a("s_waitcnt vmcnt(0)")
    a(f"v_mfma_f32_32x32x16_bf16 {vr(X,16)}, {vr(K,4)}, {vr(Q,4)}, 0")
    a(f"v_mfma_f32_32x32x16_bf16 {vr(X,16)}, {vr(K+4,4)}, {vr(Q+4,4)}, {vr(X,16)}")
    a("s_nop 15"); a("s_nop 3")
    a(f"v_max_f32 v4, v{X}, v{X+1}")
    for r in range(2, 16): a(f"v_max_f32 v4, v4, v{X+r}")
    a("v_mov_b32 v5, v4")
    a("s_nop 1")
    a("v_permlane32_swap_b32 v4, v5")
    a("s_nop 1")
    a("v_max_f32 v4, v4, v5")
    a(f"v_max_f32 v4, v4, v{M}")
    a(f"v_sub_f32 v5, v{M}, v4")
    a("v_exp_f32 v5, v5")
    a(f"v_mov_b32 v{M}, v4")
    for r in range(16): a(f"v_sub_f32 v{X+r}, v{X+r}, v4")
    for r in range(16): a(f"v_exp_f32 v{X+r}, v{X+r}")
    a("s_nop 0")
    for r in range(8): a(f"v_cvt_pk_bf16_f32 v{PX+r}, v{X+2*r}, v{X+2*r+1}")
    a(f"v_mul_f32 v{L}, v{L}, v5")
    for r in range(16): a(f"v_mul_f32 v{O+r}, v{O+r}, v5")
    for r in range(8):
        a(f"v_lshlrev_b32 v6, 16, v{PX+r}")
        a(f"v_and_b32 v7, 0xffff0000, v{PX+r}")
        a(f"v_add_f32 v{L}, v{L}, v6")
        a(f"v_add_f32 v{L}, v{L}, v7")
    a("s_nop 1")
    a(f"v_mfma_f32_32x32x16_bf16 {vr(O,16)}, {vr(V,4)}, {vr(PX,4)}, {vr(O,16)}")
    a(f"v_mfma_f32_32x32x16_bf16 {vr(O,16)}, {vr(V+4,4)}, {vr(PX+4,4)}, {vr(O,16)}")
    a("s_nop 15"); a("s_nop 3")
    a("s_add_u32 s36, s36, 4096")
    a("s_add_u32 s47, s47, 1")
    a("s_cmp_lt_u32 s47, 64")
    a("s_cbranch_scc1 L_at_slow_loop")
    a(f"v_mov_b32 v5, v{L}")
    a(f"v_mov_b32 v4, v{L}")
    a("s_nop 1")
    a("v_permlane32_swap_b32 v4, v5")
    a("s_nop 1")
    a(f"v_add_f32 v{L}, v4, v5")
    a("s_branch L_at_fin")
    a.label("L_end")
    a("s_endpgm")
    return a.text()

HEADER = """; Fused multi-head attention: QKV projection -> softmax attention -> output projection, one persistent launch.
; @launch grid=(256,1,1) block=(512,1,1) lds=163840
"""
def main(out):
    vg = 256 if (STAMP or DBGT) else 244
    sg = 96 if (STAMP or DBGT) else 64
    txt = HEADER + '.amdgcn_target "amdgcn-amd-amdhsa--gfx950"\n.text\n' + gen()
    txt += f""".section .rodata,"a"
.p2align 6
.amdhsa_kernel {KNAME}
  .amdhsa_next_free_vgpr {vg}
  .amdhsa_next_free_sgpr {sg}
  .amdhsa_accum_offset {(vg+3)//4*4}
  .amdhsa_group_segment_fixed_size 0
  .amdhsa_kernarg_size 48
  .amdhsa_user_sgpr_count 2
  .amdhsa_user_sgpr_kernarg_segment_ptr 1
  .amdhsa_system_sgpr_workgroup_id_x 1
.end_amdhsa_kernel
"""
    open(out, "w").write(txt)
if __name__ == "__main__":
    main(sys.argv[1] if len(sys.argv) > 1 else "cdna_kernels/%s.s" % NAME)
```

```python
import sys, os, struct
NAME = "standalone__softmax_full_mha__prompt"
KNAME = NAME + "_kernel"
E = lambda k, d=0: int(os.environ.get(k, str(d)))
STAMP = E("STAMP")
STAMP_OFF = 32 << 20

class A:
    def __init__(self): self.l = []
    def __call__(self, s): self.l.append("    " + s)
    def label(self, s): self.l.append(s + ":")
    def raw(self, s): self.l.append(s)
    def text(self): return "\n".join(self.l) + "\n"
def vr(b, n=1): return f"v{b}" if n == 1 else f"v[{b}:{b+n-1}]"
def f32bits(x): return struct.unpack('<I', struct.pack('<f', x))[0]

class Lgkm:
    def __init__(self, a): self.a = a; self.q = []
    def issue(self, tag): self.q.append(tag)
    def need(self, tags):
        idx = -1
        for i, t in enumerate(self.q):
            if t in tags: idx = i
        if idx < 0: return
        n = len(self.q) - 1 - idx
        assert n <= 15
        self.a(f"s_waitcnt lgkmcnt({n})")
        self.q = self.q[idx+1:]
    def all(self):
        if self.q:
            self.a("s_waitcnt lgkmcnt(0)")
            self.q = []

KVF_OFF = 0
OF_OFF  = 8 << 20
FLG_OFF = 12 << 20
WS_USED = 13 << 20
QSCALE = 0.17677669529663687 * 1.4426950408889634
G1_NSLOT = 4; G1_SLOT = 40960
AT_SLOT = 32768
QX_OFF = 131072
AT_R = 4
WO_LDS = 0
CNT_OFF = 147456 + 64
SCR_OFF = 147456 + 1024
XCH_OFF = 131072
EP_OFF = 147456
POLL_MAX = 40000

def stamp(a, k):
    if STAMP:
        a(f"s_memtime s[{60+2*k}:{61+2*k}]"); a("s_waitcnt lgkmcnt(0)")
def stamp_rt(a, k):
    if STAMP:
        a(f"s_memrealtime s[{60+2*k}:{61+2*k}]"); a("s_waitcnt lgkmcnt(0)")
def stamp_store(a, n):
    if STAMP:
        a(f"s_lshl_b32 s58, s2, 3"); a(f"s_add_u32 s58, s58, s14"); a(f"s_lshl_b32 s58, s58, 7")
        a(f"s_add_u32 s58, s58, {STAMP_OFF}")
        a(f"s_add_u32 s56, s8, s58"); a(f"s_addc_u32 s57, s9, 0")
        a("v_mov_b32 v254, 0")
        for k in range(n):
            a(f"v_mov_b32 v255, s{60+2*k}")
            a(f"global_store_dword v254, v255, s[56:57] offset:{4*k}")
        a("s_waitcnt vmcnt(0)")

DBGT = E("DBGT")
DSLOT = {1:0, 13:1, 3:2, 5:3, 7:4, 9:5, 11:6}
def dbgt(a, slot, neg=False):
    if DBGT and neg:
        i = DSLOT[slot]
        a(f"s_memrealtime s[{60+2*i}:{61+2*i}]")
        a("s_waitcnt lgkmcnt(0)")
        if slot == 11:
            a(f"s_and_b32 s92, s2, 0x7f")
            a("s_cmp_eq_u32 s92, 0")
            a("s_cbranch_scc0 L_dbg_skip")
            a("s_cmp_eq_u32 s14, 4")
            a("s_cbranch_scc0 L_dbg_skip")
            a("s_lshr_b32 s92, s2, 7")
            a("s_mul_i32 s92, s92, 28")
            a("v_mov_b32 v251, s92")
            for k in range(7):
                a(f"v_mov_b32 v250, s{60+2*k}")
                a(f"global_store_dword v251, v250, s[90:91] offset:{4+4*k}")
            a.label("L_dbg_skip")

def srd(a, d, plo, off, nrec):
    if off is None:
        a(f"s_mov_b32 s{d}, s{plo}"); a(f"s_mov_b32 s{d+1}, s{plo+1}")
    else:
        a(f"s_add_u32 s{d}, s{plo}, {off}"); a(f"s_addc_u32 s{d+1}, s{plo+1}, 0")
    a(f"s_mov_b32 s{d+2}, {nrec}"); a(f"s_mov_b32 s{d+3}, 0x20000")

def poll(a, name, voff, nlanes_mask_all=True):
    a(f"s_mov_b32 s47, 0")
    a.label(f"L_poll_{name}")
    a(f"buffer_load_dword v5, v{voff}, s[24:27], 0 offen sc1")
    a("s_waitcnt vmcnt(0)")
    a("v_cmp_ne_u32 vcc, s46, v5")
    a("s_add_u32 s47, s47, 1")
    a("s_cmp_eq_u64 vcc, 0")
    a(f"s_cbranch_scc1 L_poll_{name}_done")
    a(f"s_cmp_ge_u32 s47, {POLL_MAX}")
    a(f"s_cbranch_scc1 L_poll_{name}_done")
    a("s_sleep 1")
    a(f"s_branch L_poll_{name}")
    a.label(f"L_poll_{name}_done")

def gen():
    a = A()
    a.raw(f".globl {KNAME}\n.p2align 8\n.type {KNAME},@function\n{KNAME}:")
    a("s_cmp_ge_u32 s2, 256")
    a("s_cbranch_scc1 L_end")
    a("s_load_dwordx4 s[4:7], s[0:1], 0")
    a("s_load_dwordx2 s[8:9], s[0:1], 40")
    a("s_load_dwordx4 s[40:43], s[0:1], 16")
    a("s_load_dwordx2 s[44:45], s[0:1], 32")
    a("s_and_b32 s12, s2, 7")
    a("s_lshr_b32 s11, s2, 3")
    a("s_mov_b32 s13, 0")
    if E("MAP", 2) == 0:
        a("s_lshr_b32 s10, s12, 1")
        a("s_lshl_b32 s10, s10, 2")
        a("s_and_b32 s16, s11, 3")
        a("s_add_u32 s10, s10, s16")
        a("s_lshr_b32 s11, s11, 2")
        a("s_and_b32 s12, s12, 1")
        a("s_lshl_b32 s12, s12, 3")
        a("s_add_u32 s11, s11, s12")
    elif E("MAP", 2) == 2:
        a("s_lshl_b32 s10, s12, 1")
        a("s_and_b32 s16, s11, 1")
        a("s_add_u32 s10, s10, s16")
        a("s_lshr_b32 s11, s11, 1")
    else:
        a("s_and_b32 s10, s12, 1")
        a("s_lshl_b32 s10, s10, 3")
        a("s_and_b32 s16, s11, 7")
        a("s_add_u32 s10, s10, s16")
        a("s_lshr_b32 s11, s11, 3")
        a("s_lshr_b32 s12, s12, 1")
        a("s_lshl_b32 s12, s12, 2")
        a("s_add_u32 s11, s11, s12")
    a("v_lshrrev_b32 v1, 6, v0")
    a("v_and_b32 v2, 63, v0")
    a("v_lshlrev_b32 v3, 4, v2")
    a("v_readfirstlane_b32 s14, v1")
    a("s_waitcnt lgkmcnt(0)")
    stamp_rt(a, 0); stamp(a, 1)
    if DBGT:
        a("s_mov_b32 s90, s44"); a("s_mov_b32 s91, s45")
    dbgt(a, 1, True); dbgt(a, 2)
    srd(a, 24, 8, None, WS_USED)
    a("s_cmp_lt_u32 s14, 4")
    a("s_cbranch_scc1 L_g1_compute")
    a("s_sub_u32 s15, s14, 4")
    a("s_lshl_b32 s16, s11, 18")
    a("s_sub_u32 s17, 0x400000, s16")
    a("s_add_u32 s28, s4, s16"); a("s_addc_u32 s29, s5, 0"); a("s_mov_b32 s30, s17"); a("s_mov_b32 s31, 0x20000")
    a("s_lshl_b32 s16, s10, 7")
    a("s_sub_u32 s17, 0x600000, s16")
    a("s_add_u32 s32, s6, s16"); a("s_addc_u32 s33, s7, 0"); a("s_mov_b32 s34, s17"); a("s_mov_b32 s35, 0x20000")
    a("v_lshrrev_b32 v4, 3, v2")
    a("v_lshlrev_b32 v5, 11, v4")
    a("v_and_b32 v6, 7, v2")
    a("v_lshrrev_b32 v7, 4, v2")
    a("v_xor_b32 v8, v6, v7")
    a("v_lshlrev_b32 v8, 4, v8")
    a("v_add_u32 v5, v5, v8")
    a("s_lshl_b32 s16, s15, 16")
    a("v_add_u32 v10, s16, v5")
    a("v_xor_b32 v11, 64, v10")
    a("v_mul_u32_u24 v5, 6144, v4")
    a("v_and_b32 v7, 1, v7")
    a("v_lshlrev_b32 v7, 2, v7")
    a("v_xor_b32 v8, v6, v7")
    a("v_lshlrev_b32 v8, 4, v8")
    a("v_add_u32 v5, v5, v8")
    a("s_mul_i32 s16, s15, 98304")
    a("v_add_u32 v12, s16, v5")
    a("s_lshl_b32 s18, s15, 12")
    a("s_lshl_b32 s19, s15, 11")
    a("s_add_u32 s19, s19, 16384")
    a("s_mov_b32 s20, s13")
    a("s_mov_b32 s36, 0")
    first = [True]
    if E("DIAG1"): stamp(a, 4)
    def issue_stage():
        a("s_lshl_b32 s21, s20, 7")
        a("s_mul_i32 s22, s20, 393216")
        a("s_add_u32 s37, s36, s18")
        a("s_add_u32 s39, s36, s19")
        for i in range(4):
            a(f"s_add_u32 m0, s37, {i*1024}")
            a(f"s_add_u32 s38, s21, {i*16384}")
            a(f"buffer_load_dwordx4 v{10+(i&1)}, s[28:31], s38 offen lds")
            if E("DIAG1") and first[0] and i in (0, 3): stamp(a, 5 if i == 0 else 6)
        for t in range(3):
            for kb in range(2):
                a(f"s_add_u32 m0, s39, {t*8192+kb*1024}")
                a(f"s_add_u32 s38, s22, {t*2048+kb*49152}")
                a(f"buffer_load_dwordx4 v12, s[32:35], s38 offen lds")
                if E("DIAG1") and first[0] and kb == 0 and t == 0: stamp(a, 7)
        first[0] = False
        a("s_add_u32 s20, s20, 1")
        a("s_and_b32 s20, s20, 15")
        a(f"s_add_u32 s36, s36, {G1_SLOT}")
        a(f"s_cmp_eq_u32 s36, {G1_SLOT*G1_NSLOT}")
        a("s_cselect_b32 s36, 0, s36")
    issue_stage()
    stamp(a, 2)
    issue_stage()
    a("s_waitcnt vmcnt(10)")
    stamp(a, 3)
    a("s_barrier")
    if E("DIAG1"):
        a("s_waitcnt vmcnt(0)"); stamp(a, 8); stamp_rt(a, 13); stamp_store(a, 16); a("s_endpgm")
    dbgt(a, 13, True); dbgt(a, 14)
    issue_stage(); issue_stage()
    NPF = 0
    if E("LPF", 0):
        a("s_lshl_b32 s37, s2, 14")
        a("s_lshl_b32 s38, s15, 12")
        a("s_add_u32 s37, s37, s38")
        a("v_add_u32 v4, s37, v3")
        for q in range(4): a(f"global_load_dwordx4 v[16:19], v4, s[4:5] offset:{q*1024}")
        a("s_mul_i32 s37, s2, 24576")
        a("s_mul_i32 s38, s15, 6144")
        a("s_add_u32 s37, s37, s38")
        a("v_add_u32 v4, s37, v3")
        for q in range(4): a(f"global_load_dwordx4 v[16:19], v4, s[6:7] offset:{q*1024}")
        a("v_add_u32 v4, 4096, v4")
        for q in range(2): a(f"global_load_dwordx4 v[16:19], v4, s[6:7] offset:{q*1024}")
        NPF = 10
    if E("L2PF", 0):
        a("s_lshr_b32 s36, s2, 3")
        a("s_and_b32 s37, s36, 3")
        a("s_lshr_b32 s36, s36, 2")
        a("v_lshrrev_b32 v4, 3, v2")
        a("v_lshlrev_b32 v5, 11, v4")
        a("v_and_b32 v6, 7, v2")
        a("v_lshlrev_b32 v6, 4, v6")
        a("v_add_u32 v13, v5, v6")
        a("s_lshl_b32 s37, s37, 16")
        a("v_add_u32 v13, s37, v13")
        a("v_mul_u32_u24 v14, 6144, v4")
        a("v_add_u32 v14, v14, v6")
        a("s_mul_i32 s36, s36, 49152")
        a("v_add_u32 v14, s36, v14")
        for q in range(3):
            a(f"s_add_u32 s36, s15, {4+4*q}")
            a("s_add_u32 s36, s36, s13")
            a("s_and_b32 s36, s36, 15")
            a("s_lshl_b32 s37, s36, 7")
            a("s_mul_i32 s39, s36, 393216")
            for t in range(3):
                a(f"s_add_u32 s38, s39, {t*2048}")
                a(f"buffer_load_dwordx4 v[16:19], v14, s[32:35], s38 offen")
            for p in range(4):
                a(f"s_add_u32 s38, s37, {p*16384}")
                a(f"buffer_load_dwordx4 v[16:19], v13, s[28:31], s38 offen")
        NPF = 21
        a("s_mov_b32 s36, %d" % 0)
    a("s_mov_b32 s36, 0")
    for k in range(3):
        a(f"s_waitcnt vmcnt({20+NPF})")
        a("s_barrier")
        issue_stage()
    a("s_mov_b32 s23, 3")
    a.label("L_g1_ldloop")
    a(f"s_waitcnt vmcnt({10*(G1_NSLOT-2)})")
    a("s_barrier")
    issue_stage()
    a("s_add_u32 s23, s23, 1")
    a(f"s_cmp_lt_u32 s23, {16-G1_NSLOT}")
    a("s_cbranch_scc1 L_g1_ldloop")
    for k in range(G1_NSLOT):
        a(f"s_waitcnt vmcnt({10*max(0, G1_NSLOT-2-k)})")
        a("s_barrier")
    a("s_branch L_g1_done")
    a.label("L_g1_compute")
    ACC = 128; SETS = [64, 84]; XA = 104; WA = 108
    QPF = E("QPF", 1)
    def qpf(tag):
        a("s_cmp_eq_u32 s14, 3")
        a(f"s_cbranch_scc1 L_qpf_x{tag}")
        a("s_cmp_eq_u32 s14, 0")
        a(f"s_cbranch_scc0 L_qpf_done{tag}")
        a("global_load_dword v16, v14, s[6:7]")
        a("v_add_u32 v14, 1572864, v14")
        a(f"s_branch L_qpf_done{tag}")
        a.label(f"L_qpf_x{tag}")
        a("global_load_dwordx4 v[16:19], v14, s[4:5]")
        a("v_add_u32 v13, 4096, v14")
        a("global_load_dwordx4 v[16:19], v15, s[4:5]")
        a("global_load_dwordx4 v[16:19], v13, s[4:5]")
        a("v_add_u32 v13, 4096, v15")
        a("v_add_u32 v14, 512, v14")
        a("global_load_dwordx4 v[16:19], v13, s[4:5]")
        a("v_add_u32 v15, 512, v15")
        a.label(f"L_qpf_done{tag}")
    if QPF:
        a("s_cmp_eq_u32 s14, 3")
        a("s_cbranch_scc1 L_qpf_setx")
        a("v_min_u32 v14, 47, v2")
        a("s_mul_i32 s16, s11, 48")
        a("v_add_u32 v14, s16, v14")
        a("s_mov_b32 s17, 0x5556")
        a("v_mul_u32_u24 v15, s17, v14")
        a("v_lshrrev_b32 v15, 16, v15")
        a("v_mul_u32_u24 v13, 3, v15")
        a("v_sub_u32 v13, v14, v13")
        a("v_mul_u32_u24 v14, 6144, v15")
        a("v_lshlrev_b32 v13, 11, v13")
        a("v_add_u32 v14, v14, v13")
        a("s_lshl_b32 s16, s10, 7")
        a("v_add_u32 v14, s16, v14")
        a("v_mov_b32 v15, v14")
        a("s_branch L_qpf_set")
        a.label("L_qpf_setx")
        a("v_lshrrev_b32 v14, 5, v2")
        a("v_lshlrev_b32 v14, 11, v14")
        a("v_and_b32 v15, 31, v2")
        a("v_lshlrev_b32 v15, 4, v15")
        a("v_add_u32 v14, v14, v15")
        a("s_lshl_b32 s16, s2, 14")
        a("v_add_u32 v14, s16, v14")
        a("v_add_u32 v15, 8192, v14")
        a.label("L_qpf_set")
        qpf("a")
    a("s_cmp_eq_u32 s14, 0")
    a("s_cbranch_scc0 L_nocas")
    a("v_mov_b32 v243, 0")
    a("s_cmp_eq_u32 s2, 0")
    a("s_cbranch_scc0 L_nocas")
    a("s_memrealtime s[16:17]")
    a("s_waitcnt lgkmcnt(0)")
    a("s_or_b32 s16, s16, 1")
    a("v_mov_b32 v240, s16")
    a("s_mov_b64 exec, 1")
    a("global_store_dword v243, v240, s[44:45] sc1")
    a("s_mov_b64 exec, -1")
    a.label("L_nocas")
    a("s_lshl_b32 s16, s2, 13")
    a("s_lshl_b32 s17, s14, 11")
    a("s_add_u32 s16, s16, s17")
    a("v_add_u32 v4, s16, v3")
    a("global_load_dwordx4 v[224:227], v4, s[40:41]")
    a("global_load_dwordx4 v[228:231], v4, s[40:41] offset:1024")
    a("s_getpc_b64 s[16:17]")
    a.label("L_pc")
    a("s_sub_u32 s16, s16, L_pc-" + KNAME)
    a("s_subb_u32 s17, s17, 0")
    a("v_lshlrev_b32 v4, 7, v2")
    a("s_lshl_b32 s18, s14, 13")
    a("v_add_u32 v4, s18, v4")
    a("v_cmp_gt_u32 vcc, L_end-" + KNAME + ", v4")
    a("s_and_saveexec_b64 s[18:19], vcc")
    a("s_cbranch_execz L_nocode")
    a("global_load_dword v232, v4, s[16:17]")
    a.label("L_nocode")
    a("s_mov_b64 exec, s[18:19]")
    a("s_lshr_b32 s15, s14, 1")
    a("s_and_b32 s16, s14, 1")
    a("v_and_b32 v4, 31, v2")
    a("s_lshl_b32 s17, s15, 6")
    a("v_add_u32 v4, s17, v4")
    a("v_lshlrev_b32 v4, 7, v4")
    a("v_lshrrev_b32 v5, 1, v2")
    a("v_and_b32 v5, 7, v5")
    a("v_lshrrev_b32 v6, 5, v2")
    a("v_xor_b32 v5, v5, v6")
    for ks in range(4):
        a(f"v_xor_b32 v7, {2*ks}, v5")
        a(f"v_lshlrev_b32 v7, 4, v7")
        a(f"v_add_u32 v{XA+ks}, v4, v7")
    a("v_and_b32 v7, 15, v2")
    a("v_lshrrev_b32 v7, 2, v7")
    a("v_lshlrev_b32 v8, 3, v6")
    a("v_add_u32 v8, v8, v7")
    a("v_lshlrev_b32 v8, 7, v8")
    a("v_lshrrev_b32 v9, 4, v2")
    a("v_and_b32 v9, 1, v9")
    a("v_lshlrev_b32 v9, 1, v9")
    a("v_and_b32 v10, 3, v2")
    a("v_lshrrev_b32 v11, 1, v10")
    a("v_add_u32 v9, v9, v11")
    a("s_lshl_b32 s17, s16, 2")
    a("v_add_u32 v9, s17, v9")
    a("v_lshrrev_b32 v11, 1, v7")
    a("v_lshlrev_b32 v11, 2, v11")
    a("v_xor_b32 v9, v9, v11")
    a("v_lshlrev_b32 v9, 4, v9")
    a("v_add_u32 v8, v8, v9")
    a("v_and_b32 v10, 1, v10")
    a("v_lshlrev_b32 v10, 3, v10")
    a("v_add_u32 v8, v8, v10")
    a(f"v_add_u32 v{WA}, 16384, v8")
    for r in range(96): a(f"v_mov_b32 v{ACC+r}, 0")
    if E("PREF", 0):
        a("s_lshl_b32 s19, s2, 14")
        a("s_lshl_b32 s17, s14, 12")
        a("s_add_u32 s19, s19, s17")
        a("v_add_u32 v4, s19, v3")
        for q in range(4): a(f"global_load_dwordx4 v[{16+4*q}:{19+4*q}], v4, s[4:5] offset:{q*1024}")
        a("s_mul_i32 s19, s2, 24576")
        a("s_mul_i32 s17, s14, 6144")
        a("s_add_u32 s19, s19, s17")
        a("v_add_u32 v4, s19, v3")
        for q in range(4): a(f"global_load_dwordx4 v[{32+4*q}:{35+4*q}], v4, s[6:7] offset:{q*1024}")
        a("v_add_u32 v4, 4096, v4")
        for q in range(2): a(f"global_load_dwordx4 v[{48+4*q}:{51+4*q}], v4, s[6:7] offset:{q*1024}")
    a("s_mov_b32 s18, 0")
    a(f"s_mov_b32 s21, {-(G1_NSLOT-1)*G1_SLOT & 0xffffffff}")
    a(f"s_mov_b32 s22, {G1_SLOT}")
    a("s_barrier")
    if E("DIAG1"):
        a("s_waitcnt vmcnt(0)"); a("s_endpgm")
    stamp(a, 2)
    a("v_mov_b32 v243, 0")
    a("global_load_dword v242, v243, s[44:45] sc1")
    if QPF: qpf("b")
    lg = Lgkm(a)
    def reads(setb, ks, tagp):
        x0, x1, w0, w1, w2 = setb, setb+4, setb+8, setb+12, setb+16
        return [(tagp+"x0", f"ds_read_b128 {vr(x0,4)}, v{XA+ks}"),
                (tagp+"w0", f"ds_read_b64_tr_b16 {vr(w0,2)}, v{WA} offset:{ks*2048}"),
                (tagp+"w0", f"ds_read_b64_tr_b16 {vr(w0+2,2)}, v{WA} offset:{ks*2048+512}"),
                (tagp+"x1", f"ds_read_b128 {vr(x1,4)}, v{XA+ks} offset:4096"),
                (tagp+"w1", f"ds_read_b64_tr_b16 {vr(w1,2)}, v{WA} offset:{8192+ks*2048}"),
                (tagp+"w1", f"ds_read_b64_tr_b16 {vr(w1+2,2)}, v{WA} offset:{8192+ks*2048+512}"),
                (tagp+"w2", f"ds_read_b64_tr_b16 {vr(w2,2)}, v{WA} offset:{16384+ks*2048}"),
                (tagp+"w2", f"ds_read_b64_tr_b16 {vr(w2+2,2)}, v{WA} offset:{16384+ks*2048+512}")]
    def mfma(setb, i, t):
        x = setb + 4*i; w = setb + 8 + 4*t; acc = ACC + 16*(i*3+t)
        if t < 2: return f"v_mfma_f32_32x32x16_bf16 {vr(acc,16)}, {vr(w,4)}, {vr(x,4)}, {vr(acc,16)}"
        return f"v_mfma_f32_32x32x16_bf16 {vr(acc,16)}, {vr(x,4)}, {vr(w,4)}, {vr(acc,16)}"
    for tag, ins in reads(SETS[0], 0, "A"):
        a(ins); lg.issue(tag)
    a.raw(".p2align 6")
    a.label("L_g1_loop")
    order = [(0,1),(0,2),(1,1),(1,2),(0,0),(1,0)]
    needs = [["x0","w1"],["w2"],["x1"],[],["w0"],[]]
    def reads2(setb, ks, tagp):
        R = reads(setb, ks, tagp)
        return [R[0], R[4], R[5], R[6], R[7], R[3], R[1], R[2]]
    a.l = a.l[:-10]; lg.q = []
    for tag, ins in reads2(SETS[0], 0, "A"):
        a(ins); lg.issue(tag)
    a.raw(".p2align 6")
    a.label("L_g1_loop")
    for ks in range(4):
        cur = SETS[ks & 1]; nxt = SETS[(ks+1) & 1]
        cp = "AB"[ks & 1]; np_ = "AB"[(ks+1) & 1]
        if ks == 3:
            lg.all()
            a("s_add_u32 s18, s18, 1")
            if QPF:
                a("s_and_b32 s19, s18, 11")
                a("s_cmp_eq_u32 s19, 2")
                a("s_cbranch_scc1 L_qpf_out")
                a.label("L_qpf_back")
            a("s_and_b32 s19, s18, %d" % (G1_NSLOT-1))
            a("s_cmp_eq_u32 s19, 0")
            a("s_cselect_b32 s20, s21, s22")
            for k in range(4): a(f"v_add_u32 v{XA+k}, s20, v{XA+k}")
            a(f"v_add_u32 v{WA}, s20, v{WA}")
            a("s_barrier")
        R = reads2(nxt, (ks+1) & 3, np_)
        slots = [[], R[0:2], R[2:4], R[4:6], R[6:8], []]
        for k in range(6):
            for tag, ins in slots[k]:
                a(ins); lg.issue(tag)
            lg.need([cp+t for t in needs[k]])
            a(mfma(cur, *order[k]))
    a("s_cmp_lt_u32 s18, 16")
    a("s_cbranch_scc1 L_g1_loop")
    a("s_waitcnt lgkmcnt(0) vmcnt(0)")
    stamp(a, 3)
    a("s_lshl_b32 s17, s10, 1")
    a("s_add_u32 s17, s17, s16")
    a("s_lshl_b32 s19, s11, 2")
    a("s_lshl_b32 s20, s15, 1")
    a("s_add_u32 s19, s19, s20")
    a("s_lshl_b32 s20, s17, 6")
    a("s_add_u32 s20, s20, s19")
    a("s_lshl_b32 s22, s20, 12")
    a("s_lshl_b32 s20, s15, 14")
    a("s_lshl_b32 s21, s16, 12")
    a("s_add_u32 s20, s20, s21")
    a("v_add_u32 v4, s20, v3")
    a("s_lshl_b32 s20, s16, 2")
    a("s_lshl_b32 s21, s15, 1")
    a("s_add_u32 s20, s20, s21")
    a("s_lshl_b32 s20, s20, 11")
    a(f"s_add_u32 s20, s20, {QX_OFF}")
    a("v_add_u32 v5, s20, v3")
    a(f"s_mov_b32 s23, {f32bits(QSCALE)}")
    a("s_nop 7")
    T = 64
    n = 0
    for i in range(2):
        for t in (1, 2):
            acc = ACC + 16*(i*3+t); base = T + 8*(n % 4); n += 1
            for r in range(8): a(f"v_cvt_pk_bf16_f32 v{base+r}, v{acc+2*r}, v{acc+2*r+1}")
            o = i*4096 + (t-1)*2048
            a(f"s_add_u32 s28, s22, {o}")
            a(f"buffer_store_dwordx4 {vr(base,4)}, v3, s[24:27], s28 offen sc1")
            a(f"buffer_store_dwordx4 {vr(base+4,4)}, v3, s[24:27], s28 offen offset:1024 sc1")
            a(f"ds_write_b128 v4, {vr(base,4)} offset:{i*8192+(t-1)*2048}")
            a(f"ds_write_b128 v4, {vr(base+4,4)} offset:{i*8192+(t-1)*2048+1024}")
    for i in range(2):
        acc = ACC + 16*(i*3); base = 96 + 8*i
        for r in range(16): a(f"v_mul_f32 v{acc+r}, s23, v{acc+r}")
        for r in range(8): a(f"v_cvt_pk_bf16_f32 v{base+r}, v{acc+2*r}, v{acc+2*r+1}")
        a(f"ds_write_b128 v5, {vr(base,4)} offset:{i*2048}")
        a(f"ds_write_b128 v5, {vr(base+4,4)} offset:{i*2048+1024}")
    a("s_cmp_eq_u32 s14, 0")
    a("s_cbranch_scc0 L_noep")
    a("s_mov_b32 s19, 0")
    a.label("L_tag_spin")
    a("v_readfirstlane_b32 s20, v242")
    a("s_add_u32 s19, s19, 1")
    a("s_cmp_lg_u32 s20, 0")
    a("s_cbranch_scc1 L_tag_ok")
    a(f"s_cmp_ge_u32 s19, {POLL_MAX}")
    a("s_cbranch_scc1 L_tag_ok")
    a("s_sleep 1")
    a("global_load_dword v242, v243, s[44:45] sc1")
    a("s_waitcnt vmcnt(0)")
    a("s_branch L_tag_spin")
    a.label("L_tag_ok")
    a(f"v_mov_b32 v6, {EP_OFF}")
    a("s_mov_b64 exec, 1")
    a("ds_write_b32 v6, v242")
    a("v_mov_b32 v7, 0")
    a(f"ds_write_b64 v6, v[7:8] offset:64" if False else f"ds_write_b32 v6, v7 offset:64")
    a(f"ds_write_b32 v6, v7 offset:68")
    a("s_mov_b64 exec, -1")
    a.label("L_noep")
    a("s_waitcnt lgkmcnt(0)")
    a.label("L_g1_done")
    a("s_barrier")
    dbgt(a, 3, True); dbgt(a, 4)
    stamp(a, 4)
    Q, K, V = 8, 16, 24
    S = [32, 48]; P = [64, 72]; O = 80; L = 96; ONES = 100; IDX = 104; VC = 105; VN = 106; M = 107; VB = 108; VD = 109
    a("s_lshr_b32 s15, s14, 2")
    a("s_and_b32 s16, s14, 3")
    a("s_lshl_b32 s17, s10, 1")
    a("s_add_u32 s17, s17, s15")
    a("s_lshl_b32 s18, s11, 2")
    a("s_add_u32 s18, s18, s16")
    a("s_lshl_b32 s20, s14, 11")
    a(f"s_add_u32 s20, s20, {QX_OFF}")
    a("v_add_u32 v4, s20, v3")
    a(f"ds_read_b128 {vr(Q,4)}, v4")
    a(f"ds_read_b128 {vr(Q+4,4)}, v4 offset:1024")
    a(f"v_mov_b32 v6, {EP_OFF}")
    a("ds_read_b32 v6, v6")
    a("s_lshl_b32 s22, s15, 12")
    a(f"v_add_u32 v{VB}, s22, v3")
    a(f"v_mov_b32 v{VC}, v{VB}")
    a(f"v_add_u32 v{VN}, {AT_SLOT}, v{VB}")
    a(f"ds_read_b128 {vr(K,4)}, v{VC}")
    a(f"ds_read_b128 {vr(K+4,4)}, v{VC} offset:1024")
    for r in range(16): a(f"v_mov_b32 v{O+r}, 0")
    for r in range(4): a(f"v_mov_b32 v{L+r}, 0")
    for r in range(8): a(f"v_mov_b32 v{P[1]+r}, 0")
    a("v_and_b32 v4, 6, v2")
    a("v_mov_b32 v5, 0x3f803f80")
    a("v_cmp_eq_u32 vcc, 0, v4")
    a("s_nop 1")
    a(f"v_cndmask_b32 v{ONES}, 0, v5, vcc")
    a(f"v_cndmask_b32 v{ONES+1}, 0, v5, vcc")
    a("v_cmp_eq_u32 vcc, 4, v4")
    a("s_nop 1")
    a(f"v_cndmask_b32 v{ONES+2}, 0, v5, vcc")
    a(f"v_cndmask_b32 v{ONES+3}, 0, v5, vcc")
    a("v_and_b32 v4, 1, v2")
    a("v_mov_b32 v5, 0x44444444")
    a("v_mov_b32 v7, 0xeeeeeeee")
    a("v_cmp_eq_u32 vcc, 0, v4")
    a("s_nop 1")
    a(f"v_cndmask_b32 v{IDX}, v7, v5, vcc")
    VONE = 110; VCA = 111; VCR = 112; VCV = 113
    a("s_lshl_b32 s20, s17, 18")
    a("s_lshl_b32 s21, s16, 10")
    a("s_add_u32 s20, s20, s21")
    a("s_lshl_b32 s21, s14, 10")
    a("s_mov_b32 s51, 4096"); a("s_mov_b32 s52, 8192"); a("s_mov_b32 s53, 12288")
    for q in range(4): a(f"s_mov_b32 s{28+q}, s{24+q}")
    a(f"v_mov_b32 v{VD}, v3")
    a(f"v_mov_b32 v{VONE}, 1")
    a("s_lshl_b32 s36, s15, 2")
    a(f"s_add_u32 s36, s36, {CNT_OFF}")
    a(f"v_mov_b32 v{VCR}, s36")
    a("s_lshl_b32 s37, s14, 8")
    a(f"s_add_u32 s37, s37, {SCR_OFF}")
    a("v_lshlrev_b32 v4, 2, v2")
    a(f"v_add_u32 v{VCA}, s37, v4")
    a("v_cmp_eq_u32 vcc, 0, v2")
    a("s_nop 1")
    a(f"v_cndmask_b32 v{VCA}, v{VCA}, v{VCR}, vcc")
    a("s_waitcnt lgkmcnt(0)")
    a("v_readfirstlane_b32 s46, v6")
    a(f"v_mfma_f32_32x32x16_bf16 {vr(S[0],16)}, {vr(K,4)}, {vr(Q,4)}, 0")
    a(f"v_mfma_f32_32x32x16_bf16 {vr(S[0],16)}, {vr(K+4,4)}, {vr(Q+4,4)}, {vr(S[0],16)}")
    lg = Lgkm(a)
    a(f"ds_read_b128 {vr(K,4)}, v{VC} offset:8192"); lg.issue("K")
    a(f"ds_read_b128 {vr(K+4,4)}, v{VC} offset:{8192+1024}"); lg.issue("K")
    a(f"ds_read_b128 {vr(V,4)}, v{VC} offset:2048"); lg.issue("V")
    a(f"ds_read_b128 {vr(V+4,4)}, v{VC} offset:3072"); lg.issue("V")
    a("s_nop 7")
    PRIO = E("PRIO", 1)
    def at_step(i, own):
        X = S[i & 1]; Y = S[(i+1) & 1]; PX = P[i & 1]; PY = P[(i+1) & 1]
        ex = lambda r: a(f"v_exp_f32 v{X+r}, v{X+r}")
        cv = lambda r: a(f"v_cvt_pk_bf16_f32 v{PX+r}, v{X+2*r}, v{X+2*r+1}")
        def kread():
            t = i + 2
            if own and t >= 4: return
            b = VC if t < 4 else VN
            off = (t % 4)*8192
            a(f"ds_read_b128 {vr(K,4)}, v{b} offset:{off}"); lg.issue("K")
            a(f"ds_read_b128 {vr(K+4,4)}, v{b} offset:{off+1024}"); lg.issue("K")
        def vread():
            off = i*8192 + 2048
            a(f"ds_read_b128 {vr(V,4)}, v{VC} offset:{off}"); lg.issue("V")
            a(f"ds_read_b128 {vr(V+4,4)}, v{VC} offset:{off+1024}"); lg.issue("V")
        def dma1(q):
            if own or E("DMAMODE", 1) == 0: return
            a(f"s_add_u32 m0, s38, {q*8192}")
            if q: a(f"s_add_u32 s39, s37, s{50+q}")
            else: a("s_mov_b32 s39, s37")
            a(f"buffer_load_dwordx4 v{VD}, s[28:31], s39 offen sc1 lds")
        qk0 = f"v_mfma_f32_32x32x16_bf16 {vr(Y,16)}, {vr(K,4)}, {vr(Q,4)}, 0"
        qk1 = f"v_mfma_f32_32x32x16_bf16 {vr(Y,16)}, {vr(K+4,4)}, {vr(Q+4,4)}, {vr(Y,16)}"
        pv0 = f"v_mfma_f32_32x32x16_bf16 {vr(O,16)}, {vr(V,4)}, {vr(PY,4)}, {vr(O,16)}"
        pv1 = f"v_mfma_f32_32x32x16_bf16 {vr(O,16)}, {vr(V+4,4)}, {vr(PY+4,4)}, {vr(O,16)}"
        smf = f"v_smfmac_f32_16x16x64_bf16 {vr(L,4)}, {vr(ONES,4)}, {vr(PY,8)}, v{IDX}"
        bk = []
        if i == 3 and not own:
            bk = ["s_add_u32 s23, s23, 1", "s_add_u32 s48, s48, 32768", "s_and_b32 s48, s48, 0x18000",
                  "s_add_u32 s49, s49, 32768", "s_and_b32 s49, s49, 0x18000", "s_add_u32 s38, s49, s21",
                  "s_add_u32 s55, s55, s56", "s_and_b32 s55, s55, s57", "s_add_u32 s37, s20, s55", "s_add_u32 s47, s47, 4"]
        def fill(n):
            for _ in range(n):
                if bk: a(bk.pop(0))
        if PRIO: a(f"s_setprio {3-i}")
        if own and i == 3:
            has_qk = False
        else:
            has_qk = True
        if own and i == E("FLAGSTEP", 2):
            a("s_cmp_lt_u32 s14, 4")
            a("s_cbranch_scc1 L_flag_out")
            a.label("L_flag_back")
        if has_qk:
            lg.need(["K"]); a(qk0)
        ex(0); ex(1); ex(2); ex(3)
        if has_qk: a(qk1)
        if i == 2 and not own:
            lg.need(["C"])
            a(f"v_readfirstlane_b32 s36, v{VCV}")
            ex(4)
            a("s_cmp_ge_u32 s36, s47")
            a("s_cbranch_scc0 L_cnt_spin")
            a.label("L_cnt_back")
            kread(); ex(5); cv(0); ex(6); cv(1)
        else:
            kread(); ex(4); ex(5); cv(0); ex(6); cv(1)
        lg.need(["V"])
        if i == 0 and not own:
            a("s_waitcnt vmcnt(4)")
            a(f"ds_add_u32 v{VCA}, v{VONE}"); lg.issue("A")
        a(pv0); ex(7); ex(8); cv(2)
        if i >= 2: dma1(2*(i-2))
        ex(9); cv(3)
        a(pv1)
        if i == 1 and not own:
            a(f"ds_read_b32 v{VCV}, v{VCR}"); lg.issue("C")
        if i >= 2: dma1(2*(i-2)+1)
        ex(10); fill(2); ex(11); fill(2); cv(4); fill(1); ex(12); fill(2); cv(5)
        a(smf); vread(); fill(1); ex(13); fill(2); ex(14); cv(6); ex(15)
        if i == 3:
            a(f"v_mov_b32 v{VC}, v{VN}")
            cv(7)
            if not own: a(f"v_add_u32 v{VN}, s48, v{VB}")
        else:
            a("s_nop 0")
            cv(7)
        assert not bk
    for i in range(4): at_step(i, True)
    stamp(a, 5)
    a("s_cmp_eq_u32 s14, 7")
    a("s_cbranch_scc0 L_at_nopoll")
    a("s_lshl_b32 s36, s10, 8")
    a(f"s_add_u32 s36, s36, {FLG_OFF}")
    a("v_lshlrev_b32 v4, 2, v2")
    a("v_add_u32 v4, s36, v4")
    poll(a, "f", 4)
    a.label("L_at_nopoll")
    a("s_barrier")
    stamp(a, 6)
    def kvstage(st):
        a(f"s_add_u32 s36, s11, {st}")
        a("s_and_b32 s36, s36, 15")
        a("s_lshl_b32 s36, s36, 14")
        a("s_add_u32 s36, s36, s20")
        for kk in range(4):
            a(f"s_add_u32 m0, s21, {st*AT_SLOT + kk*8192}")
            a(f"s_add_u32 s39, s36, {kk*4096}")
            a(f"buffer_load_dwordx4 v3, s[24:27], s39 offen sc1 lds")
    kvstage(1); kvstage(2)
    a("s_mov_b32 s23, 1")
    a(f"s_mov_b32 s48, {2*AT_SLOT}")
    a(f"v_add_u32 v{VN}, s48, v{VB}")
    a("s_mov_b32 s49, 0")
    a("s_mov_b32 s38, s21")
    a("s_add_u32 s55, s11, 4")
    a("s_and_b32 s55, s55, 15")
    a("s_lshl_b32 s55, s55, 14")
    a("s_mov_b32 s56, 16384"); a("s_mov_b32 s57, 0x3c000")
    a("s_add_u32 s37, s20, s55")
    a("s_mov_b32 s47, 4")
    a("s_mov_b32 s59, 13")
    a("s_waitcnt vmcnt(4)")
    a("s_barrier")
    kvstage(3)
    stamp(a, 7)
    a(f"ds_read_b128 {vr(K,4)}, v{VC}")
    a(f"ds_read_b128 {vr(K+4,4)}, v{VC} offset:1024")
    a("s_waitcnt lgkmcnt(0)")
    a(f"v_mfma_f32_32x32x16_bf16 {vr(S[0],16)}, {vr(K,4)}, {vr(Q,4)}, 0")
    a(f"v_mfma_f32_32x32x16_bf16 {vr(S[0],16)}, {vr(K+4,4)}, {vr(Q+4,4)}, {vr(S[0],16)}")
    a(f"ds_read_b128 {vr(K,4)}, v{VC} offset:8192")
    a(f"ds_read_b128 {vr(K+4,4)}, v{VC} offset:{8192+1024}")
    a("s_waitcnt lgkmcnt(0)")
    a("s_nop 7")
    stamp(a, 14)
    dbgt(a, 5, True); dbgt(a, 6)
    lg.q = ["K", "K", "V", "V"]
    a.raw(".p2align 6")
    a.label("L_at_loop")
    for i in range(4): at_step(i, False)
    assert lg.q == ["K", "K", "V", "V"], lg.q
    a("s_cmp_eq_u32 s23, s59")
    a("s_cbranch_scc0 L_at_loop")
    a("s_cmp_eq_u32 s23, 16")
    a("s_cbranch_scc1 L_at_tail")
    stamp(a, 15)
    a("s_mov_b32 s59, 16")
    a("s_mov_b32 s51, 131072"); a("s_mov_b32 s52, 262144"); a("s_mov_b32 s53, 393216")
    a("s_lshl_b32 s39, s11, 7")
    a("s_sub_u32 s36, 0x200000, s39")
    a("s_add_u32 s28, s40, s39"); a("s_addc_u32 s29, s41, 0"); a("s_mov_b32 s30, s36"); a("s_mov_b32 s31, 0x20000")
    a("s_lshl_b32 s20, s14, 14")
    a("s_mov_b32 s55, 0"); a("s_mov_b32 s56, 524288"); a("s_mov_b32 s57, -1")
    a("s_mov_b32 s37, s20")
    a("v_lshrrev_b32 v4, 3, v2")
    a("v_lshlrev_b32 v4, 11, v4")
    a("v_and_b32 v5, 7, v2")
    a("v_lshrrev_b32 v6, 4, v2")
    a("v_and_b32 v6, 1, v6")
    a("v_lshlrev_b32 v6, 2, v6")
    a("v_xor_b32 v5, v5, v6")
    a("v_lshlrev_b32 v5, 4, v5")
    a(f"v_add_u32 v{VD}, v4, v5")
    a("s_branch L_at_loop")
    a.label("L_cnt_spin")
    a("s_mov_b32 s39, 0")
    a.label("L_cnt_spin2")
    a(f"ds_read_b32 v{VCV}, v{VCR}")
    a("s_waitcnt lgkmcnt(0)")
    a(f"v_readfirstlane_b32 s36, v{VCV}")
    a("s_add_u32 s39, s39, 1")
    a(f"s_cmp_ge_u32 s39, {POLL_MAX*16}")
    a("s_cbranch_scc1 L_cnt_back")
    a("s_cmp_ge_u32 s36, s47")
    a("s_cbranch_scc0 L_cnt_spin2")
    a("s_branch L_cnt_back")
    a.label("L_at_tail")
    a("s_setprio 0")
    PL = P[1]
    a("s_waitcnt lgkmcnt(0)")
    a(f"v_mfma_f32_32x32x16_bf16 {vr(O,16)}, {vr(V,4)}, {vr(PL,4)}, {vr(O,16)}")
    a(f"v_mfma_f32_32x32x16_bf16 {vr(O,16)}, {vr(V+4,4)}, {vr(PL+4,4)}, {vr(O,16)}")
    a(f"v_smfmac_f32_16x16x64_bf16 {vr(L,4)}, {vr(ONES,4)}, {vr(PL,8)}, v{IDX}")
    stamp(a, 8)
    dbgt(a, 7, True); dbgt(a, 8)
    a("s_nop 8")
    a("s_nop 7")
    a(f"v_add_f32 v{L}, v{L}, v{L+1}")
    a(f"v_mov_b32 v4, {f32bits(2.0**-40)}")
    a(f"v_mov_b32 v5, {f32bits(2.0**40)}")
    a(f"v_cmp_nge_f32 vcc, v{L}, v4")
    a(f"v_cmp_nle_f32 s[44:45], v{L}, v5")
    a("s_or_b64 s[44:45], s[44:45], vcc")
    a(f"v_mov_b32 v5, {f32bits(2.0**100)}")
    for r in range(16):
        a(f"v_cmp_nlt_f32 vcc, abs(v{O+r}), v5")
        a("s_or_b64 s[44:45], s[44:45], vcc")
    a("s_cmp_lg_u64 s[44:45], 0")
    a("s_cbranch_scc1 L_at_slow")
    a.label("L_at_fin")
    a(f"v_rcp_f32 v4, v{L}")
    a("s_nop 0")
    for r in range(16): a(f"v_mul_f32 v{O+r}, v{O+r}, v4")
    for r in range(8): a(f"v_cvt_pk_bf16_f32 v{P[0]+r}, v{O+2*r}, v{O+2*r+1}")
    a("s_lshl_b32 s19, s18, 6")
    a("s_lshl_b32 s36, s17, 1")
    a("s_add_u32 s19, s19, s36")
    a("s_lshl_b32 s19, s19, 10")
    a(f"s_add_u32 s19, s19, {OF_OFF}")
    a(f"buffer_store_dwordx4 {vr(P[0],4)}, v3, s[24:27], s19 offen sc1")
    a(f"buffer_store_dwordx4 {vr(P[0]+4,4)}, v3, s[24:27], s19 offen offset:1024 sc1")
    srd(a, 32, 42, None, 0x400000)
    a("s_barrier")
    for q in range(4):
        a(f"s_add_u32 m0, s21, {3*AT_SLOT + q*8192}")
        a(f"s_add_u32 s39, s37, s{50+q}" if q else "s_mov_b32 s39, s37")
        a(f"buffer_load_dwordx4 v{VD}, s[28:31], s39 offen lds")
    a("s_waitcnt vmcnt(4)")
    a("s_lshl_b32 s36, s11, 9")
    a("s_lshl_b32 s37, s16, 7")
    a("s_add_u32 s36, s36, s37")
    a("s_lshl_b32 s37, s10, 3")
    a("s_add_u32 s36, s36, s37")
    a("s_lshl_b32 s37, s15, 2")
    a("s_add_u32 s36, s36, s37")
    a(f"s_add_u32 s36, s36, {FLG_OFF+8192}")
    a("v_mov_b32 v5, s36")
    a("v_mov_b32 v6, s46")
    a("s_mov_b64 exec, 1")
    a("buffer_store_dword v6, v5, s[24:27], 0 offen sc1")
    a("s_mov_b64 exec, -1")
    stamp(a, 9)
    a("v_lshrrev_b32 v5, 5, v2")
    a("v_and_b32 v6, 15, v2")
    a("v_lshrrev_b32 v6, 2, v6")
    a("v_lshlrev_b32 v7, 2, v5")
    a("v_add_u32 v7, v7, v6")
    a("v_lshlrev_b32 v7, 7, v7")
    a("v_lshrrev_b32 v8, 4, v2")
    a("v_and_b32 v8, 1, v8")
    a("v_lshlrev_b32 v8, 1, v8")
    a("v_and_b32 v9, 3, v2")
    a("v_lshrrev_b32 v10, 1, v9")
    a("v_add_u32 v8, v8, v10")
    a("v_lshrrev_b32 v10, 1, v6")
    a("v_lshlrev_b32 v10, 2, v10")
    a("v_xor_b32 v8, v8, v10")
    a("v_lshlrev_b32 v8, 4, v8")
    a("v_add_u32 v7, v7, v8")
    a("v_and_b32 v9, 1, v9")
    a("v_lshlrev_b32 v9, 3, v9")
    a("v_add_u32 v7, v7, v9")
    a("s_lshl_b32 s36, s15, 16")
    a(f"s_add_u32 s36, s36, {WO_LDS}")
    a("v_add_u32 v12, s36, v7")
    a("v_xor_b32 v13, 64, v12")
    ACC = 16
    for r in range(32): a(f"v_mov_b32 v{ACC+r}, 0")
    a("s_lshl_b32 s36, s10, 9")
    a("s_lshl_b32 s37, s16, 7")
    a("s_add_u32 s36, s36, s37")
    a("s_lshl_b32 s37, s15, 6")
    a("s_add_u32 s36, s36, s37")
    a(f"s_add_u32 s36, s36, {FLG_OFF+8192}")
    a("v_and_b32 v4, 15, v2")
    a("v_lshlrev_b32 v4, 2, v4")
    a("v_add_u32 v4, s36, v4")
    OFR = 64
    a("s_lshl_b32 s36, s10, 2")
    a("s_add_u32 s36, s36, s16")
    a("s_lshl_b32 s36, s36, 6")
    a("s_lshl_b32 s37, s15, 5")
    a("s_add_u32 s36, s36, s37")
    a("s_lshl_b32 s36, s36, 10")
    a(f"s_add_u32 s36, s36, {OF_OFF}")
    a("s_and_b32 s50, s11, 7")
    a("s_lshl_b32 s51, s50, 1")
    a("s_sub_u32 s52, 16, s51")
    a("s_mov_b32 s48, 0")
    a("s_mov_b32 s54, 0")
    a("s_mov_b32 s47, 0")
    a("s_waitcnt vmcnt(0)")
    a("s_barrier")
    WF = [48, 56]
    a.label("L_og_round")
    a("buffer_load_dword v5, v4, s[24:27], 0 offen sc1")
    a("s_waitcnt vmcnt(0)")
    a("v_cmp_eq_u32 vcc, s46, v5")
    a("s_add_u32 s47, s47, 1")
    a("s_lshr_b32 s49, vcc_lo, 1")
    a("s_and_b32 s49, s49, vcc_lo")
    a("s_and_b32 s49, s49, 0x5555")
    a("s_lshr_b32 s53, s49, s51")
    a("s_lshl_b32 s49, s49, s52")
    a("s_or_b32 s49, s49, s53")
    a("s_and_b32 s49, s49, 0x5555")
    a(f"s_cmp_ge_u32 s47, {POLL_MAX}")
    a("s_cselect_b32 s49, 0x5555, s49")
    a("s_andn2_b32 s49, s49, s48")
    a("s_cbranch_scc1 L_og_work")
    a("s_sleep 2")
    a("s_branch L_og_round")
    a.label("L_og_work")
    stamp(a, 10)
    for i in range(8):
        a(f"s_bitcmp1_b32 s49, {2*i}")
        a(f"s_cbranch_scc0 L_og_nl{i}")
        a(f"s_add_u32 s53, s50, {i}")
        a("s_and_b32 s53, s53, 7")
        a("s_lshl_b32 s53, s53, 12")
        a("s_add_u32 s53, s53, s36")
        for q in range(4):
            a(f"buffer_load_dwordx4 {vr(OFR+16*i+4*q,4)}, v3, s[24:27], s53 offen offset:{q*1024} sc1")
        a.label(f"L_og_nl{i}")
    a("s_waitcnt vmcnt(0)")
    a("s_or_b32 s48, s48, s49")
    for i in range(8):
        a(f"s_bitcmp1_b32 s54, {2*i}")
        a(f"s_cbranch_scc1 L_og_nm{i}")
        a(f"s_bitcmp1_b32 s48, {2*i}")
        a(f"s_cbranch_scc0 L_og_round")
        a(f"s_bitset1_b32 s54, {2*i}")
        a(f"s_add_u32 s53, s50, {i}")
        a("s_and_b32 s53, s53, 7")
        a("s_lshl_b32 s53, s53, 13")
        a("v_add_u32 v14, s53, v12")
        a("v_add_u32 v15, s53, v13")
        def wreads(setb, q):
            for ct in range(2):
                for jj in range(2):
                    a(f"ds_read_b64_tr_b16 {vr(setb+4*ct+2*jj,2)}, v{14+ct} offset:{q*2048+jj*1024}")
        def mm(setb, q):
            for ct in range(2):
                a(f"v_mfma_f32_32x32x16_bf16 {vr(ACC+16*ct,16)}, {vr(setb+4*ct,4)}, {vr(OFR+16*i+4*q,4)}, {vr(ACC+16*ct,16)}")
        wreads(WF[0], 0); wreads(WF[1], 1)
        a("s_waitcnt lgkmcnt(4)"); mm(WF[0], 0)
        wreads(WF[0], 2)
        a("s_waitcnt lgkmcnt(4)"); mm(WF[1], 1)
        wreads(WF[1], 3)
        a("s_waitcnt lgkmcnt(4)"); mm(WF[0], 2)
        a("s_waitcnt lgkmcnt(0)"); mm(WF[1], 3)
        a.label(f"L_og_nm{i}")
    stamp(a, 11)
    a("s_lshl_b32 s36, s14, 12")
    a(f"s_add_u32 s36, s36, {XCH_OFF}")
    a("v_add_u32 v5, s36, v3")
    a("s_xor_b32 s36, s14, 4")
    a("s_lshl_b32 s36, s36, 12")
    a(f"s_add_u32 s36, s36, {XCH_OFF}")
    a("v_add_u32 v6, s36, v3")
    a("s_nop 9")
    a("s_cmp_eq_u32 s15, 0")
    a("s_cbranch_scc1 L_op_kh0")
    for q in range(4): a(f"ds_write_b128 v5, {vr(ACC+4*q,4)} offset:{q*1024}")
    for r in range(16): a(f"v_mov_b32 v{48+r}, v{ACC+16+r}")
    a("s_branch L_op_x")
    a.label("L_op_kh0")
    for q in range(4): a(f"ds_write_b128 v5, {vr(ACC+16+4*q,4)} offset:{q*1024}")
    for r in range(16): a(f"v_mov_b32 v{48+r}, v{ACC+r}")
    a.label("L_op_x")
    a("s_waitcnt lgkmcnt(0)")
    a("s_barrier")
    for q in range(4): a(f"ds_read_b128 {vr(64+4*q,4)}, v6 offset:{q*1024}")
    a("s_waitcnt lgkmcnt(0)")
    for r in range(16): a(f"v_add_f32 v{48+r}, v{48+r}, v{64+r}")
    for r in range(8): a(f"v_cvt_pk_bf16_f32 v{64+r}, v{48+2*r}, v{48+2*r+1}")
    a("v_and_b32 v5, 31, v2")
    a("v_lshlrev_b32 v5, 11, v5")
    a("v_lshrrev_b32 v6, 5, v2")
    a("v_lshlrev_b32 v6, 4, v6")
    a("v_add_u32 v5, v5, v6")
    for g in (0, 2):
        a(f"v_permlane32_swap_b32 v{64+2*g}, v{64+2*g+2}")
        a(f"v_permlane32_swap_b32 v{64+2*g+1}, v{64+2*g+3}")
    a("s_lshl_b32 s36, s10, 2")
    a("s_add_u32 s36, s36, s16")
    a("s_lshl_b32 s36, s36, 16")
    a("s_lshl_b32 s37, s11, 7")
    a("s_add_u32 s36, s36, s37")
    a("s_lshl_b32 s37, s15, 6")
    a("s_add_u32 s36, s36, s37")
    a(f"buffer_store_dwordx4 {vr(64,4)}, v5, s[32:35], s36 offen")
    a(f"buffer_store_dwordx4 {vr(68,4)}, v5, s[32:35], s36 offen offset:32")
    if STAMP:
        a("s_waitcnt vmcnt(0)")
        stamp(a, 12); stamp_rt(a, 13); stamp_store(a, 16)
    if DBGT:
        a("s_waitcnt vmcnt(0)")
        dbgt(a, 11, True); dbgt(a, 12)
    a("s_endpgm")
    if QPF:
        a.label("L_qpf_out")
        qpf("c")
        a("s_branch L_qpf_back")
    a.label("L_flag_out")
    a("s_waitcnt vmcnt(0)")
    a("s_lshl_b32 s36, s10, 8")
    a("s_lshl_b32 s39, s11, 4")
    a("s_add_u32 s36, s36, s39")
    a("s_lshl_b32 s39, s14, 2")
    a("s_add_u32 s36, s36, s39")
    a(f"s_add_u32 s36, s36, {FLG_OFF}")
    a("v_mov_b32 v4, s36")
    a("v_mov_b32 v5, s46")
    a("s_mov_b64 exec, 1")
    a("buffer_store_dword v5, v4, s[24:27], 0 offen sc1")
    a("s_mov_b64 exec, -1")
    a("s_branch L_flag_back")
    a.label("L_at_slow")
    X = S[0]; PX = P[0]
    a(f"v_mov_b32 v{M}, 0xff800000")
    a(f"v_mov_b32 v{L}, 0")
    for r in range(16): a(f"v_mov_b32 v{O+r}, 0")
    a("s_lshl_b32 s36, s17, 18")
    a("s_mov_b32 s47, 0")
    a.label("L_at_slow_loop")
    a(f"buffer_load_dwordx4 {vr(K,4)}, v3, s[24:27], s36 offen sc1")
    a(f"buffer_load_dwordx4 {vr(K+4,4)}, v3, s[24:27], s36 offen offset:1024 sc1")
    a(f"buffer_load_dwordx4 {vr(V,4)}, v3, s[24:27], s36 offen offset:2048 sc1")
    a(f"buffer_load_dwordx4 {vr(V+4,4)}, v3, s[24:27], s36 offen offset:3072 sc1")
    a("s_waitcnt vmcnt(0)")
    a(f"v_mfma_f32_32x32x16_bf16 {vr(X,16)}, {vr(K,4)}, {vr(Q,4)}, 0")
    a(f"v_mfma_f32_32x32x16_bf16 {vr(X,16)}, {vr(K+4,4)}, {vr(Q+4,4)}, {vr(X,16)}")
    a("s_nop 15"); a("s_nop 3")
    a(f"v_max_f32 v4, v{X}, v{X+1}")
    for r in range(2, 16): a(f"v_max_f32 v4, v4, v{X+r}")
    a("v_mov_b32 v5, v4")
    a("s_nop 1")
    a("v_permlane32_swap_b32 v4, v5")
    a("s_nop 1")
    a("v_max_f32 v4, v4, v5")
    a(f"v_max_f32 v4, v4, v{M}")
    a(f"v_sub_f32 v5, v{M}, v4")
    a("v_exp_f32 v5, v5")
    a(f"v_mov_b32 v{M}, v4")
    for r in range(16): a(f"v_sub_f32 v{X+r}, v{X+r}, v4")
    for r in range(16): a(f"v_exp_f32 v{X+r}, v{X+r}")
    a("s_nop 0")
    for r in range(8): a(f"v_cvt_pk_bf16_f32 v{PX+r}, v{X+2*r}, v{X+2*r+1}")
    a(f"v_mul_f32 v{L}, v{L}, v5")
    for r in range(16): a(f"v_mul_f32 v{O+r}, v{O+r}, v5")
    for r in range(8):
        a(f"v_lshlrev_b32 v6, 16, v{PX+r}")
        a(f"v_and_b32 v7, 0xffff0000, v{PX+r}")
        a(f"v_add_f32 v{L}, v{L}, v6")
        a(f"v_add_f32 v{L}, v{L}, v7")
    a("s_nop 1")
    a(f"v_mfma_f32_32x32x16_bf16 {vr(O,16)}, {vr(V,4)}, {vr(PX,4)}, {vr(O,16)}")
    a(f"v_mfma_f32_32x32x16_bf16 {vr(O,16)}, {vr(V+4,4)}, {vr(PX+4,4)}, {vr(O,16)}")
    a("s_nop 15"); a("s_nop 3")
    a("s_add_u32 s36, s36, 4096")
    a("s_add_u32 s47, s47, 1")
    a("s_cmp_lt_u32 s47, 64")
    a("s_cbranch_scc1 L_at_slow_loop")
    a(f"v_mov_b32 v5, v{L}")
    a(f"v_mov_b32 v4, v{L}")
    a("s_nop 1")
    a("v_permlane32_swap_b32 v4, v5")
    a("s_nop 1")
    a(f"v_add_f32 v{L}, v4, v5")
    a("s_branch L_at_fin")
    a.label("L_end")
    a("s_endpgm")
    return a.text()

HEADER = """; Fused multi-head attention: QKV projection -> softmax attention -> output projection, one persistent launch.
; @launch grid=(256,1,1) block=(512,1,1) lds=163840
"""
def main(out):
    vg = 256 if (STAMP or DBGT) else 244
    sg = 96 if (STAMP or DBGT) else 64
    txt = HEADER + '.amdgcn_target "amdgcn-amd-amdhsa--gfx950"\n.text\n' + gen()
    txt += f""".section .rodata,"a"
.p2align 6
.amdhsa_kernel {KNAME}
  .amdhsa_next_free_vgpr {vg}
  .amdhsa_next_free_sgpr {sg}
  .amdhsa_accum_offset {(vg+3)//4*4}
  .amdhsa_group_segment_fixed_size 0
  .amdhsa_kernarg_size 48
  .amdhsa_user_sgpr_count 2
  .amdhsa_user_sgpr_kernarg_segment_ptr 1
  .amdhsa_system_sgpr_workgroup_id_x 1
.end_amdhsa_kernel
"""
    open(out, "w").write(txt)
if __name__ == "__main__":
    main(sys.argv[1] if len(sys.argv) > 1 else "cdna_kernels/%s.s" % NAME)
```

```python
import sys, os, struct
NAME = "standalone__softmax_full_mha__prompt"
KNAME = NAME + "_kernel"
E = lambda k, d=0: int(os.environ.get(k, str(d)))
STAMP = E("STAMP")
STAMP_OFF = 32 << 20

class A:
    def __init__(self): self.l = []
    def __call__(self, s): self.l.append("    " + s)
    def label(self, s): self.l.append(s + ":")
    def raw(self, s): self.l.append(s)
    def text(self): return "\n".join(self.l) + "\n"
def vr(b, n=1): return f"v{b}" if n == 1 else f"v[{b}:{b+n-1}]"
def f32bits(x): return struct.unpack('<I', struct.pack('<f', x))[0]

class Lgkm:
    def __init__(self, a): self.a = a; self.q = []
    def issue(self, tag): self.q.append(tag)
    def need(self, tags):
        idx = -1
        for i, t in enumerate(self.q):
            if t in tags: idx = i
        if idx < 0: return
        n = len(self.q) - 1 - idx
        assert n <= 15
        self.a(f"s_waitcnt lgkmcnt({n})")
        self.q = self.q[idx+1:]
    def all(self):
        if self.q:
            self.a("s_waitcnt lgkmcnt(0)")
            self.q = []

KVF_OFF = 0
OF_OFF  = 8 << 20
FLG_OFF = 12 << 20
WS_USED = 13 << 20
QSCALE = 0.17677669529663687 * 1.4426950408889634
G1_NSLOT = 4; G1_SLOT = 40960
AT_SLOT = 32768
QX_OFF = 131072
AT_R = 4
WO_LDS = 0
CNT_OFF = 147456 + 64
SCR_OFF = 147456 + 1024
XCH_OFF = 131072
EP_OFF = 147456
POLL_MAX = 40000

def stamp(a, k):
    if STAMP:
        a(f"s_memtime s[{60+2*k}:{61+2*k}]"); a("s_waitcnt lgkmcnt(0)")
def stamp_rt(a, k):
    if STAMP:
        a(f"s_memrealtime s[{60+2*k}:{61+2*k}]"); a("s_waitcnt lgkmcnt(0)")
def stamp_store(a, n):
    if STAMP:
        a(f"s_lshl_b32 s58, s2, 3"); a(f"s_add_u32 s58, s58, s14"); a(f"s_lshl_b32 s58, s58, 7")
        a(f"s_add_u32 s58, s58, {STAMP_OFF}")
        a(f"s_add_u32 s56, s8, s58"); a(f"s_addc_u32 s57, s9, 0")
        a("v_mov_b32 v254, 0")
        for k in range(n):
            a(f"v_mov_b32 v255, s{60+2*k}")
            a(f"global_store_dword v254, v255, s[56:57] offset:{4*k}")
        a("s_waitcnt vmcnt(0)")

DBGT = E("DBGT")
DSLOT = {1:0, 13:1, 3:2, 5:3, 7:4, 9:5, 11:6}
def dbgt(a, slot, neg=False):
    if DBGT and neg:
        i = DSLOT[slot]
        a(f"s_memrealtime s[{60+2*i}:{61+2*i}]")
        a("s_waitcnt lgkmcnt(0)")
        if slot == 11:
            a(f"s_and_b32 s92, s2, 0x7f")
            a("s_cmp_eq_u32 s92, 0")
            a("s_cbranch_scc0 L_dbg_skip")
            a("s_cmp_eq_u32 s14, 4")
            a("s_cbranch_scc0 L_dbg_skip")
            a("s_lshr_b32 s92, s2, 7")
            a("s_mul_i32 s92, s92, 28")
            a("v_mov_b32 v251, s92")
            for k in range(7):
                a(f"v_mov_b32 v250, s{60+2*k}")
                a(f"global_store_dword v251, v250, s[90:91] offset:{4+4*k}")
            a.label("L_dbg_skip")

def srd(a, d, plo, off, nrec):
    if off is None:
        a(f"s_mov_b32 s{d}, s{plo}"); a(f"s_mov_b32 s{d+1}, s{plo+1}")
    else:
        a(f"s_add_u32 s{d}, s{plo}, {off}"); a(f"s_addc_u32 s{d+1}, s{plo+1}, 0")
    a(f"s_mov_b32 s{d+2}, {nrec}"); a(f"s_mov_b32 s{d+3}, 0x20000")

def poll(a, name, voff, mask=None):
    a(f"s_mov_b32 s47, 0")
    a.label(f"L_poll_{name}")
    a(f"buffer_load_dword v5, v{voff}, s[24:27], 0 offen sc1")
    a("s_waitcnt vmcnt(0)")
    a("v_cmp_ne_u32 vcc, s46, v5")
    a("s_add_u32 s47, s47, 1")
    if mask is not None: a(f"s_and_b64 vcc, vcc, s[{mask}:{mask+1}]")
    a("s_cmp_eq_u64 vcc, 0")
    a(f"s_cbranch_scc1 L_poll_{name}_done")
    a(f"s_cmp_ge_u32 s47, {POLL_MAX}")
    a(f"s_cbranch_scc1 L_poll_{name}_done")
    a("s_sleep 1")
    a(f"s_branch L_poll_{name}")
    a.label(f"L_poll_{name}_done")

def gen():
    a = A()
    a.raw(f".globl {KNAME}\n.p2align 8\n.type {KNAME},@function\n{KNAME}:")
    a("s_cmp_ge_u32 s2, 256")
    a("s_cbranch_scc1 L_end")
    a("s_load_dwordx4 s[4:7], s[0:1], 0")
    a("s_load_dwordx2 s[8:9], s[0:1], 40")
    a("s_load_dwordx4 s[40:43], s[0:1], 16")
    a("s_load_dwordx2 s[44:45], s[0:1], 32")
    a("s_and_b32 s12, s2, 7")
    a("s_lshr_b32 s11, s2, 3")
    a("s_mov_b32 s13, 0")
    if E("MAP", 2) == 0:
        a("s_lshr_b32 s10, s12, 1")
        a("s_lshl_b32 s10, s10, 2")
        a("s_and_b32 s16, s11, 3")
        a("s_add_u32 s10, s10, s16")
        a("s_lshr_b32 s11, s11, 2")
        a("s_and_b32 s12, s12, 1")
        a("s_lshl_b32 s12, s12, 3")
        a("s_add_u32 s11, s11, s12")
    elif E("MAP", 2) == 2:
        a("s_lshl_b32 s10, s12, 1")
        a("s_and_b32 s16, s11, 1")
        a("s_add_u32 s10, s10, s16")
        a("s_lshr_b32 s11, s11, 1")
    else:
        a("s_and_b32 s10, s12, 1")
        a("s_lshl_b32 s10, s10, 3")
        a("s_and_b32 s16, s11, 7")
        a("s_add_u32 s10, s10, s16")
        a("s_lshr_b32 s11, s11, 3")
        a("s_lshr_b32 s12, s12, 1")
        a("s_lshl_b32 s12, s12, 2")
        a("s_add_u32 s11, s11, s12")
    a("v_lshrrev_b32 v1, 6, v0")
    a("v_and_b32 v2, 63, v0")
    a("v_lshlrev_b32 v3, 4, v2")
    a("v_readfirstlane_b32 s14, v1")
    a("s_waitcnt lgkmcnt(0)")
    stamp_rt(a, 0); stamp(a, 1)
    if DBGT:
        a("s_mov_b32 s90, s44"); a("s_mov_b32 s91, s45")
    dbgt(a, 1, True); dbgt(a, 2)
    srd(a, 24, 8, None, WS_USED)
    a("s_cmp_lt_u32 s14, 4")
    a("s_cbranch_scc1 L_g1_compute")
    a("s_sub_u32 s15, s14, 4")
    a("s_lshl_b32 s16, s11, 18")
    a("s_sub_u32 s17, 0x400000, s16")
    a("s_add_u32 s28, s4, s16"); a("s_addc_u32 s29, s5, 0"); a("s_mov_b32 s30, s17"); a("s_mov_b32 s31, 0x20000")
    a("s_lshl_b32 s16, s10, 7")
    a("s_sub_u32 s17, 0x600000, s16")
    a("s_add_u32 s32, s6, s16"); a("s_addc_u32 s33, s7, 0"); a("s_mov_b32 s34, s17"); a("s_mov_b32 s35, 0x20000")
    a("v_lshrrev_b32 v4, 3, v2")
    a("v_lshlrev_b32 v5, 11, v4")
    a("v_and_b32 v6, 7, v2")
    a("v_lshrrev_b32 v7, 4, v2")
    a("v_xor_b32 v8, v6, v7")
    a("v_lshlrev_b32 v8, 4, v8")
    a("v_add_u32 v5, v5, v8")
    a("s_lshl_b32 s16, s15, 16")
    a("v_add_u32 v10, s16, v5")
    a("v_xor_b32 v11, 64, v10")
    a("v_mul_u32_u24 v5, 6144, v4")
    a("v_and_b32 v7, 1, v7")
    a("v_lshlrev_b32 v7, 2, v7")
    a("v_xor_b32 v8, v6, v7")
    a("v_lshlrev_b32 v8, 4, v8")
    a("v_add_u32 v5, v5, v8")
    a("s_mul_i32 s16, s15, 98304")
    a("v_add_u32 v12, s16, v5")
    a("s_lshl_b32 s18, s15, 12")
    a("s_lshl_b32 s19, s15, 11")
    a("s_add_u32 s19, s19, 16384")
    a("s_mov_b32 s20, s13")
    a("s_mov_b32 s36, 0")
    first = [True]
    XPF = E("XPF", 0)
    NV = 11 if XPF else 10
    if XPF:
        a("v_and_b32 v13, 15, v2")
        a("s_and_b32 s36, s10, 1")
        a("s_lshl_b32 s36, s36, 2")
        a("s_add_u32 s36, s36, s15")
        a("s_lshl_b32 s36, s36, 4")
        a("v_add_u32 v13, s36, v13")
        a("v_lshlrev_b32 v13, 11, v13")
        a("s_mov_b32 s36, 0")
    if E("DIAG1"): stamp(a, 4)
    def issue_stage():
        a("s_lshl_b32 s21, s20, 7")
        a("s_mul_i32 s22, s20, 393216")
        a("s_add_u32 s37, s36, s18")
        a("s_add_u32 s39, s36, s19")
        for i in range(4):
            a(f"s_add_u32 m0, s37, {i*1024}")
            a(f"s_add_u32 s38, s21, {i*16384}")
            a(f"buffer_load_dwordx4 v{10+(i&1)}, s[28:31], s38 offen lds")
            if E("DIAG1") and first[0] and i in (0, 3): stamp(a, 5 if i == 0 else 6)
        for t in range(3):
            for kb in range(2):
                a(f"s_add_u32 m0, s39, {t*8192+kb*1024}")
                a(f"s_add_u32 s38, s22, {t*2048+kb*49152}")
                a(f"buffer_load_dwordx4 v12, s[32:35], s38 offen lds")
                if E("DIAG1") and first[0] and kb == 0 and t == 0: stamp(a, 7)
        first[0] = False
        if XPF:
            a(f"s_add_u32 s38, s20, {XPF}")
            a("s_lshl_b32 s37, s38, 7")
            a("s_cmp_lt_u32 s38, 16")
            a("s_cselect_b32 s38, s37, 0x7ff00000")
            a("buffer_load_dword v16, v13, s[28:31], s38 offen")
        a("s_add_u32 s20, s20, 1")
        a("s_and_b32 s20, s20, 15")
        a(f"s_add_u32 s36, s36, {G1_SLOT}")
        a(f"s_cmp_eq_u32 s36, {G1_SLOT*G1_NSLOT}")
        a("s_cselect_b32 s36, 0, s36")
    issue_stage()
    stamp(a, 2)
    issue_stage()
    a(f"s_waitcnt vmcnt({NV})")
    stamp(a, 3)
    a("s_barrier")
    if E("DIAG1"):
        a("s_waitcnt vmcnt(0)"); stamp(a, 8); stamp_rt(a, 13); stamp_store(a, 16); a("s_endpgm")
    dbgt(a, 13, True); dbgt(a, 14)
    issue_stage(); issue_stage()
    NPF = 0
    if E("LPF", 0):
        a("s_lshl_b32 s37, s2, 14")
        a("s_lshl_b32 s38, s15, 12")
        a("s_add_u32 s37, s37, s38")
        a("v_add_u32 v4, s37, v3")
        for q in range(4): a(f"global_load_dwordx4 v[16:19], v4, s[4:5] offset:{q*1024}")
        a("s_mul_i32 s37, s2, 24576")
        a("s_mul_i32 s38, s15, 6144")
        a("s_add_u32 s37, s37, s38")
        a("v_add_u32 v4, s37, v3")
        for q in range(4): a(f"global_load_dwordx4 v[16:19], v4, s[6:7] offset:{q*1024}")
        a("v_add_u32 v4, 4096, v4")
        for q in range(2): a(f"global_load_dwordx4 v[16:19], v4, s[6:7] offset:{q*1024}")
        NPF = 10
    if E("L2PF", 0):
        a("s_lshr_b32 s36, s2, 3")
        a("s_and_b32 s37, s36, 3")
        a("s_lshr_b32 s36, s36, 2")
        a("v_lshrrev_b32 v4, 3, v2")
        a("v_lshlrev_b32 v5, 11, v4")
        a("v_and_b32 v6, 7, v2")
        a("v_lshlrev_b32 v6, 4, v6")
        a("v_add_u32 v13, v5, v6")
        a("s_lshl_b32 s37, s37, 16")
        a("v_add_u32 v13, s37, v13")
        a("v_mul_u32_u24 v14, 6144, v4")
        a("v_add_u32 v14, v14, v6")
        a("s_mul_i32 s36, s36, 49152")
        a("v_add_u32 v14, s36, v14")
        for q in range(3):
            a(f"s_add_u32 s36, s15, {4+4*q}")
            a("s_add_u32 s36, s36, s13")
            a("s_and_b32 s36, s36, 15")
            a("s_lshl_b32 s37, s36, 7")
            a("s_mul_i32 s39, s36, 393216")
            for t in range(3):
                a(f"s_add_u32 s38, s39, {t*2048}")
                a(f"buffer_load_dwordx4 v[16:19], v14, s[32:35], s38 offen")
            for p in range(4):
                a(f"s_add_u32 s38, s37, {p*16384}")
                a(f"buffer_load_dwordx4 v[16:19], v13, s[28:31], s38 offen")
        NPF = 21
        a("s_mov_b32 s36, %d" % 0)
    a("s_mov_b32 s36, 0")
    for k in range(3):
        a(f"s_waitcnt vmcnt({2*NV+NPF})")
        a("s_barrier")
        issue_stage()
    a("s_mov_b32 s23, 3")
    a.label("L_g1_ldloop")
    a(f"s_waitcnt vmcnt({NV*(G1_NSLOT-2)})")
    a("s_barrier")
    issue_stage()
    a("s_add_u32 s23, s23, 1")
    a(f"s_cmp_lt_u32 s23, {16-G1_NSLOT}")
    a("s_cbranch_scc1 L_g1_ldloop")
    for k in range(G1_NSLOT):
        a(f"s_waitcnt vmcnt({NV*max(0, G1_NSLOT-2-k)})")
        a("s_barrier")
    a("s_branch L_g1_done")
    a.label("L_g1_compute")
    ACC = 128; SETS = [64, 84]; XA = 104; WA = 108
    QPF = E("QPF", 1)
    def qpf(tag):
        a("s_cmp_eq_u32 s14, 3")
        a(f"s_cbranch_scc1 L_qpf_x{tag}")
        a("s_cmp_eq_u32 s14, 0")
        a(f"s_cbranch_scc0 L_qpf_done{tag}")
        a("global_load_dword v16, v14, s[6:7]")
        a("v_add_u32 v14, 1572864, v14")
        a(f"s_branch L_qpf_done{tag}")
        a.label(f"L_qpf_x{tag}")
        a("global_load_dwordx4 v[16:19], v14, s[4:5]")
        a("v_add_u32 v13, 4096, v14")
        a("global_load_dwordx4 v[16:19], v15, s[4:5]")
        a("global_load_dwordx4 v[16:19], v13, s[4:5]")
        a("v_add_u32 v13, 4096, v15")
        a("v_add_u32 v14, 512, v14")
        a("global_load_dwordx4 v[16:19], v13, s[4:5]")
        a("v_add_u32 v15, 512, v15")
        a.label(f"L_qpf_done{tag}")
    if QPF:
        a("s_cmp_eq_u32 s14, 3")
        a("s_cbranch_scc1 L_qpf_setx")
        a("v_min_u32 v14, 47, v2")
        a("s_mul_i32 s16, s11, 48")
        a("v_add_u32 v14, s16, v14")
        a("s_mov_b32 s17, 0x5556")
        a("v_mul_u32_u24 v15, s17, v14")
        a("v_lshrrev_b32 v15, 16, v15")
        a("v_mul_u32_u24 v13, 3, v15")
        a("v_sub_u32 v13, v14, v13")
        a("v_mul_u32_u24 v14, 6144, v15")
        a("v_lshlrev_b32 v13, 11, v13")
        a("v_add_u32 v14, v14, v13")
        a("s_lshl_b32 s16, s10, 7")
        a("v_add_u32 v14, s16, v14")
        a("v_mov_b32 v15, v14")
        a("s_branch L_qpf_set")
        a.label("L_qpf_setx")
        a("v_lshrrev_b32 v14, 5, v2")
        a("v_lshlrev_b32 v14, 11, v14")
        a("v_and_b32 v15, 31, v2")
        a("v_lshlrev_b32 v15, 4, v15")
        a("v_add_u32 v14, v14, v15")
        a("s_lshl_b32 s16, s2, 14")
        a("v_add_u32 v14, s16, v14")
        a("v_add_u32 v15, 8192, v14")
        a.label("L_qpf_set")
        qpf("a")
    a("s_cmp_eq_u32 s14, 0")
    a("s_cbranch_scc0 L_nocas")
    a("v_mov_b32 v243, 0")
    a("s_cmp_eq_u32 s2, 0")
    a("s_cbranch_scc0 L_nocas")
    a("s_memrealtime s[16:17]")
    a("s_waitcnt lgkmcnt(0)")
    a("s_or_b32 s16, s16, 1")
    a("v_mov_b32 v240, s16")
    a("s_mov_b64 exec, 1")
    a("global_store_dword v243, v240, s[44:45] sc1")
    a("s_mov_b64 exec, -1")
    a.label("L_nocas")
    a("s_lshl_b32 s16, s2, 13")
    a("s_lshl_b32 s17, s14, 11")
    a("s_add_u32 s16, s16, s17")
    a("v_add_u32 v4, s16, v3")
    a("global_load_dwordx4 v[224:227], v4, s[40:41]")
    a("global_load_dwordx4 v[228:231], v4, s[40:41] offset:1024")
    a("s_getpc_b64 s[16:17]")
    a.label("L_pc")
    a("s_sub_u32 s16, s16, L_pc-" + KNAME)
    a("s_subb_u32 s17, s17, 0")
    a("v_lshlrev_b32 v4, 7, v2")
    a("s_lshl_b32 s18, s14, 13")
    a("v_add_u32 v4, s18, v4")
    a("v_cmp_gt_u32 vcc, L_end-" + KNAME + ", v4")
    a("s_and_saveexec_b64 s[18:19], vcc")
    a("s_cbranch_execz L_nocode")
    a("global_load_dword v232, v4, s[16:17]")
    a.label("L_nocode")
    a("s_mov_b64 exec, s[18:19]")
    a("s_lshr_b32 s15, s14, 1")
    a("s_and_b32 s16, s14, 1")
    a("v_and_b32 v4, 31, v2")
    a("s_lshl_b32 s17, s15, 6")
    a("v_add_u32 v4, s17, v4")
    a("v_lshlrev_b32 v4, 7, v4")
    a("v_lshrrev_b32 v5, 1, v2")
    a("v_and_b32 v5, 7, v5")
    a("v_lshrrev_b32 v6, 5, v2")
    a("v_xor_b32 v5, v5, v6")
    for ks in range(4):
        a(f"v_xor_b32 v7, {2*ks}, v5")
        a(f"v_lshlrev_b32 v7, 4, v7")
        a(f"v_add_u32 v{XA+ks}, v4, v7")
    a("v_and_b32 v7, 15, v2")
    a("v_lshrrev_b32 v7, 2, v7")
    a("v_lshlrev_b32 v8, 3, v6")
    a("v_add_u32 v8, v8, v7")
    a("v_lshlrev_b32 v8, 7, v8")
    a("v_lshrrev_b32 v9, 4, v2")
    a("v_and_b32 v9, 1, v9")
    a("v_lshlrev_b32 v9, 1, v9")
    a("v_and_b32 v10, 3, v2")
    a("v_lshrrev_b32 v11, 1, v10")
    a("v_add_u32 v9, v9, v11")
    a("s_lshl_b32 s17, s16, 2")
    a("v_add_u32 v9, s17, v9")
    a("v_lshrrev_b32 v11, 1, v7")
    a("v_lshlrev_b32 v11, 2, v11")
    a("v_xor_b32 v9, v9, v11")
    a("v_lshlrev_b32 v9, 4, v9")
    a("v_add_u32 v8, v8, v9")
    a("v_and_b32 v10, 1, v10")
    a("v_lshlrev_b32 v10, 3, v10")
    a("v_add_u32 v8, v8, v10")
    a(f"v_add_u32 v{WA}, 16384, v8")
    for r in range(96): a(f"v_mov_b32 v{ACC+r}, 0")
    if E("PREF", 0):
        a("s_lshl_b32 s19, s2, 14")
        a("s_lshl_b32 s17, s14, 12")
        a("s_add_u32 s19, s19, s17")
        a("v_add_u32 v4, s19, v3")
        for q in range(4): a(f"global_load_dwordx4 v[{16+4*q}:{19+4*q}], v4, s[4:5] offset:{q*1024}")
        a("s_mul_i32 s19, s2, 24576")
        a("s_mul_i32 s17, s14, 6144")
        a("s_add_u32 s19, s19, s17")
        a("v_add_u32 v4, s19, v3")
        for q in range(4): a(f"global_load_dwordx4 v[{32+4*q}:{35+4*q}], v4, s[6:7] offset:{q*1024}")
        a("v_add_u32 v4, 4096, v4")
        for q in range(2): a(f"global_load_dwordx4 v[{48+4*q}:{51+4*q}], v4, s[6:7] offset:{q*1024}")
    a("s_mov_b32 s18, 0")
    a(f"s_mov_b32 s21, {-(G1_NSLOT-1)*G1_SLOT & 0xffffffff}")
    a(f"s_mov_b32 s22, {G1_SLOT}")
    a("s_barrier")
    if E("DIAG1"):
        a("s_waitcnt vmcnt(0)"); a("s_endpgm")
    stamp(a, 2)
    a("v_mov_b32 v243, 0")
    a("global_load_dword v242, v243, s[44:45] sc1")
    if QPF: qpf("b")
    lg = Lgkm(a)
    def reads(setb, ks, tagp):
        x0, x1, w0, w1, w2 = setb, setb+4, setb+8, setb+12, setb+16
        return [(tagp+"x0", f"ds_read_b128 {vr(x0,4)}, v{XA+ks}"),
                (tagp+"w0", f"ds_read_b64_tr_b16 {vr(w0,2)}, v{WA} offset:{ks*2048}"),
                (tagp+"w0", f"ds_read_b64_tr_b16 {vr(w0+2,2)}, v{WA} offset:{ks*2048+512}"),
                (tagp+"x1", f"ds_read_b128 {vr(x1,4)}, v{XA+ks} offset:4096"),
                (tagp+"w1", f"ds_read_b64_tr_b16 {vr(w1,2)}, v{WA} offset:{8192+ks*2048}"),
                (tagp+"w1", f"ds_read_b64_tr_b16 {vr(w1+2,2)}, v{WA} offset:{8192+ks*2048+512}"),
                (tagp+"w2", f"ds_read_b64_tr_b16 {vr(w2,2)}, v{WA} offset:{16384+ks*2048}"),
                (tagp+"w2", f"ds_read_b64_tr_b16 {vr(w2+2,2)}, v{WA} offset:{16384+ks*2048+512}")]
    def mfma(setb, i, t):
        x = setb + 4*i; w = setb + 8 + 4*t; acc = ACC + 16*(i*3+t)
        if t < 2: return f"v_mfma_f32_32x32x16_bf16 {vr(acc,16)}, {vr(w,4)}, {vr(x,4)}, {vr(acc,16)}"
        return f"v_mfma_f32_32x32x16_bf16 {vr(acc,16)}, {vr(x,4)}, {vr(w,4)}, {vr(acc,16)}"
    for tag, ins in reads(SETS[0], 0, "A"):
        a(ins); lg.issue(tag)
    a.raw(".p2align 6")
    a.label("L_g1_loop")
    order = [(0,1),(0,2),(1,1),(1,2),(0,0),(1,0)]
    needs = [["x0","w1"],["w2"],["x1"],[],["w0"],[]]
    def reads2(setb, ks, tagp):
        R = reads(setb, ks, tagp)
        return [R[0], R[4], R[5], R[6], R[7], R[3], R[1], R[2]]
    a.l = a.l[:-10]; lg.q = []
    for tag, ins in reads2(SETS[0], 0, "A"):
        a(ins); lg.issue(tag)
    a.raw(".p2align 6")
    a.label("L_g1_loop")
    for ks in range(4):
        cur = SETS[ks & 1]; nxt = SETS[(ks+1) & 1]
        cp = "AB"[ks & 1]; np_ = "AB"[(ks+1) & 1]
        if ks == 3:
            lg.all()
            a("s_add_u32 s18, s18, 1")
            if QPF:
                a("s_and_b32 s19, s18, 11")
                a("s_cmp_eq_u32 s19, 2")
                a("s_cbranch_scc1 L_qpf_out")
                a.label("L_qpf_back")
            a("s_and_b32 s19, s18, %d" % (G1_NSLOT-1))
            a("s_cmp_eq_u32 s19, 0")
            a("s_cselect_b32 s20, s21, s22")
            for k in range(4): a(f"v_add_u32 v{XA+k}, s20, v{XA+k}")
            a(f"v_add_u32 v{WA}, s20, v{WA}")
            a("s_barrier")
        R = reads2(nxt, (ks+1) & 3, np_)
        slots = [[], R[0:2], R[2:4], R[4:6], R[6:8], []]
        for k in range(6):
            for tag, ins in slots[k]:
                a(ins); lg.issue(tag)
            lg.need([cp+t for t in needs[k]])
            a(mfma(cur, *order[k]))
    a("s_cmp_lt_u32 s18, 16")
    a("s_cbranch_scc1 L_g1_loop")
    a("s_waitcnt lgkmcnt(0) vmcnt(0)")
    stamp(a, 3)
    a("s_lshl_b32 s17, s10, 1")
    a("s_add_u32 s17, s17, s16")
    a("s_lshl_b32 s19, s11, 2")
    a("s_lshl_b32 s20, s15, 1")
    a("s_add_u32 s19, s19, s20")
    a("s_lshl_b32 s20, s17, 6")
    a("s_add_u32 s20, s20, s19")
    a("s_lshl_b32 s22, s20, 12")
    a("s_lshl_b32 s20, s15, 14")
    a("s_lshl_b32 s21, s16, 12")
    a("s_add_u32 s20, s20, s21")
    a("v_add_u32 v4, s20, v3")
    a("s_lshl_b32 s20, s16, 2")
    a("s_lshl_b32 s21, s15, 1")
    a("s_add_u32 s20, s20, s21")
    a("s_lshl_b32 s20, s20, 11")
    a(f"s_add_u32 s20, s20, {QX_OFF}")
    a("v_add_u32 v5, s20, v3")
    a(f"s_mov_b32 s23, {f32bits(QSCALE)}")
    a("s_nop 7")
    T = 64
    n = 0
    for i in range(2):
        for t in (1, 2):
            acc = ACC + 16*(i*3+t); base = T + 8*(n % 4); n += 1
            for r in range(8): a(f"v_cvt_pk_bf16_f32 v{base+r}, v{acc+2*r}, v{acc+2*r+1}")
            o = i*4096 + (t-1)*2048
            a(f"s_add_u32 s28, s22, {o}")
            a(f"buffer_store_dwordx4 {vr(base,4)}, v3, s[24:27], s28 offen sc1")
            a(f"buffer_store_dwordx4 {vr(base+4,4)}, v3, s[24:27], s28 offen offset:1024 sc1")
            a(f"ds_write_b128 v4, {vr(base,4)} offset:{i*8192+(t-1)*2048}")
            a(f"ds_write_b128 v4, {vr(base+4,4)} offset:{i*8192+(t-1)*2048+1024}")
    for i in range(2):
        acc = ACC + 16*(i*3); base = 96 + 8*i
        for r in range(16): a(f"v_mul_f32 v{acc+r}, s23, v{acc+r}")
        for r in range(8): a(f"v_cvt_pk_bf16_f32 v{base+r}, v{acc+2*r}, v{acc+2*r+1}")
        a(f"ds_write_b128 v5, {vr(base,4)} offset:{i*2048}")
        a(f"ds_write_b128 v5, {vr(base+4,4)} offset:{i*2048+1024}")
    a("s_cmp_eq_u32 s14, 0")
    a("s_cbranch_scc0 L_noep")
    a("s_mov_b32 s19, 0")
    a.label("L_tag_spin")
    a("v_readfirstlane_b32 s20, v242")
    a("s_add_u32 s19, s19, 1")
    a("s_cmp_lg_u32 s20, 0")
    a("s_cbranch_scc1 L_tag_ok")
    a(f"s_cmp_ge_u32 s19, {POLL_MAX}")
    a("s_cbranch_scc1 L_tag_ok")
    a("s_sleep 1")
    a("global_load_dword v242, v243, s[44:45] sc1")
    a("s_waitcnt vmcnt(0)")
    a("s_branch L_tag_spin")
    a.label("L_tag_ok")
    a(f"v_mov_b32 v6, {EP_OFF}")
    a("s_mov_b64 exec, 1")
    a("ds_write_b32 v6, v242")
    a("v_mov_b32 v7, 0")
    a(f"ds_write_b64 v6, v[7:8] offset:64" if False else f"ds_write_b32 v6, v7 offset:64")
    a(f"ds_write_b32 v6, v7 offset:68")
    a("s_mov_b64 exec, -1")
    a.label("L_noep")
    a("s_waitcnt lgkmcnt(0)")
    a.label("L_g1_done")
    a("s_barrier")
    dbgt(a, 3, True); dbgt(a, 4)
    stamp(a, 4)
    Q, K, V = 8, 16, 24
    S = [32, 48]; P = [64, 72]; O = 80; L = 96; ONES = 100; IDX = 104; VC = 105; VN = 106; M = 107; VB = 108; VD = 109
    a("s_lshr_b32 s15, s14, 2")
    a("s_and_b32 s16, s14, 3")
    a("s_lshl_b32 s17, s10, 1")
    a("s_add_u32 s17, s17, s15")
    a("s_lshl_b32 s18, s11, 2")
    a("s_add_u32 s18, s18, s16")
    a("s_lshl_b32 s20, s14, 11")
    a(f"s_add_u32 s20, s20, {QX_OFF}")
    a("v_add_u32 v4, s20, v3")
    a(f"ds_read_b128 {vr(Q,4)}, v4")
    a(f"ds_read_b128 {vr(Q+4,4)}, v4 offset:1024")
    a(f"v_mov_b32 v6, {EP_OFF}")
    a("ds_read_b32 v6, v6")
    a("s_lshl_b32 s22, s15, 12")
    a(f"v_add_u32 v{VB}, s22, v3")
    a(f"v_mov_b32 v{VC}, v{VB}")
    a(f"v_add_u32 v{VN}, {AT_SLOT}, v{VB}")
    a(f"ds_read_b128 {vr(K,4)}, v{VC}")
    a(f"ds_read_b128 {vr(K+4,4)}, v{VC} offset:1024")
    for r in range(16): a(f"v_mov_b32 v{O+r}, 0")
    for r in range(4): a(f"v_mov_b32 v{L+r}, 0")
    for r in range(8): a(f"v_mov_b32 v{P[1]+r}, 0")
    a("v_and_b32 v4, 6, v2")
    a("v_mov_b32 v5, 0x3f803f80")
    a("v_cmp_eq_u32 vcc, 0, v4")
    a("s_nop 1")
    a(f"v_cndmask_b32 v{ONES}, 0, v5, vcc")
    a(f"v_cndmask_b32 v{ONES+1}, 0, v5, vcc")
    a("v_cmp_eq_u32 vcc, 4, v4")
    a("s_nop 1")
    a(f"v_cndmask_b32 v{ONES+2}, 0, v5, vcc")
    a(f"v_cndmask_b32 v{ONES+3}, 0, v5, vcc")
    a("v_and_b32 v4, 1, v2")
    a("v_mov_b32 v5, 0x44444444")
    a("v_mov_b32 v7, 0xeeeeeeee")
    a("v_cmp_eq_u32 vcc, 0, v4")
    a("s_nop 1")
    a(f"v_cndmask_b32 v{IDX}, v7, v5, vcc")
    VONE = 110; VCA = 111; VCR = 112; VCV = 113
    a("s_lshl_b32 s20, s17, 18")
    a("s_lshl_b32 s21, s16, 10")
    a("s_add_u32 s20, s20, s21")
    a("s_lshl_b32 s21, s14, 10")
    a("s_mov_b32 s51, 4096"); a("s_mov_b32 s52, 8192"); a("s_mov_b32 s53, 12288")
    for q in range(4): a(f"s_mov_b32 s{28+q}, s{24+q}")
    a(f"v_mov_b32 v{VD}, v3")
    a(f"v_mov_b32 v{VONE}, 1")
    a("s_lshl_b32 s36, s15, 2")
    a(f"s_add_u32 s36, s36, {CNT_OFF}")
    a(f"v_mov_b32 v{VCR}, s36")
    a("s_lshl_b32 s37, s14, 8")
    a(f"s_add_u32 s37, s37, {SCR_OFF}")
    a("v_lshlrev_b32 v4, 2, v2")
    a(f"v_add_u32 v{VCA}, s37, v4")
    a("v_cmp_eq_u32 vcc, 0, v2")
    a("s_nop 1")
    a(f"v_cndmask_b32 v{VCA}, v{VCA}, v{VCR}, vcc")
    a("s_waitcnt lgkmcnt(0)")
    a("v_readfirstlane_b32 s46, v6")
    a(f"v_mfma_f32_32x32x16_bf16 {vr(S[0],16)}, {vr(K,4)}, {vr(Q,4)}, 0")
    a(f"v_mfma_f32_32x32x16_bf16 {vr(S[0],16)}, {vr(K+4,4)}, {vr(Q+4,4)}, {vr(S[0],16)}")
    lg = Lgkm(a)
    a(f"ds_read_b128 {vr(K,4)}, v{VC} offset:8192"); lg.issue("K")
    a(f"ds_read_b128 {vr(K+4,4)}, v{VC} offset:{8192+1024}"); lg.issue("K")
    a(f"ds_read_b128 {vr(V,4)}, v{VC} offset:2048"); lg.issue("V")
    a(f"ds_read_b128 {vr(V+4,4)}, v{VC} offset:3072"); lg.issue("V")
    a("s_nop 7")
    PRIO = E("PRIO", 1)
    def at_step(i, own):
        X = S[i & 1]; Y = S[(i+1) & 1]; PX = P[i & 1]; PY = P[(i+1) & 1]
        ex = lambda r: a(f"v_exp_f32 v{X+r}, v{X+r}")
        cv = lambda r: a(f"v_cvt_pk_bf16_f32 v{PX+r}, v{X+2*r}, v{X+2*r+1}")
        def kread():
            t = i + 2
            if own and t >= 4: return
            b = VC if t < 4 else VN
            off = (t % 4)*8192
            a(f"ds_read_b128 {vr(K,4)}, v{b} offset:{off}"); lg.issue("K")
            a(f"ds_read_b128 {vr(K+4,4)}, v{b} offset:{off+1024}"); lg.issue("K")
        def vread():
            off = i*8192 + 2048
            a(f"ds_read_b128 {vr(V,4)}, v{VC} offset:{off}"); lg.issue("V")
            a(f"ds_read_b128 {vr(V+4,4)}, v{VC} offset:{off+1024}"); lg.issue("V")
        def dma1(q):
            if own or E("DMAMODE", 1) == 0: return
            a(f"s_add_u32 m0, s38, {q*8192}")
            if q: a(f"s_add_u32 s39, s37, s{50+q}")
            else: a("s_mov_b32 s39, s37")
            a(f"buffer_load_dwordx4 v{VD}, s[28:31], s39 offen sc1 lds")
        qk0 = f"v_mfma_f32_32x32x16_bf16 {vr(Y,16)}, {vr(K,4)}, {vr(Q,4)}, 0"
        qk1 = f"v_mfma_f32_32x32x16_bf16 {vr(Y,16)}, {vr(K+4,4)}, {vr(Q+4,4)}, {vr(Y,16)}"
        pv0 = f"v_mfma_f32_32x32x16_bf16 {vr(O,16)}, {vr(V,4)}, {vr(PY,4)}, {vr(O,16)}"
        pv1 = f"v_mfma_f32_32x32x16_bf16 {vr(O,16)}, {vr(V+4,4)}, {vr(PY+4,4)}, {vr(O,16)}"
        smf = f"v_smfmac_f32_16x16x64_bf16 {vr(L,4)}, {vr(ONES,4)}, {vr(PY,8)}, v{IDX}"
        bk = []
        if i == 3 and not own:
            bk = ["s_add_u32 s23, s23, 1", "s_add_u32 s48, s48, 32768", "s_and_b32 s48, s48, 0x18000",
                  "s_add_u32 s49, s49, 32768", "s_and_b32 s49, s49, 0x18000", "s_add_u32 s38, s49, s21",
                  "s_add_u32 s55, s55, s56", "s_and_b32 s55, s55, s57", "s_add_u32 s37, s20, s55", "s_add_u32 s47, s47, 4"]
        def fill(n):
            for _ in range(n):
                if bk: a(bk.pop(0))
        if PRIO: a(f"s_setprio {3-i}")
        if own and i == 3:
            has_qk = False
        else:
            has_qk = True
        if own and i == E("FLAGSTEP", 2):
            a("s_cmp_lt_u32 s14, 4")
            a("s_cbranch_scc1 L_flag_out")
            a.label("L_flag_back")
        if has_qk:
            lg.need(["K"]); a(qk0)
        ex(0); ex(1); ex(2); ex(3)
        if has_qk: a(qk1)
        if i == 2 and not own:
            lg.need(["C"])
            a(f"v_readfirstlane_b32 s36, v{VCV}")
            ex(4)
            a("s_cmp_ge_u32 s36, s47")
            a("s_cbranch_scc0 L_cnt_spin")
            a.label("L_cnt_back")
            kread(); ex(5); cv(0); ex(6); cv(1)
        else:
            kread(); ex(4); ex(5); cv(0); ex(6); cv(1)
        lg.need(["V"])
        if i == 0 and not own:
            a("s_waitcnt vmcnt(4)")
            a(f"ds_add_u32 v{VCA}, v{VONE}"); lg.issue("A")
        a(pv0); ex(7); ex(8); cv(2)
        if i >= 2: dma1(2*(i-2))
        ex(9); cv(3)
        a(pv1)
        if i == 1 and not own:
            a(f"ds_read_b32 v{VCV}, v{VCR}"); lg.issue("C")
        if i >= 2: dma1(2*(i-2)+1)
        ex(10); fill(2); ex(11); fill(2); cv(4); fill(1); ex(12); fill(2); cv(5)
        a(smf); vread(); fill(1); ex(13); fill(2); ex(14); cv(6); ex(15)
        if i == 3:
            a(f"v_mov_b32 v{VC}, v{VN}")
            cv(7)
            if not own: a(f"v_add_u32 v{VN}, s48, v{VB}")
        else:
            a("s_nop 0")
            cv(7)
        assert not bk
    for i in range(4): at_step(i, True)
    stamp(a, 5)
    a("s_lshl_b32 s36, s10, 8")
    a(f"s_add_u32 s36, s36, {FLG_OFF}")
    a("v_lshlrev_b32 v114, 2, v2")
    a("v_add_u32 v114, s36, v114")
    a("s_cmp_eq_u32 s14, 7")
    a("s_cbranch_scc0 L_at_nopoll")
    if E("PART1", 1):
        a("s_add_u32 s36, s11, 1")
        a("s_lshl_b32 s36, s36, 2")
        a("s_and_b32 s36, s36, 63")
        a("s_sub_u32 s37, 64, s36")
        a("s_mov_b64 s[58:59], 0xfff")
        a("s_lshl_b64 s[48:49], s[58:59], s36")
        a("s_lshr_b64 s[58:59], s[58:59], s37")
        a("s_cmp_eq_u32 s36, 0")
        a("s_cselect_b64 s[58:59], 0, s[58:59]")
        a("s_or_b64 s[48:49], s[48:49], s[58:59]")
        poll(a, "f", 114, 48)
    else:
        poll(a, "f", 114)
    a.label("L_at_nopoll")
    a("s_barrier")
    stamp(a, 6)
    def kvstage(st):
        a(f"s_add_u32 s36, s11, {st}")
        a("s_and_b32 s36, s36, 15")
        a("s_lshl_b32 s36, s36, 14")
        a("s_add_u32 s36, s36, s20")
        for kk in range(4):
            a(f"s_add_u32 m0, s21, {st*AT_SLOT + kk*8192}")
            a(f"s_add_u32 s39, s36, {kk*4096}")
            a(f"buffer_load_dwordx4 v3, s[24:27], s39 offen sc1 lds")
    kvstage(1); kvstage(2)
    a("s_mov_b32 s23, 1")
    a(f"s_mov_b32 s48, {2*AT_SLOT}")
    a(f"v_add_u32 v{VN}, s48, v{VB}")
    a("s_mov_b32 s49, 0")
    a("s_mov_b32 s38, s21")
    a("s_add_u32 s55, s11, 4")
    a("s_and_b32 s55, s55, 15")
    a("s_lshl_b32 s55, s55, 14")
    a("s_mov_b32 s56, 16384"); a("s_mov_b32 s57, 0x3c000")
    a("s_add_u32 s37, s20, s55")
    a("s_mov_b32 s47, 4")
    a("s_mov_b32 s59, 13")
    a("s_waitcnt vmcnt(4)")
    a("s_barrier")
    if E("PART1", 1):
        a("s_and_b32 s36, s14, 3")
        a("s_cmp_eq_u32 s36, 3")
        a("s_cbranch_scc0 L_at_nopoll2")
        poll(a, "f2", 114)
        a("s_mov_b32 s47, 4")
        a.label("L_at_nopoll2")
    kvstage(3)
    stamp(a, 7)
    a(f"ds_read_b128 {vr(K,4)}, v{VC}")
    a(f"ds_read_b128 {vr(K+4,4)}, v{VC} offset:1024")
    a("s_waitcnt lgkmcnt(0)")
    a(f"v_mfma_f32_32x32x16_bf16 {vr(S[0],16)}, {vr(K,4)}, {vr(Q,4)}, 0")
    a(f"v_mfma_f32_32x32x16_bf16 {vr(S[0],16)}, {vr(K+4,4)}, {vr(Q+4,4)}, {vr(S[0],16)}")
    a(f"ds_read_b128 {vr(K,4)}, v{VC} offset:8192")
    a(f"ds_read_b128 {vr(K+4,4)}, v{VC} offset:{8192+1024}")
    a("s_waitcnt lgkmcnt(0)")
    a("s_nop 7")
    stamp(a, 14)
    dbgt(a, 5, True); dbgt(a, 6)
    lg.q = ["K", "K", "V", "V"]
    a.raw(".p2align 6")
    a.label("L_at_loop")
    for i in range(4): at_step(i, False)
    assert lg.q == ["K", "K", "V", "V"], lg.q
    a("s_cmp_eq_u32 s23, s59")
    a("s_cbranch_scc0 L_at_loop")
    a("s_cmp_eq_u32 s23, 16")
    a("s_cbranch_scc1 L_at_tail")
    stamp(a, 15)
    a("s_mov_b32 s59, 16")
    a("s_mov_b32 s51, 131072"); a("s_mov_b32 s52, 262144"); a("s_mov_b32 s53, 393216")
    a("s_lshl_b32 s39, s11, 7")
    a("s_sub_u32 s36, 0x200000, s39")
    a("s_add_u32 s28, s40, s39"); a("s_addc_u32 s29, s41, 0"); a("s_mov_b32 s30, s36"); a("s_mov_b32 s31, 0x20000")
    a("s_lshl_b32 s20, s14, 14")
    a("s_mov_b32 s55, 0"); a("s_mov_b32 s56, 524288"); a("s_mov_b32 s57, -1")
    a("s_mov_b32 s37, s20")
    a("v_lshrrev_b32 v4, 3, v2")
    a("v_lshlrev_b32 v4, 11, v4")
    a("v_and_b32 v5, 7, v2")
    a("v_lshrrev_b32 v6, 4, v2")
    a("v_and_b32 v6, 1, v6")
    a("v_lshlrev_b32 v6, 2, v6")
    a("v_xor_b32 v5, v5, v6")
    a("v_lshlrev_b32 v5, 4, v5")
    a(f"v_add_u32 v{VD}, v4, v5")
    a("s_branch L_at_loop")
    a.label("L_cnt_spin")
    a("s_mov_b32 s39, 0")
    a.label("L_cnt_spin2")
    a(f"ds_read_b32 v{VCV}, v{VCR}")
    a("s_waitcnt lgkmcnt(0)")
    a(f"v_readfirstlane_b32 s36, v{VCV}")
    a("s_add_u32 s39, s39, 1")
    a(f"s_cmp_ge_u32 s39, {POLL_MAX*16}")
    a("s_cbranch_scc1 L_cnt_back")
    a("s_cmp_ge_u32 s36, s47")
    a("s_cbranch_scc0 L_cnt_spin2")
    a("s_branch L_cnt_back")
    a.label("L_at_tail")
    a("s_setprio 0")
    PL = P[1]
    a("s_waitcnt lgkmcnt(0)")
    a(f"v_mfma_f32_32x32x16_bf16 {vr(O,16)}, {vr(V,4)}, {vr(PL,4)}, {vr(O,16)}")
    a(f"v_mfma_f32_32x32x16_bf16 {vr(O,16)}, {vr(V+4,4)}, {vr(PL+4,4)}, {vr(O,16)}")
    a(f"v_smfmac_f32_16x16x64_bf16 {vr(L,4)}, {vr(ONES,4)}, {vr(PL,8)}, v{IDX}")
    stamp(a, 8)
    dbgt(a, 7, True); dbgt(a, 8)
    a("s_nop 8")
    a("s_nop 7")
    a(f"v_add_f32 v{L}, v{L}, v{L+1}")
    a(f"v_mov_b32 v4, {f32bits(2.0**-40)}")
    a(f"v_mov_b32 v5, {f32bits(2.0**40)}")
    a(f"v_cmp_nge_f32 vcc, v{L}, v4")
    a(f"v_cmp_nle_f32 s[44:45], v{L}, v5")
    a("s_or_b64 s[44:45], s[44:45], vcc")
    a(f"v_mov_b32 v5, {f32bits(2.0**100)}")
    for r in range(16):
        a(f"v_cmp_nlt_f32 vcc, abs(v{O+r}), v5")
        a("s_or_b64 s[44:45], s[44:45], vcc")
    a("s_cmp_lg_u64 s[44:45], 0")
    a("s_cbranch_scc1 L_at_slow")
    a.label("L_at_fin")
    a(f"v_rcp_f32 v4, v{L}")
    a("s_nop 0")
    for r in range(16): a(f"v_mul_f32 v{O+r}, v{O+r}, v4")
    for r in range(8): a(f"v_cvt_pk_bf16_f32 v{P[0]+r}, v{O+2*r}, v{O+2*r+1}")
    a("s_lshl_b32 s19, s18, 6")
    a("s_lshl_b32 s36, s17, 1")
    a("s_add_u32 s19, s19, s36")
    a("s_lshl_b32 s19, s19, 10")
    a(f"s_add_u32 s19, s19, {OF_OFF}")
    a(f"buffer_store_dwordx4 {vr(P[0],4)}, v3, s[24:27], s19 offen sc1")
    a(f"buffer_store_dwordx4 {vr(P[0]+4,4)}, v3, s[24:27], s19 offen offset:1024 sc1")
    srd(a, 32, 42, None, 0x400000)
    a("s_barrier")
    for q in range(4):
        a(f"s_add_u32 m0, s21, {3*AT_SLOT + q*8192}")
        a(f"s_add_u32 s39, s37, s{50+q}" if q else "s_mov_b32 s39, s37")
        a(f"buffer_load_dwordx4 v{VD}, s[28:31], s39 offen lds")
    a("s_waitcnt vmcnt(4)")
    a("s_lshl_b32 s36, s11, 9")
    a("s_lshl_b32 s37, s16, 7")
    a("s_add_u32 s36, s36, s37")
    a("s_lshl_b32 s37, s10, 3")
    a("s_add_u32 s36, s36, s37")
    a("s_lshl_b32 s37, s15, 2")
    a("s_add_u32 s36, s36, s37")
    a(f"s_add_u32 s36, s36, {FLG_OFF+8192}")
    a("v_mov_b32 v5, s36")
    a("v_mov_b32 v6, s46")
    a("s_mov_b64 exec, 1")
    a("buffer_store_dword v6, v5, s[24:27], 0 offen sc1")
    a("s_mov_b64 exec, -1")
    stamp(a, 9)
    a("v_lshrrev_b32 v5, 5, v2")
    a("v_and_b32 v6, 15, v2")
    a("v_lshrrev_b32 v6, 2, v6")
    a("v_lshlrev_b32 v7, 2, v5")
    a("v_add_u32 v7, v7, v6")
    a("v_lshlrev_b32 v7, 7, v7")
    a("v_lshrrev_b32 v8, 4, v2")
    a("v_and_b32 v8, 1, v8")
    a("v_lshlrev_b32 v8, 1, v8")
    a("v_and_b32 v9, 3, v2")
    a("v_lshrrev_b32 v10, 1, v9")
    a("v_add_u32 v8, v8, v10")
    a("v_lshrrev_b32 v10, 1, v6")
    a("v_lshlrev_b32 v10, 2, v10")
    a("v_xor_b32 v8, v8, v10")
    a("v_lshlrev_b32 v8, 4, v8")
    a("v_add_u32 v7, v7, v8")
    a("v_and_b32 v9, 1, v9")
    a("v_lshlrev_b32 v9, 3, v9")
    a("v_add_u32 v7, v7, v9")
    a("s_lshl_b32 s36, s15, 16")
    a(f"s_add_u32 s36, s36, {WO_LDS}")
    a("v_add_u32 v12, s36, v7")
    a("v_xor_b32 v13, 64, v12")
    ACC = 16
    for r in range(32): a(f"v_mov_b32 v{ACC+r}, 0")
    a("s_lshl_b32 s36, s10, 9")
    a("s_lshl_b32 s37, s16, 7")
    a("s_add_u32 s36, s36, s37")
    a("s_lshl_b32 s37, s15, 6")
    a("s_add_u32 s36, s36, s37")
    a(f"s_add_u32 s36, s36, {FLG_OFF+8192}")
    a("v_and_b32 v4, 15, v2")
    a("v_lshlrev_b32 v4, 2, v4")
    a("v_add_u32 v4, s36, v4")
    OFR = 64
    a("s_lshl_b32 s36, s10, 2")
    a("s_add_u32 s36, s36, s16")
    a("s_lshl_b32 s36, s36, 6")
    a("s_lshl_b32 s37, s15, 5")
    a("s_add_u32 s36, s36, s37")
    a("s_lshl_b32 s36, s36, 10")
    a(f"s_add_u32 s36, s36, {OF_OFF}")
    a("s_and_b32 s50, s11, 7")
    a("s_lshl_b32 s51, s50, 1")
    a("s_sub_u32 s52, 16, s51")
    a("s_mov_b32 s48, 0")
    a("s_mov_b32 s54, 0")
    a("s_mov_b32 s47, 0")
    a("s_mov_b32 s49, 0")
    a("buffer_load_dword v5, v4, s[24:27], 0 offen sc1")
    a("s_waitcnt vmcnt(1)")
    a("s_barrier")
    WF = [48, 56]
    def og_loads(i):
        a(f"s_add_u32 s53, s50, {i}")
        a("s_and_b32 s53, s53, 7")
        a("s_lshl_b32 s53, s53, 12")
        a("s_add_u32 s53, s53, s36")
        for q in range(4):
            a(f"buffer_load_dwordx4 {vr(OFR+16*i+4*q,4)}, v3, s[24:27], s53 offen offset:{q*1024} sc1")
    def og_mfma(i):
        a(f"s_add_u32 s53, s50, {i}")
        a("s_and_b32 s53, s53, 7")
        a("s_lshl_b32 s53, s53, 13")
        a("v_add_u32 v14, s53, v12")
        a("v_add_u32 v15, s53, v13")
        def wreads(setb, q):
            for ct in range(2):
                for jj in range(2):
                    a(f"ds_read_b64_tr_b16 {vr(setb+4*ct+2*jj,2)}, v{14+ct} offset:{q*2048+jj*1024}")
        def mm(setb, q):
            for ct in range(2):
                a(f"v_mfma_f32_32x32x16_bf16 {vr(ACC+16*ct,16)}, {vr(setb+4*ct,4)}, {vr(OFR+16*i+4*q,4)}, {vr(ACC+16*ct,16)}")
        return wreads, mm
    a.label("L_og_round")
    a("s_waitcnt vmcnt(0)")
    a("s_or_b32 s48, s48, s49")
    a("v_cmp_eq_u32 vcc, s46, v5")
    a("s_add_u32 s47, s47, 1")
    a("s_lshr_b32 s49, vcc_lo, 1")
    a("s_and_b32 s49, s49, vcc_lo")
    a("s_and_b32 s49, s49, 0x5555")
    a("s_lshr_b32 s53, s49, s51")
    a("s_lshl_b32 s49, s49, s52")
    a("s_or_b32 s49, s49, s53")
    a("s_and_b32 s49, s49, 0x5555")
    a(f"s_cmp_ge_u32 s47, {POLL_MAX}")
    a("s_cselect_b32 s49, 0x5555, s49")
    a("s_andn2_b32 s49, s49, s48")
    if E("DIAG3"):
        a("s_cmp_eq_u32 s47, 1")
        a("s_cbranch_scc0 L_d3a")
        stamp(a, 2)
        a("s_mov_b32 s70, s49")
        a.label("L_d3a")
        a("s_cmp_eq_u32 s47, 2")
        a("s_cbranch_scc0 L_d3b")
        stamp(a, 3)
        a("s_mov_b32 s72, s49")
        a.label("L_d3b")
        a("s_mov_b32 s74, s47")
    stamp(a, 10)
    a("s_cmp_eq_u32 s49, 0x5555")
    a("s_cbranch_scc1 L_og_fast")
    for i in range(8):
        a(f"s_bitcmp1_b32 s49, {2*i}")
        a(f"s_cbranch_scc0 L_og_nl{i}")
        og_loads(i)
        a.label(f"L_og_nl{i}")
    a("s_or_b32 s53, s48, s49")
    a("s_cmp_eq_u32 s53, 0x5555")
    a("s_cbranch_scc1 L_og_nopoll")
    a("s_cmp_eq_u32 s49, 0")
    a("s_cbranch_scc0 L_og_poll")
    a("s_sleep 4")
    a.label("L_og_poll")
    a("buffer_load_dword v5, v4, s[24:27], 0 offen sc1")
    a.label("L_og_nopoll")
    for i in range(8):
        a(f"s_bitcmp1_b32 s54, {2*i}")
        a(f"s_cbranch_scc1 L_og_nm{i}")
        a(f"s_bitcmp1_b32 s48, {2*i}")
        a(f"s_cbranch_scc0 L_og_round")
        a(f"s_bitset1_b32 s54, {2*i}")
        wreads, mm = og_mfma(i)
        wreads(WF[0], 0); wreads(WF[1], 1)
        a("s_waitcnt lgkmcnt(4)"); mm(WF[0], 0)
        wreads(WF[0], 2)
        a("s_waitcnt lgkmcnt(4)"); mm(WF[1], 1)
        wreads(WF[1], 3)
        a("s_waitcnt lgkmcnt(4)"); mm(WF[0], 2)
        a("s_waitcnt lgkmcnt(0)"); mm(WF[1], 3)
        a.label(f"L_og_nm{i}")
    a("s_branch L_og_done")
    a.label("L_og_fast")
    for i in range(8): og_loads(i)
    for i in range(8):
        wreads, mm = og_mfma(i)
        wreads(WF[0], 0); wreads(WF[1], 1)
        a(f"s_waitcnt vmcnt({28-4*i+2}) lgkmcnt(4)"); mm(WF[0], 0)
        wreads(WF[0], 2)
        a("s_waitcnt lgkmcnt(4)"); mm(WF[1], 1)
        wreads(WF[1], 3)
        a(f"s_waitcnt vmcnt({28-4*i}) lgkmcnt(4)"); mm(WF[0], 2)
        a("s_waitcnt lgkmcnt(0)"); mm(WF[1], 3)
    a.label("L_og_done")
    stamp(a, 11)
    a("s_lshl_b32 s36, s14, 12")
    a(f"s_add_u32 s36, s36, {XCH_OFF}")
    a("v_add_u32 v5, s36, v3")
    a("s_xor_b32 s36, s14, 4")
    a("s_lshl_b32 s36, s36, 12")
    a(f"s_add_u32 s36, s36, {XCH_OFF}")
    a("v_add_u32 v6, s36, v3")
    a("s_nop 9")
    a("s_cmp_eq_u32 s15, 0")
    a("s_cbranch_scc1 L_op_kh0")
    for q in range(4): a(f"ds_write_b128 v5, {vr(ACC+4*q,4)} offset:{q*1024}")
    for r in range(16): a(f"v_mov_b32 v{48+r}, v{ACC+16+r}")
    a("s_branch L_op_x")
    a.label("L_op_kh0")
    for q in range(4): a(f"ds_write_b128 v5, {vr(ACC+16+4*q,4)} offset:{q*1024}")
    for r in range(16): a(f"v_mov_b32 v{48+r}, v{ACC+r}")
    a.label("L_op_x")
    a("s_waitcnt lgkmcnt(0)")
    a("s_barrier")
    for q in range(4): a(f"ds_read_b128 {vr(64+4*q,4)}, v6 offset:{q*1024}")
    a("s_waitcnt lgkmcnt(0)")
    for r in range(16): a(f"v_add_f32 v{48+r}, v{48+r}, v{64+r}")
    for r in range(8): a(f"v_cvt_pk_bf16_f32 v{64+r}, v{48+2*r}, v{48+2*r+1}")
    a("v_and_b32 v5, 31, v2")
    a("v_lshlrev_b32 v5, 11, v5")
    a("v_lshrrev_b32 v6, 5, v2")
    a("v_lshlrev_b32 v6, 4, v6")
    a("v_add_u32 v5, v5, v6")
    for g in (0, 2):
        a(f"v_permlane32_swap_b32 v{64+2*g}, v{64+2*g+2}")
        a(f"v_permlane32_swap_b32 v{64+2*g+1}, v{64+2*g+3}")
    a("s_lshl_b32 s36, s10, 2")
    a("s_add_u32 s36, s36, s16")
    a("s_lshl_b32 s36, s36, 16")
    a("s_lshl_b32 s37, s11, 7")
    a("s_add_u32 s36, s36, s37")
    a("s_lshl_b32 s37, s15, 6")
    a("s_add_u32 s36, s36, s37")
    a(f"buffer_store_dwordx4 {vr(64,4)}, v5, s[32:35], s36 offen")
    a(f"buffer_store_dwordx4 {vr(68,4)}, v5, s[32:35], s36 offen offset:32")
    if STAMP:
        a("s_waitcnt vmcnt(0)")
        stamp(a, 12); stamp_rt(a, 13); stamp_store(a, 16)
    if DBGT:
        a("s_waitcnt vmcnt(0)")
        dbgt(a, 11, True); dbgt(a, 12)
    a("s_endpgm")
    if QPF:
        a.label("L_qpf_out")
        qpf("c")
        a("s_branch L_qpf_back")
    a.label("L_flag_out")
    a("s_waitcnt vmcnt(0)")
    a("s_lshl_b32 s36, s10, 8")
    a("s_lshl_b32 s39, s11, 4")
    a("s_add_u32 s36, s36, s39")
    a("s_lshl_b32 s39, s14, 2")
    a("s_add_u32 s36, s36, s39")
    a(f"s_add_u32 s36, s36, {FLG_OFF}")
    a("v_mov_b32 v4, s36")
    a("v_mov_b32 v5, s46")
    a("s_mov_b64 exec, 1")
    a("buffer_store_dword v5, v4, s[24:27], 0 offen sc1")
    a("s_mov_b64 exec, -1")
    a("s_branch L_flag_back")
    a.label("L_at_slow")
    X = S[0]; PX = P[0]
    a(f"v_mov_b32 v{M}, 0xff800000")
    a(f"v_mov_b32 v{L}, 0")
    for r in range(16): a(f"v_mov_b32 v{O+r}, 0")
    a("s_lshl_b32 s36, s17, 18")
    a("s_mov_b32 s47, 0")
    a.label("L_at_slow_loop")
    a(f"buffer_load_dwordx4 {vr(K,4)}, v3, s[24:27], s36 offen sc1")
    a(f"buffer_load_dwordx4 {vr(K+4,4)}, v3, s[24:27], s36 offen offset:1024 sc1")
    a(f"buffer_load_dwordx4 {vr(V,4)}, v3, s[24:27], s36 offen offset:2048 sc1")
    a(f"buffer_load_dwordx4 {vr(V+4,4)}, v3, s[24:27], s36 offen offset:3072 sc1")
    a("s_waitcnt vmcnt(0)")
    a(f"v_mfma_f32_32x32x16_bf16 {vr(X,16)}, {vr(K,4)}, {vr(Q,4)}, 0")
    a(f"v_mfma_f32_32x32x16_bf16 {vr(X,16)}, {vr(K+4,4)}, {vr(Q+4,4)}, {vr(X,16)}")
    a("s_nop 15"); a("s_nop 3")
    a(f"v_max_f32 v4, v{X}, v{X+1}")
    for r in range(2, 16): a(f"v_max_f32 v4, v4, v{X+r}")
    a("v_mov_b32 v5, v4")
    a("s_nop 1")
    a("v_permlane32_swap_b32 v4, v5")
    a("s_nop 1")
    a("v_max_f32 v4, v4, v5")
    a(f"v_max_f32 v4, v4, v{M}")
    a(f"v_sub_f32 v5, v{M}, v4")
    a("v_exp_f32 v5, v5")
    a(f"v_mov_b32 v{M}, v4")
    for r in range(16): a(f"v_sub_f32 v{X+r}, v{X+r}, v4")
    for r in range(16): a(f"v_exp_f32 v{X+r}, v{X+r}")
    a("s_nop 0")
    for r in range(8): a(f"v_cvt_pk_bf16_f32 v{PX+r}, v{X+2*r}, v{X+2*r+1}")
    a(f"v_mul_f32 v{L}, v{L}, v5")
    for r in range(16): a(f"v_mul_f32 v{O+r}, v{O+r}, v5")
    for r in range(8):
        a(f"v_lshlrev_b32 v6, 16, v{PX+r}")
        a(f"v_and_b32 v7, 0xffff0000, v{PX+r}")
        a(f"v_add_f32 v{L}, v{L}, v6")
        a(f"v_add_f32 v{L}, v{L}, v7")
    a("s_nop 1")
    a(f"v_mfma_f32_32x32x16_bf16 {vr(O,16)}, {vr(V,4)}, {vr(PX,4)}, {vr(O,16)}")
    a(f"v_mfma_f32_32x32x16_bf16 {vr(O,16)}, {vr(V+4,4)}, {vr(PX+4,4)}, {vr(O,16)}")
    a("s_nop 15"); a("s_nop 3")
    a("s_add_u32 s36, s36, 4096")
    a("s_add_u32 s47, s47, 1")
    a("s_cmp_lt_u32 s47, 64")
    a("s_cbranch_scc1 L_at_slow_loop")
    a(f"v_mov_b32 v5, v{L}")
    a(f"v_mov_b32 v4, v{L}")
    a("s_nop 1")
    a("v_permlane32_swap_b32 v4, v5")
    a("s_nop 1")
    a(f"v_add_f32 v{L}, v4, v5")
    a("s_branch L_at_fin")
    a.label("L_end")
    a("s_endpgm")
    return a.text()

HEADER = """; Fused multi-head attention: QKV projection -> softmax attention -> output projection, one persistent launch.
; @launch grid=(256,1,1) block=(512,1,1) lds=163840
"""
def main(out):
    vg = 256 if (STAMP or DBGT) else 244
    sg = 96 if (STAMP or DBGT) else 64
    txt = HEADER + '.amdgcn_target "amdgcn-amd-amdhsa--gfx950"\n.text\n' + gen()
    txt += f""".section .rodata,"a"
.p2align 6
.amdhsa_kernel {KNAME}
  .amdhsa_next_free_vgpr {vg}
  .amdhsa_next_free_sgpr {sg}
  .amdhsa_accum_offset {(vg+3)//4*4}
  .amdhsa_group_segment_fixed_size 0
  .amdhsa_kernarg_size 48
  .amdhsa_user_sgpr_count 2
  .amdhsa_user_sgpr_kernarg_segment_ptr 1
  .amdhsa_system_sgpr_workgroup_id_x 1
.end_amdhsa_kernel
"""
    open(out, "w").write(txt)
if __name__ == "__main__":
    main(sys.argv[1] if len(sys.argv) > 1 else "cdna_kernels/%s.s" % NAME)
```

```python
import sys, os, struct
NAME = "standalone__softmax_full_mha__prompt"
KNAME = NAME + "_kernel"
E = lambda k, d=0: int(os.environ.get(k, str(d)))
STAMP = E("STAMP")
STAMP_OFF = 32 << 20

class A:
    def __init__(self): self.l = []
    def __call__(self, s): self.l.append("    " + s)
    def label(self, s): self.l.append(s + ":")
    def raw(self, s): self.l.append(s)
    def text(self): return "\n".join(self.l) + "\n"
def vr(b, n=1): return f"v{b}" if n == 1 else f"v[{b}:{b+n-1}]"
def f32bits(x): return struct.unpack('<I', struct.pack('<f', x))[0]

class Lgkm:
    def __init__(self, a): self.a = a; self.q = []
    def issue(self, tag): self.q.append(tag)
    def need(self, tags):
        idx = -1
        for i, t in enumerate(self.q):
            if t in tags: idx = i
        if idx < 0: return
        n = len(self.q) - 1 - idx
        assert n <= 15
        self.a(f"s_waitcnt lgkmcnt({n})")
        self.q = self.q[idx+1:]
    def all(self):
        if self.q:
            self.a("s_waitcnt lgkmcnt(0)")
            self.q = []

KVF_OFF = 0
OF_OFF  = 8 << 20
FSH = E("FSH", 7)
D2 = FSH - 2
G_OFF = (12 << 20) + (1024 << FSH)
FLG_OFF = 12 << 20
WS_USED = 13 << 20
QSCALE = 0.17677669529663687 * 1.4426950408889634
G1_NSLOT = 4; G1_SLOT = 40960
AT_SLOT = 32768
QX_OFF = 131072
AT_R = 4
WO_LDS = 0
CNT_OFF = 147456 + 64
SCR_OFF = 147456 + 1024
XCH_OFF = 131072
EP_OFF = 147456
POLL_MAX = 40000

def stamp(a, k):
    if STAMP:
        a(f"s_memtime s[{60+2*k}:{61+2*k}]"); a("s_waitcnt lgkmcnt(0)")
def stamp_rt(a, k):
    if STAMP:
        a(f"s_memrealtime s[{60+2*k}:{61+2*k}]"); a("s_waitcnt lgkmcnt(0)")
def stamp_store(a, n):
    if STAMP:
        a(f"s_lshl_b32 s58, s2, 3"); a(f"s_add_u32 s58, s58, s14"); a(f"s_lshl_b32 s58, s58, 7")
        a(f"s_add_u32 s58, s58, {STAMP_OFF}")
        a(f"s_add_u32 s56, s8, s58"); a(f"s_addc_u32 s57, s9, 0")
        a("v_mov_b32 v254, 0")
        for k in range(n):
            a(f"v_mov_b32 v255, s{60+2*k}")
            a(f"global_store_dword v254, v255, s[56:57] offset:{4*k}")
        a("s_waitcnt vmcnt(0)")

DBGT = E("DBGT")
DSLOT = {1:0, 13:1, 3:2, 5:3, 7:4, 9:5, 11:6}
def dbgt(a, slot, neg=False):
    if DBGT and neg:
        i = DSLOT[slot]
        a(f"s_memrealtime s[{60+2*i}:{61+2*i}]")
        a("s_waitcnt lgkmcnt(0)")
        if slot == 11:
            a(f"s_and_b32 s92, s2, 0x7f")
            a("s_cmp_eq_u32 s92, 0")
            a("s_cbranch_scc0 L_dbg_skip")
            a("s_cmp_eq_u32 s14, 4")
            a("s_cbranch_scc0 L_dbg_skip")
            a("s_lshr_b32 s92, s2, 7")
            a("s_mul_i32 s92, s92, 28")
            a("v_mov_b32 v251, s92")
            for k in range(7):
                a(f"v_mov_b32 v250, s{60+2*k}")
                a(f"global_store_dword v251, v250, s[90:91] offset:{4+4*k}")
            a.label("L_dbg_skip")

def srd(a, d, plo, off, nrec):
    if off is None:
        a(f"s_mov_b32 s{d}, s{plo}"); a(f"s_mov_b32 s{d+1}, s{plo+1}")
    else:
        a(f"s_add_u32 s{d}, s{plo}, {off}"); a(f"s_addc_u32 s{d+1}, s{plo+1}, 0")
    a(f"s_mov_b32 s{d+2}, {nrec}"); a(f"s_mov_b32 s{d+3}, 0x20000")

def poll(a, name, voff, mask=None):
    a(f"s_mov_b32 s47, 0")
    a.label(f"L_poll_{name}")
    a(f"buffer_load_dword v5, v{voff}, s[24:27], 0 offen sc1")
    a("s_waitcnt vmcnt(0)")
    a("v_cmp_ne_u32 vcc, s46, v5")
    a("s_add_u32 s47, s47, 1")
    if mask is not None: a(f"s_and_b64 vcc, vcc, s[{mask}:{mask+1}]")
    a("s_cmp_eq_u64 vcc, 0")
    a(f"s_cbranch_scc1 L_poll_{name}_done")
    a(f"s_cmp_ge_u32 s47, {POLL_MAX}")
    a(f"s_cbranch_scc1 L_poll_{name}_done")
    a("s_sleep 1")
    a(f"s_branch L_poll_{name}")
    a.label(f"L_poll_{name}_done")

def gen():
    a = A()
    a.raw(f".globl {KNAME}\n.p2align 8\n.type {KNAME},@function\n{KNAME}:")
    a("s_cmp_ge_u32 s2, 256")
    a("s_cbranch_scc1 L_end")
    a("s_load_dwordx4 s[4:7], s[0:1], 0")
    a("s_load_dwordx2 s[8:9], s[0:1], 40")
    a("s_load_dwordx4 s[40:43], s[0:1], 16")
    a("s_load_dwordx2 s[44:45], s[0:1], 32")
    a("s_and_b32 s12, s2, 7")
    a("s_lshr_b32 s11, s2, 3")
    a("s_mov_b32 s13, 0")
    if E("MAP", 2) == 0:
        a("s_lshr_b32 s10, s12, 1")
        a("s_lshl_b32 s10, s10, 2")
        a("s_and_b32 s16, s11, 3")
        a("s_add_u32 s10, s10, s16")
        a("s_lshr_b32 s11, s11, 2")
        a("s_and_b32 s12, s12, 1")
        a("s_lshl_b32 s12, s12, 3")
        a("s_add_u32 s11, s11, s12")
    elif E("MAP", 2) == 2:
        a("s_lshl_b32 s10, s12, 1")
        a("s_and_b32 s16, s11, 1")
        a("s_add_u32 s10, s10, s16")
        a("s_lshr_b32 s11, s11, 1")
    else:
        a("s_and_b32 s10, s12, 1")
        a("s_lshl_b32 s10, s10, 3")
        a("s_and_b32 s16, s11, 7")
        a("s_add_u32 s10, s10, s16")
        a("s_lshr_b32 s11, s11, 3")
        a("s_lshr_b32 s12, s12, 1")
        a("s_lshl_b32 s12, s12, 2")
        a("s_add_u32 s11, s11, s12")
    a("v_lshrrev_b32 v1, 6, v0")
    a("v_and_b32 v2, 63, v0")
    a("v_lshlrev_b32 v3, 4, v2")
    a("v_readfirstlane_b32 s14, v1")
    a("s_waitcnt lgkmcnt(0)")
    stamp_rt(a, 0); stamp(a, 1)
    if DBGT:
        a("s_mov_b32 s90, s44"); a("s_mov_b32 s91, s45")
    dbgt(a, 1, True); dbgt(a, 2)
    srd(a, 24, 8, None, WS_USED)
    a("s_cmp_lt_u32 s14, 4")
    a("s_cbranch_scc1 L_g1_compute")
    a("s_sub_u32 s15, s14, 4")
    a("s_lshl_b32 s16, s11, 18")
    a("s_sub_u32 s17, 0x400000, s16")
    a("s_add_u32 s28, s4, s16"); a("s_addc_u32 s29, s5, 0"); a("s_mov_b32 s30, s17"); a("s_mov_b32 s31, 0x20000")
    a("s_lshl_b32 s16, s10, 7")
    a("s_sub_u32 s17, 0x600000, s16")
    a("s_add_u32 s32, s6, s16"); a("s_addc_u32 s33, s7, 0"); a("s_mov_b32 s34, s17"); a("s_mov_b32 s35, 0x20000")
    a("v_lshrrev_b32 v4, 3, v2")
    a("v_lshlrev_b32 v5, 11, v4")
    a("v_and_b32 v6, 7, v2")
    a("v_lshrrev_b32 v7, 4, v2")
    a("v_xor_b32 v8, v6, v7")
    a("v_lshlrev_b32 v8, 4, v8")
    a("v_add_u32 v5, v5, v8")
    a("s_lshl_b32 s16, s15, 16")
    a("v_add_u32 v10, s16, v5")
    a("v_xor_b32 v11, 64, v10")
    a("v_mul_u32_u24 v5, 6144, v4")
    a("v_and_b32 v7, 1, v7")
    a("v_lshlrev_b32 v7, 2, v7")
    a("v_xor_b32 v8, v6, v7")
    a("v_lshlrev_b32 v8, 4, v8")
    a("v_add_u32 v5, v5, v8")
    a("s_mul_i32 s16, s15, 98304")
    a("v_add_u32 v12, s16, v5")
    a("s_lshl_b32 s18, s15, 12")
    a("s_lshl_b32 s19, s15, 11")
    a("s_add_u32 s19, s19, 16384")
    a("s_mov_b32 s20, s13")
    a("s_mov_b32 s36, 0")
    if E("X0PF", 0):
        a("s_and_b32 s36, s10, 1")
        a("s_lshl_b32 s36, s36, 6")
        a("v_add_u32 v13, s36, v2")
        a("v_lshlrev_b32 v13, 11, v13")
        a("s_lshl_b32 s36, s15, 7")
        a("buffer_load_dword v16, v13, s[28:31], s36 offen")
        a("s_mov_b32 s36, 0")
        a("s_waitcnt vmcnt(0)")
    first = [True]
    XPF = E("XPF", 0)
    NV = 11 if XPF else 10
    if XPF:
        a("v_and_b32 v13, 15, v2")
        a("s_and_b32 s36, s10, 1")
        a("s_lshl_b32 s36, s36, 2")
        a("s_add_u32 s36, s36, s15")
        a("s_lshl_b32 s36, s36, 4")
        a("v_add_u32 v13, s36, v13")
        a("v_lshlrev_b32 v13, 11, v13")
        a("s_mov_b32 s36, 0")
    if E("DIAG1"): stamp(a, 4)
    def issue_stage():
        a("s_lshl_b32 s21, s20, 7")
        a("s_mul_i32 s22, s20, 393216")
        a("s_add_u32 s37, s36, s18")
        a("s_add_u32 s39, s36, s19")
        for i in range(4):
            a(f"s_add_u32 m0, s37, {i*1024}")
            a(f"s_add_u32 s38, s21, {i*16384}")
            a(f"buffer_load_dwordx4 v{10+(i&1)}, s[28:31], s38 offen lds")
            if E("DIAG1") and first[0] and i in (0, 3): stamp(a, 5 if i == 0 else 6)
        for t in range(3):
            for kb in range(2):
                a(f"s_add_u32 m0, s39, {t*8192+kb*1024}")
                a(f"s_add_u32 s38, s22, {t*2048+kb*49152}")
                a(f"buffer_load_dwordx4 v12, s[32:35], s38 offen lds")
                if E("DIAG1") and first[0] and kb == 0 and t == 0: stamp(a, 7)
        first[0] = False
        if XPF:
            a(f"s_add_u32 s38, s20, {XPF}")
            a("s_lshl_b32 s37, s38, 7")
            a("s_cmp_lt_u32 s38, 16")
            a("s_cselect_b32 s38, s37, 0x7ff00000")
            a("buffer_load_dword v16, v13, s[28:31], s38 offen")
        a("s_add_u32 s20, s20, 1")
        a("s_and_b32 s20, s20, 15")
        a(f"s_add_u32 s36, s36, {G1_SLOT}")
        a(f"s_cmp_eq_u32 s36, {G1_SLOT*G1_NSLOT}")
        a("s_cselect_b32 s36, 0, s36")
    issue_stage()
    stamp(a, 2)
    issue_stage()
    a(f"s_waitcnt vmcnt({NV})")
    stamp(a, 3)
    a("s_barrier")
    if E("DIAG1"):
        a("s_waitcnt vmcnt(0)"); stamp(a, 8); stamp_rt(a, 13); stamp_store(a, 16); a("s_endpgm")
    dbgt(a, 13, True); dbgt(a, 14)
    LA = E("LA", 3)
    if LA == 3:
        issue_stage()
        a("s_mov_b32 s23, 0")
        a.label("L_g1_ldloop")
        a(f"s_waitcnt vmcnt({NV})")
        a("s_barrier")
        issue_stage()
        a("s_add_u32 s23, s23, 1")
        a("s_cmp_lt_u32 s23, 13")
        a("s_cbranch_scc1 L_g1_ldloop")
        for k in range(3):
            a(f"s_waitcnt vmcnt({NV if k == 0 else 0})")
            a("s_barrier")
    else:
        issue_stage(); issue_stage()
        for k in range(3):
            a(f"s_waitcnt vmcnt({2*NV})")
            a("s_barrier")
            issue_stage()
        a("s_mov_b32 s23, 3")
        a.label("L_g1_ldloop")
        a(f"s_waitcnt vmcnt({NV*(G1_NSLOT-2)})")
        a("s_barrier")
        issue_stage()
        a("s_add_u32 s23, s23, 1")
        a(f"s_cmp_lt_u32 s23, {16-G1_NSLOT}")
        a("s_cbranch_scc1 L_g1_ldloop")
        for k in range(G1_NSLOT):
            a(f"s_waitcnt vmcnt({NV*max(0, G1_NSLOT-2-k)})")
            a("s_barrier")
    if E("DIAG5"): a("s_endpgm")
    a("s_branch L_g1_done")
    a.label("L_g1_compute")
    ACC = 128; SETS = [64, 84]; XA = 104; WA = 108
    QPF = E("QPF", 1)
    NSH = {2: 16, 0: 8, 1: 4}[E("MAP", 2)]
    def qpf(tag):
        a("s_cmp_eq_u32 s14, 3")
        a(f"s_cbranch_scc1 L_qpf_x{tag}")
        a("s_cmp_eq_u32 s14, 0")
        a(f"s_cbranch_scc0 L_qpf_done{tag}")
        a("global_load_dword v16, v14, s[6:7]")
        a("v_add_u32 v14, 1572864, v14")
        if NSH == 8:
            a("global_load_dword v16, v15, s[6:7]")
            a("v_add_u32 v15, 1572864, v15")
        a(f"s_branch L_qpf_done{tag}")
        a.label(f"L_qpf_x{tag}")
        a("global_load_dwordx4 v[16:19], v14, s[4:5]")
        a("v_add_u32 v13, 4096, v14")
        a("global_load_dwordx4 v[16:19], v15, s[4:5]")
        a("global_load_dwordx4 v[16:19], v13, s[4:5]")
        a("v_add_u32 v13, 4096, v15")
        a("v_add_u32 v14, 512, v14")
        a("global_load_dwordx4 v[16:19], v13, s[4:5]")
        a("v_add_u32 v15, 512, v15")
        a.label(f"L_qpf_done{tag}")
    if QPF:
        a("s_cmp_eq_u32 s14, 3")
        a("s_cbranch_scc1 L_qpf_setx")
        def wline(dst, lane0, nl):
            a(f"v_min_u32 v{dst}, {nl-1}, v2")
            a(f"s_and_b32 s16, s11, {NSH-1}")
            a(f"s_mul_i32 s16, s16, {768//NSH}")
            a(f"s_add_u32 s16, s16, {lane0}")
            a(f"v_add_u32 v{dst}, s16, v{dst}")
            a("s_mov_b32 s17, 0x5556")
            a(f"v_mul_u32_u24 v12, s17, v{dst}")
            a("v_lshrrev_b32 v12, 16, v12")
            a("v_mul_u32_u24 v13, 3, v12")
            a(f"v_sub_u32 v13, v{dst}, v13")
            a(f"v_mul_u32_u24 v{dst}, 6144, v12")
            a("v_lshlrev_b32 v13, 11, v13")
            a(f"v_add_u32 v{dst}, v{dst}, v13")
            a("s_lshl_b32 s16, s10, 7")
            a(f"v_add_u32 v{dst}, s16, v{dst}")
        if NSH == 16:
            wline(14, 0, 48); a("v_mov_b32 v15, v14")
        else:
            wline(14, 0, 64); wline(15, 64, 32)
        a("s_branch L_qpf_set")
        a.label("L_qpf_setx")
        a("v_lshrrev_b32 v14, 5, v2")
        a("v_lshlrev_b32 v14, 11, v14")
        a("v_and_b32 v15, 31, v2")
        a("v_lshlrev_b32 v15, 4, v15")
        a("v_add_u32 v14, v14, v15")
        a("s_lshl_b32 s16, s2, 14")
        a("v_add_u32 v14, s16, v14")
        a("v_add_u32 v15, 8192, v14")
        a.label("L_qpf_set")
        qpf("a")
    a("s_cmp_eq_u32 s14, 0")
    a("s_cbranch_scc0 L_nocas")
    a("v_mov_b32 v243, 0")
    a("s_cmp_eq_u32 s2, 0")
    a("s_cbranch_scc0 L_nocas")
    a("s_memrealtime s[16:17]")
    a("s_waitcnt lgkmcnt(0)")
    a("s_or_b32 s16, s16, 1")
    a("v_mov_b32 v240, s16")
    a("s_mov_b64 exec, 1")
    a("global_store_dword v243, v240, s[44:45] sc1")
    a("s_mov_b64 exec, -1")
    a.label("L_nocas")
    a("s_lshl_b32 s16, s2, 13")
    a("s_lshl_b32 s17, s14, 11")
    a("s_add_u32 s16, s16, s17")
    a("v_add_u32 v4, s16, v3")
    a("global_load_dwordx4 v[224:227], v4, s[40:41]")
    a("global_load_dwordx4 v[228:231], v4, s[40:41] offset:1024")
    a("s_getpc_b64 s[16:17]")
    a.label("L_pc")
    a("s_sub_u32 s16, s16, L_pc-" + KNAME)
    a("s_subb_u32 s17, s17, 0")
    a("v_lshlrev_b32 v4, 7, v2")
    a("s_lshl_b32 s18, s14, 13")
    a("v_add_u32 v4, s18, v4")
    a("v_cmp_gt_u32 vcc, L_end-" + KNAME + ", v4")
    a("s_and_saveexec_b64 s[18:19], vcc")
    a("s_cbranch_execz L_nocode")
    a("global_load_dword v232, v4, s[16:17]")
    a.label("L_nocode")
    a("s_mov_b64 exec, s[18:19]")
    a("s_lshr_b32 s15, s14, 1")
    a("s_and_b32 s16, s14, 1")
    a("v_and_b32 v4, 31, v2")
    a("s_lshl_b32 s17, s15, 6")
    a("v_add_u32 v4, s17, v4")
    a("v_lshlrev_b32 v4, 7, v4")
    a("v_lshrrev_b32 v5, 1, v2")
    a("v_and_b32 v5, 7, v5")
    a("v_lshrrev_b32 v6, 5, v2")
    a("v_xor_b32 v5, v5, v6")
    for ks in range(4):
        a(f"v_xor_b32 v7, {2*ks}, v5")
        a(f"v_lshlrev_b32 v7, 4, v7")
        a(f"v_add_u32 v{XA+ks}, v4, v7")
    a("v_and_b32 v7, 15, v2")
    a("v_lshrrev_b32 v7, 2, v7")
    a("v_lshlrev_b32 v8, 3, v6")
    a("v_add_u32 v8, v8, v7")
    a("v_lshlrev_b32 v8, 7, v8")
    a("v_lshrrev_b32 v9, 4, v2")
    a("v_and_b32 v9, 1, v9")
    a("v_lshlrev_b32 v9, 1, v9")
    a("v_and_b32 v10, 3, v2")
    a("v_lshrrev_b32 v11, 1, v10")
    a("v_add_u32 v9, v9, v11")
    a("s_lshl_b32 s17, s16, 2")
    a("v_add_u32 v9, s17, v9")
    a("v_lshrrev_b32 v11, 1, v7")
    a("v_lshlrev_b32 v11, 2, v11")
    a("v_xor_b32 v9, v9, v11")
    a("v_lshlrev_b32 v9, 4, v9")
    a("v_add_u32 v8, v8, v9")
    a("v_and_b32 v10, 1, v10")
    a("v_lshlrev_b32 v10, 3, v10")
    a("v_add_u32 v8, v8, v10")
    a(f"v_add_u32 v{WA}, 16384, v8")
    for r in range(96): a(f"v_mov_b32 v{ACC+r}, 0")
    if E("PREF", 0):
        a("s_lshl_b32 s19, s2, 14")
        a("s_lshl_b32 s17, s14, 12")
        a("s_add_u32 s19, s19, s17")
        a("v_add_u32 v4, s19, v3")
        for q in range(4): a(f"global_load_dwordx4 v[{16+4*q}:{19+4*q}], v4, s[4:5] offset:{q*1024}")
        a("s_mul_i32 s19, s2, 24576")
        a("s_mul_i32 s17, s14, 6144")
        a("s_add_u32 s19, s19, s17")
        a("v_add_u32 v4, s19, v3")
        for q in range(4): a(f"global_load_dwordx4 v[{32+4*q}:{35+4*q}], v4, s[6:7] offset:{q*1024}")
        a("v_add_u32 v4, 4096, v4")
        for q in range(2): a(f"global_load_dwordx4 v[{48+4*q}:{51+4*q}], v4, s[6:7] offset:{q*1024}")
    a("s_mov_b32 s18, 0")
    a(f"s_mov_b32 s21, {-(G1_NSLOT-1)*G1_SLOT & 0xffffffff}")
    a(f"s_mov_b32 s22, {G1_SLOT}")
    a("s_barrier")
    if E("DIAG1"):
        a("s_waitcnt vmcnt(0)"); a("s_endpgm")
    stamp(a, 2)
    a("v_mov_b32 v243, 0")
    a("global_load_dword v242, v243, s[44:45] sc1")
    if QPF: qpf("b")
    lg = Lgkm(a)
    def reads(setb, ks, tagp):
        x0, x1, w0, w1, w2 = setb, setb+4, setb+8, setb+12, setb+16
        return [(tagp+"x0", f"ds_read_b128 {vr(x0,4)}, v{XA+ks}"),
                (tagp+"w0", f"ds_read_b64_tr_b16 {vr(w0,2)}, v{WA} offset:{ks*2048}"),
                (tagp+"w0", f"ds_read_b64_tr_b16 {vr(w0+2,2)}, v{WA} offset:{ks*2048+512}"),
                (tagp+"x1", f"ds_read_b128 {vr(x1,4)}, v{XA+ks} offset:4096"),
                (tagp+"w1", f"ds_read_b64_tr_b16 {vr(w1,2)}, v{WA} offset:{8192+ks*2048}"),
                (tagp+"w1", f"ds_read_b64_tr_b16 {vr(w1+2,2)}, v{WA} offset:{8192+ks*2048+512}"),
                (tagp+"w2", f"ds_read_b64_tr_b16 {vr(w2,2)}, v{WA} offset:{16384+ks*2048}"),
                (tagp+"w2", f"ds_read_b64_tr_b16 {vr(w2+2,2)}, v{WA} offset:{16384+ks*2048+512}")]
    def mfma(setb, i, t):
        x = setb + 4*i; w = setb + 8 + 4*t; acc = ACC + 16*(i*3+t)
        if t < 2: return f"v_mfma_f32_32x32x16_bf16 {vr(acc,16)}, {vr(w,4)}, {vr(x,4)}, {vr(acc,16)}"
        return f"v_mfma_f32_32x32x16_bf16 {vr(acc,16)}, {vr(x,4)}, {vr(w,4)}, {vr(acc,16)}"
    for tag, ins in reads(SETS[0], 0, "A"):
        a(ins); lg.issue(tag)
    a.raw(".p2align 6")
    a.label("L_g1_loop")
    order = [(0,1),(0,2),(1,1),(1,2),(0,0),(1,0)]
    needs = [["x0","w1"],["w2"],["x1"],[],["w0"],[]]
    def reads2(setb, ks, tagp):
        R = reads(setb, ks, tagp)
        return [R[0], R[4], R[5], R[6], R[7], R[3], R[1], R[2]]
    a.l = a.l[:-10]; lg.q = []
    for tag, ins in reads2(SETS[0], 0, "A"):
        a(ins); lg.issue(tag)
    a.raw(".p2align 6")
    a.label("L_g1_loop")
    for ks in range(4):
        cur = SETS[ks & 1]; nxt = SETS[(ks+1) & 1]
        cp = "AB"[ks & 1]; np_ = "AB"[(ks+1) & 1]
        if ks == 3:
            lg.all()
            a("s_add_u32 s18, s18, 1")
            if QPF:
                a("s_and_b32 s19, s18, 11")
                a("s_cmp_eq_u32 s19, 2")
                a("s_cbranch_scc1 L_qpf_out")
                a.label("L_qpf_back")
            a("s_and_b32 s19, s18, %d" % (G1_NSLOT-1))
            a("s_cmp_eq_u32 s19, 0")
            a("s_cselect_b32 s20, s21, s22")
            for k in range(4): a(f"v_add_u32 v{XA+k}, s20, v{XA+k}")
            a(f"v_add_u32 v{WA}, s20, v{WA}")
            a("s_barrier")
            if E("DIAG5"):
                a("s_memtime s[92:93]"); a("s_waitcnt lgkmcnt(0)")
                a("s_mov_b32 m0, s18")
                a("s_movreld_b32 s64, s92")
        R = reads2(nxt, (ks+1) & 3, np_)
        slots = [[], R[0:2], R[2:4], R[4:6], R[6:8], []]
        for k in range(6):
            for tag, ins in slots[k]:
                a(ins); lg.issue(tag)
            lg.need([cp+t for t in needs[k]])
            a(mfma(cur, *order[k]))
    a("s_cmp_lt_u32 s18, 16")
    a("s_cbranch_scc1 L_g1_loop")
    if E("DIAG4"): a("s_endpgm")
    if E("DIAG5"):
        a("s_lshl_b32 s58, s2, 3"); a("s_add_u32 s58, s58, s14"); a("s_lshl_b32 s58, s58, 7")
        a(f"s_add_u32 s58, s58, {STAMP_OFF}")
        a("s_add_u32 s56, s8, s58"); a("s_addc_u32 s57, s9, 0")
        a("v_mov_b32 v254, 0")
        a("v_mov_b32 v255, s62"); a("global_store_dword v254, v255, s[56:57]")
        a("v_mov_b32 v255, s64"); a("global_store_dword v254, v255, s[56:57] offset:4")
        for k in range(1, 17):
            a(f"v_mov_b32 v255, s{64+k}"); a(f"global_store_dword v254, v255, s[56:57] offset:{4+4*k}")
        a("s_waitcnt vmcnt(0)"); a("s_endpgm")
    a("s_waitcnt lgkmcnt(0) vmcnt(0)")
    stamp(a, 3)
    a("s_lshl_b32 s17, s10, 1")
    a("s_add_u32 s17, s17, s16")
    a("s_lshl_b32 s19, s11, 2")
    a("s_lshl_b32 s20, s15, 1")
    a("s_add_u32 s19, s19, s20")
    a("s_lshl_b32 s20, s17, 6")
    a("s_add_u32 s20, s20, s19")
    a("s_lshl_b32 s22, s20, 12")
    a("s_lshl_b32 s20, s15, 14")
    a("s_lshl_b32 s21, s16, 12")
    a("s_add_u32 s20, s20, s21")
    a("v_add_u32 v4, s20, v3")
    a("s_lshl_b32 s20, s16, 2")
    a("s_lshl_b32 s21, s15, 1")
    a("s_add_u32 s20, s20, s21")
    a("s_lshl_b32 s20, s20, 11")
    a(f"s_add_u32 s20, s20, {QX_OFF}")
    a("v_add_u32 v5, s20, v3")
    a(f"s_mov_b32 s23, {f32bits(QSCALE)}")
    a("s_nop 7")
    T = 64
    n = 0
    for i in range(2):
        for t in (1, 2):
            acc = ACC + 16*(i*3+t); base = T + 8*(n % 4); n += 1
            for r in range(8): a(f"v_cvt_pk_bf16_f32 v{base+r}, v{acc+2*r}, v{acc+2*r+1}")
            o = i*4096 + (t-1)*2048
            a(f"s_add_u32 s28, s22, {o}")
            a(f"buffer_store_dwordx4 {vr(base,4)}, v3, s[24:27], s28 offen sc1")
            a(f"buffer_store_dwordx4 {vr(base+4,4)}, v3, s[24:27], s28 offen offset:1024 sc1")
            a(f"ds_write_b128 v4, {vr(base,4)} offset:{i*8192+(t-1)*2048}")
            a(f"ds_write_b128 v4, {vr(base+4,4)} offset:{i*8192+(t-1)*2048+1024}")
    for i in range(2):
        acc = ACC + 16*(i*3); base = 96 + 8*i
        for r in range(16): a(f"v_mul_f32 v{acc+r}, s23, v{acc+r}")
        for r in range(8): a(f"v_cvt_pk_bf16_f32 v{base+r}, v{acc+2*r}, v{acc+2*r+1}")
        a(f"ds_write_b128 v5, {vr(base,4)} offset:{i*2048}")
        a(f"ds_write_b128 v5, {vr(base+4,4)} offset:{i*2048+1024}")
    a("s_cmp_eq_u32 s14, 0")
    a("s_cbranch_scc0 L_noep")
    a("s_mov_b32 s19, 0")
    a.label("L_tag_spin")
    a("v_readfirstlane_b32 s20, v242")
    a("s_add_u32 s19, s19, 1")
    a("s_cmp_lg_u32 s20, 0")
    a("s_cbranch_scc1 L_tag_ok")
    a(f"s_cmp_ge_u32 s19, {POLL_MAX}")
    a("s_cbranch_scc1 L_tag_ok")
    a("s_sleep 1")
    a("global_load_dword v242, v243, s[44:45] sc1")
    a("s_waitcnt vmcnt(0)")
    a("s_branch L_tag_spin")
    a.label("L_tag_ok")
    a(f"v_mov_b32 v6, {EP_OFF}")
    a("s_mov_b64 exec, 1")
    a("ds_write_b32 v6, v242")
    a("v_mov_b32 v7, 0")
    a(f"ds_write_b64 v6, v[7:8] offset:64" if False else f"ds_write_b32 v6, v7 offset:64")
    a(f"ds_write_b32 v6, v7 offset:68")
    a("s_mov_b64 exec, -1")
    a.label("L_noep")
    a("s_waitcnt lgkmcnt(0)")
    a.label("L_g1_done")
    a("s_barrier")
    dbgt(a, 3, True); dbgt(a, 4)
    stamp(a, 4)
    Q, K, V = 8, 16, 24
    S = [32, 48]; P = [64, 72]; O = 80; L = 96; ONES = 100; IDX = 104; VC = 105; VN = 106; M = 107; VB = 108; VD = 109
    a("s_lshr_b32 s15, s14, 2")
    a("s_and_b32 s16, s14, 3")
    a("s_lshl_b32 s17, s10, 1")
    a("s_add_u32 s17, s17, s15")
    a("s_lshl_b32 s18, s11, 2")
    a("s_add_u32 s18, s18, s16")
    a("s_lshl_b32 s20, s14, 11")
    a(f"s_add_u32 s20, s20, {QX_OFF}")
    a("v_add_u32 v4, s20, v3")
    a(f"ds_read_b128 {vr(Q,4)}, v4")
    a(f"ds_read_b128 {vr(Q+4,4)}, v4 offset:1024")
    a(f"v_mov_b32 v6, {EP_OFF}")
    a("ds_read_b32 v6, v6")
    a("s_lshl_b32 s22, s15, 12")
    a(f"v_add_u32 v{VB}, s22, v3")
    a(f"ds_read_b128 {vr(K,4)}, v{VB}")
    a(f"ds_read_b128 {vr(K+4,4)}, v{VB} offset:1024")
    for r in range(16): a(f"v_mov_b32 v{O+r}, 0")
    for r in range(4): a(f"v_mov_b32 v{L+r}, 0")
    for r in range(8): a(f"v_mov_b32 v{P[1]+r}, 0")
    a("v_and_b32 v4, 6, v2")
    a("v_mov_b32 v5, 0x3f803f80")
    a("v_cmp_eq_u32 vcc, 0, v4")
    a("s_nop 1")
    a(f"v_cndmask_b32 v{ONES}, 0, v5, vcc")
    a(f"v_cndmask_b32 v{ONES+1}, 0, v5, vcc")
    a("v_cmp_eq_u32 vcc, 4, v4")
    a("s_nop 1")
    a(f"v_cndmask_b32 v{ONES+2}, 0, v5, vcc")
    a(f"v_cndmask_b32 v{ONES+3}, 0, v5, vcc")
    a("v_and_b32 v4, 1, v2")
    a("v_mov_b32 v5, 0x44444444")
    a("v_mov_b32 v7, 0xeeeeeeee")
    a("v_cmp_eq_u32 vcc, 0, v4")
    a("s_nop 1")
    a(f"v_cndmask_b32 v{IDX}, v7, v5, vcc")
    VONE = 110; VCA = 111; VCR = 112; VCV = 113; VD0 = 116
    VLO = VB; VHI = VN
    a(f"v_add_u32 v{VHI}, 65536, v{VLO}")
    a("s_lshl_b32 s20, s17, 18")
    a("s_add_u32 s28, s8, s20"); a("s_addc_u32 s29, s9, 0"); a("s_mov_b32 s30, 262144"); a("s_mov_b32 s31, 0x20000")
    a("s_lshl_b32 s21, s16, 13")
    a("s_lshl_b32 s36, s15, 12")
    a("s_add_u32 s21, s21, s36")
    a("s_lshl_b32 s36, s16, 12")
    for q in range(4): a(f"v_add_u32 v{VD0+q}, s36, v3")
    a(f"v_mov_b32 v{VONE}, 1")
    a("s_lshl_b32 s36, s15, 2")
    a(f"s_add_u32 s36, s36, {CNT_OFF}")
    a(f"v_mov_b32 v{VCR}, s36")
    a("s_lshl_b32 s37, s14, 8")
    a(f"s_add_u32 s37, s37, {SCR_OFF}")
    a("v_lshlrev_b32 v4, 2, v2")
    a(f"v_add_u32 v{VCA}, s37, v4")
    a("v_cmp_eq_u32 vcc, 0, v2")
    a("s_nop 1")
    a(f"v_cndmask_b32 v{VCA}, v{VCA}, v{VCR}, vcc")
    a("s_waitcnt lgkmcnt(0)")
    a("v_readfirstlane_b32 s46, v6")
    a(f"v_mfma_f32_32x32x16_bf16 {vr(S[0],16)}, {vr(K,4)}, {vr(Q,4)}, 0")
    a(f"v_mfma_f32_32x32x16_bf16 {vr(S[0],16)}, {vr(K+4,4)}, {vr(Q+4,4)}, {vr(S[0],16)}")
    lg = Lgkm(a)
    def ldsa(slot, t, f):
        off = slot*AT_SLOT + t*8192 + f*1024
        return f"v{VLO if off < 65536 else VHI} offset:{off & 0xffff}"
    a(f"ds_read_b128 {vr(K,4)}, {ldsa(0,1,0)}"); lg.issue("K")
    a(f"ds_read_b128 {vr(K+4,4)}, {ldsa(0,1,1)}"); lg.issue("K")
    a(f"ds_read_b128 {vr(V,4)}, {ldsa(0,0,2)}"); lg.issue("V")
    a(f"ds_read_b128 {vr(V+4,4)}, {ldsa(0,0,3)}"); lg.issue("V")
    a("s_nop 7")
    PRIO = E("PRIO", 1)
    def at_step(i, own, slot, tag=""):
        X = S[i & 1]; Y = S[(i+1) & 1]; PX = P[i & 1]; PY = P[(i+1) & 1]
        ex = lambda r: a(f"v_exp_f32 v{X+r}, v{X+r}")
        cv = lambda r: a(f"v_cvt_pk_bf16_f32 v{PX+r}, v{X+2*r}, v{X+2*r+1}")
        def kread():
            t = i + 2
            if own and t >= 4: return
            sl = slot if t < 4 else (slot+1) & 3
            a(f"ds_read_b128 {vr(K,4)}, {ldsa(sl, t % 4, 0)}"); lg.issue("K")
            a(f"ds_read_b128 {vr(K+4,4)}, {ldsa(sl, t % 4, 1)}"); lg.issue("K")
        def vread():
            a(f"ds_read_b128 {vr(V,4)}, {ldsa(slot, i, 2)}"); lg.issue("V")
            a(f"ds_read_b128 {vr(V+4,4)}, {ldsa(slot, i, 3)}"); lg.issue("V")
        def dma1(q):
            if own or E("DMAMODE", 1) == 0: return
            a(f"buffer_load_dwordx4 v{VD0+q}, s[28:31], s55 offen offset:{q*1024} sc1 lds")
        qk0 = f"v_mfma_f32_32x32x16_bf16 {vr(Y,16)}, {vr(K,4)}, {vr(Q,4)}, 0"
        qk1 = f"v_mfma_f32_32x32x16_bf16 {vr(Y,16)}, {vr(K+4,4)}, {vr(Q+4,4)}, {vr(Y,16)}"
        pv0 = f"v_mfma_f32_32x32x16_bf16 {vr(O,16)}, {vr(V,4)}, {vr(PY,4)}, {vr(O,16)}"
        pv1 = f"v_mfma_f32_32x32x16_bf16 {vr(O,16)}, {vr(V+4,4)}, {vr(PY+4,4)}, {vr(O,16)}"
        smf = f"v_smfmac_f32_16x16x64_bf16 {vr(L,4)}, {vr(ONES,4)}, {vr(PY,8)}, v{IDX}"
        if PRIO: a(f"s_setprio {3-i}")
        has_qk = not (own and i == 3)
        if own and i == E("FLAGSTEP", 2):
            a("s_cmp_lt_u32 s14, 4")
            a("s_cbranch_scc1 L_flag_out")
            a.label("L_flag_back")
        SCH = E("SCH", 1)
        if SCH == 0:
            if has_qk:
                lg.need(["K"]); a(qk0)
            ex(0); ex(1); ex(2); ex(3)
            if has_qk: a(qk1)
            if i == 2 and not own and not E("X_NOSYNC"):
                lg.need(["C"])
                a(f"v_readfirstlane_b32 s36, v{VCV}")
                ex(4)
                a("s_cmp_ge_u32 s36, s47")
                a(f"s_cbranch_scc0 L_cnt_spin{tag}")
                a.label(f"L_cnt_back{tag}")
                kread(); ex(5); cv(0); ex(6); cv(1)
            else:
                kread(); ex(4); ex(5); cv(0); ex(6); cv(1)
            lg.need(["V"])
            if i == 0 and not own and not E("X_NOSYNC"):
                a("s_waitcnt vmcnt(4)")
                a(f"ds_add_u32 v{VCA}, v{VONE}"); lg.issue("A")
            a(pv0); ex(7)
            if i == 2 and not own: a(f"s_add_u32 m0, s21, {((slot+3)&3)*AT_SLOT}")
            ex(8); cv(2)
            if i >= 2: dma1(2*(i-2))
            ex(9); cv(3)
            a(pv1)
            if i == 1 and not own and not E("X_NOSYNC"):
                a(f"ds_read_b32 v{VCV}, v{VCR}"); lg.issue("C")
            if i >= 2: dma1(2*(i-2)+1)
            ex(10); ex(11); cv(4); ex(12); cv(5)
            a(smf); vread(); ex(13); ex(14); cv(6); ex(15)
            if i == 3 and not own:
                a("s_add_u32 s55, s55, s56")
                cv(7)
                a("s_and_b32 s55, s55, s57")
                a("s_add_u32 s47, s47, 4")
            else:
                a("s_nop 0")
                cv(7)
        else:
            if has_qk:
                lg.need(["K"]); a(qk0)
            ex(0); ex(1); ex(2); ex(3)
            if has_qk: a(qk1)
            if i == 2 and not own and not E("X_NOSYNC"):
                lg.need(["C"])
                a(f"v_cmp_gt_u32 vcc, s47, v{VCV}")
                ex(4); ex(5)
                a(f"s_cbranch_vccnz L_cnt_spin{tag}")
                a.label(f"L_cnt_back{tag}")
                kread(); ex(6); ex(7)
            else:
                kread(); ex(4); ex(5); ex(6); ex(7)
            lg.need(["V"])
            if i == 0 and not own and not E("X_NOSYNC"):
                a("s_waitcnt vmcnt(4)")
                a(f"ds_add_u32 v{VCA}, v{VONE}"); lg.issue("A")
            a(pv0); ex(8)
            if i == 2 and not own: a(f"s_add_u32 m0, s21, {((slot+3)&3)*AT_SLOT}")
            ex(9)
            if i >= 2: dma1(2*(i-2))
            ex(10); ex(11)
            a(pv1)
            if i == 1 and not own and not E("X_NOSYNC"):
                a(f"ds_read_b32 v{VCV}, v{VCR}"); lg.issue("C")
            if i >= 2: dma1(2*(i-2)+1)
            ex(12); ex(13); ex(14); ex(15)
            a(smf); vread()
            cv(0); cv(1); cv(2)
            if i == 3 and not own: a("s_add_u32 s55, s55, s56")
            cv(3); cv(4)
            if i == 3 and not own: a("s_and_b32 s55, s55, s57")
            cv(5); cv(6)
            if i == 3 and not own: a("s_add_u32 s47, s47, 4")
            cv(7)
    for i in range(4): at_step(i, True, 0)
    stamp(a, 5)
    a(f"s_lshl_b32 s36, s10, {8+D2}")
    a(f"s_add_u32 s36, s36, {FLG_OFF}")
    a(f"v_lshlrev_b32 v114, {FSH}, v2")
    a("v_add_u32 v114, s36, v114")
    a("s_cmp_eq_u32 s14, 7")
    a("s_cbranch_scc0 L_at_nopoll")
    if E("PART1", 1):
        a("s_add_u32 s36, s11, 1")
        a("s_lshl_b32 s36, s36, 2")
        a("s_and_b32 s36, s36, 63")
        a("s_sub_u32 s37, 64, s36")
        a("s_mov_b64 s[58:59], 0xfff")
        a("s_lshl_b64 s[48:49], s[58:59], s36")
        a("s_lshr_b64 s[58:59], s[58:59], s37")
        a("s_cmp_eq_u32 s36, 0")
        a("s_cselect_b64 s[58:59], 0, s[58:59]")
        a("s_or_b64 s[48:49], s[48:49], s[58:59]")
        poll(a, "f", 114, 48)
    else:
        poll(a, "f", 114)
    a.label("L_at_nopoll")
    a("s_barrier")
    stamp(a, 6)
    def kvstage(st):
        a(f"s_add_u32 s36, s11, {st}")
        a("s_and_b32 s36, s36, 15")
        a(f"s_add_u32 m0, s21, {st*AT_SLOT}")
        a("s_lshl_b32 s36, s36, 14")
        for q in range(4):
            a(f"buffer_load_dwordx4 v{VD0+q}, s[28:31], s36 offen offset:{q*1024} sc1 lds")
    kvstage(1); kvstage(2)
    a("s_add_u32 s55, s11, 4")
    a("s_and_b32 s55, s55, 15")
    a("s_lshl_b32 s55, s55, 14")
    a("s_mov_b32 s56, 16384"); a("s_mov_b32 s57, 0x3c000")
    a("s_mov_b32 s47, 4")
    a("s_waitcnt vmcnt(4)")
    a("s_barrier")
    if E("PART1", 1):
        a("s_and_b32 s36, s14, 3")
        a("s_cmp_eq_u32 s36, 3")
        a("s_cbranch_scc0 L_at_nopoll2")
        poll(a, "f2", 114)
        a("s_mov_b32 s47, 4")
        a.label("L_at_nopoll2")
    kvstage(3)
    stamp(a, 7)
    a(f"ds_read_b128 {vr(K,4)}, {ldsa(1,0,0)}")
    a(f"ds_read_b128 {vr(K+4,4)}, {ldsa(1,0,1)}")
    a("s_waitcnt lgkmcnt(0)")
    a(f"v_mfma_f32_32x32x16_bf16 {vr(S[0],16)}, {vr(K,4)}, {vr(Q,4)}, 0")
    a(f"v_mfma_f32_32x32x16_bf16 {vr(S[0],16)}, {vr(K+4,4)}, {vr(Q+4,4)}, {vr(S[0],16)}")
    a(f"ds_read_b128 {vr(K,4)}, {ldsa(1,1,0)}")
    a(f"ds_read_b128 {vr(K+4,4)}, {ldsa(1,1,1)}")
    a("s_waitcnt lgkmcnt(0)")
    a("s_nop 7")
    stamp(a, 14)
    dbgt(a, 5, True); dbgt(a, 6)
    lg.q = ["K", "K", "V", "V"]
    a.raw(".p2align 6")
    a.label("L_at_loop")
    for c in range(4):
        slot = (c+1) & 3
        for i in range(4): at_step(i, False, slot, str(c))
        assert lg.q == ["K", "K", "V", "V"], lg.q
        if c == 2:
            a("s_cmp_eq_u32 s47, 64")
            a("s_cbranch_scc1 L_at_tail")
    a("s_cmp_eq_u32 s47, 52")
    a("s_cbranch_scc0 L_at_loop")
    stamp(a, 15)
    a("s_lshl_b32 s39, s11, 7")
    a("s_sub_u32 s36, 0x200000, s39")
    a("s_add_u32 s28, s40, s39"); a("s_addc_u32 s29, s41, 0"); a("s_mov_b32 s30, s36"); a("s_mov_b32 s31, 0x20000")
    a("s_mov_b32 s55, 0"); a("s_mov_b32 s56, 524288"); a("s_mov_b32 s57, -1")
    a("v_lshrrev_b32 v4, 3, v2")
    a("v_lshlrev_b32 v4, 11, v4")
    a("v_and_b32 v5, 7, v2")
    a("v_lshrrev_b32 v6, 4, v2")
    a("v_and_b32 v6, 1, v6")
    a("v_lshlrev_b32 v6, 2, v6")
    a("v_xor_b32 v5, v5, v6")
    a("v_lshlrev_b32 v5, 4, v5")
    a("v_add_u32 v4, v4, v5")
    a("s_lshl_b32 s36, s21, 4")
    a("v_add_u32 v4, s36, v4")
    for q in range(4): a(f"v_add_u32 v{VD0+q}, {q*(16384-1024)}, v4")
    a("s_branch L_at_loop")
    for c in range(4 if not E("X_NOSYNC") else 0):
        a.label(f"L_cnt_spin{c}")
        a("s_mov_b32 s39, 0")
        a.label(f"L_cnt_spin2{c}")
        a(f"ds_read_b32 v{VCV}, v{VCR}")
        a("s_waitcnt lgkmcnt(0)")
        a(f"v_readfirstlane_b32 s36, v{VCV}")
        a("s_add_u32 s39, s39, 1")
        a(f"s_cmp_ge_u32 s39, {POLL_MAX*16}")
        a(f"s_cbranch_scc1 L_cnt_back{c}")
        a("s_cmp_ge_u32 s36, s47")
        a(f"s_cbranch_scc0 L_cnt_spin2{c}")
        a(f"s_branch L_cnt_back{c}")
    a.label("L_at_tail")
    a("s_setprio 0")
    PL = P[1]
    a("s_waitcnt lgkmcnt(0)")
    a(f"v_mfma_f32_32x32x16_bf16 {vr(O,16)}, {vr(V,4)}, {vr(PL,4)}, {vr(O,16)}")
    a(f"v_mfma_f32_32x32x16_bf16 {vr(O,16)}, {vr(V+4,4)}, {vr(PL+4,4)}, {vr(O,16)}")
    a(f"v_smfmac_f32_16x16x64_bf16 {vr(L,4)}, {vr(ONES,4)}, {vr(PL,8)}, v{IDX}")
    stamp(a, 8)
    dbgt(a, 7, True); dbgt(a, 8)
    a("s_nop 8")
    a("s_nop 7")
    a(f"v_add_f32 v{L}, v{L}, v{L+1}")
    a(f"v_mov_b32 v4, {f32bits(2.0**-40)}")
    a(f"v_mov_b32 v5, {f32bits(2.0**40)}")
    a(f"v_cmp_nge_f32 vcc, v{L}, v4")
    a(f"v_cmp_nle_f32 s[44:45], v{L}, v5")
    a("s_or_b64 s[44:45], s[44:45], vcc")
    a(f"v_mov_b32 v5, {f32bits(2.0**100)}")
    for r in range(16):
        a(f"v_cmp_nlt_f32 vcc, abs(v{O+r}), v5")
        a("s_or_b64 s[44:45], s[44:45], vcc")
    a("s_cmp_lg_u64 s[44:45], 0")
    a("s_cbranch_scc1 L_at_slow")
    a.label("L_at_fin")
    a(f"v_rcp_f32 v4, v{L}")
    a("s_nop 0")
    for r in range(16): a(f"v_mul_f32 v{O+r}, v{O+r}, v4")
    for r in range(8): a(f"v_cvt_pk_bf16_f32 v{P[0]+r}, v{O+2*r}, v{O+2*r+1}")
    a("s_lshl_b32 s19, s18, 6")
    a("s_lshl_b32 s36, s17, 1")
    a("s_add_u32 s19, s19, s36")
    a("s_lshl_b32 s19, s19, 10")
    a(f"s_add_u32 s19, s19, {OF_OFF}")
    a(f"buffer_store_dwordx4 {vr(P[0],4)}, v3, s[24:27], s19 offen sc1")
    a(f"buffer_store_dwordx4 {vr(P[0]+4,4)}, v3, s[24:27], s19 offen offset:1024 sc1")
    srd(a, 32, 42, None, 0x400000)
    a("s_barrier")
    a(f"s_add_u32 m0, s21, {3*AT_SLOT}")
    a("s_nop 0")
    for q in range(4):
        a(f"buffer_load_dwordx4 v{VD0+q}, s[28:31], s55 offen offset:{q*1024} lds")
    a("s_waitcnt vmcnt(4)")
    a(f"s_lshl_b32 s36, s11, {9+D2}")
    a(f"s_lshl_b32 s37, s16, {7+D2}")
    a("s_add_u32 s36, s36, s37")
    a(f"s_lshl_b32 s37, s10, {3+D2}")
    a("s_add_u32 s36, s36, s37")
    a(f"s_lshl_b32 s37, s15, {2+D2}")
    a("s_add_u32 s36, s36, s37")
    a(f"s_add_u32 s36, s36, {G_OFF}")
    a("v_mov_b32 v5, s36")
    a("v_mov_b32 v6, s46")
    a("s_mov_b64 exec, 1")
    a("buffer_store_dword v6, v5, s[24:27], 0 offen sc1")
    a("s_mov_b64 exec, -1")
    stamp(a, 9)
    a("v_lshrrev_b32 v5, 5, v2")
    a("v_and_b32 v6, 15, v2")
    a("v_lshrrev_b32 v6, 2, v6")
    a("v_lshlrev_b32 v7, 2, v5")
    a("v_add_u32 v7, v7, v6")
    a("v_lshlrev_b32 v7, 7, v7")
    a("v_lshrrev_b32 v8, 4, v2")
    a("v_and_b32 v8, 1, v8")
    a("v_lshlrev_b32 v8, 1, v8")
    a("v_and_b32 v9, 3, v2")
    a("v_lshrrev_b32 v10, 1, v9")
    a("v_add_u32 v8, v8, v10")
    a("v_lshrrev_b32 v10, 1, v6")
    a("v_lshlrev_b32 v10, 2, v10")
    a("v_xor_b32 v8, v8, v10")
    a("v_lshlrev_b32 v8, 4, v8")
    a("v_add_u32 v7, v7, v8")
    a("v_and_b32 v9, 1, v9")
    a("v_lshlrev_b32 v9, 3, v9")
    a("v_add_u32 v7, v7, v9")
    a("s_lshl_b32 s36, s15, 16")
    a(f"s_add_u32 s36, s36, {WO_LDS}")
    a("v_add_u32 v12, s36, v7")
    a("v_xor_b32 v13, 64, v12")
    ACC = 16
    for r in range(32): a(f"v_mov_b32 v{ACC+r}, 0")
    a(f"s_lshl_b32 s36, s10, {9+D2}")
    a(f"s_lshl_b32 s37, s16, {7+D2}")
    a("s_add_u32 s36, s36, s37")
    a(f"s_lshl_b32 s37, s15, {6+D2}")
    a("s_add_u32 s36, s36, s37")
    a(f"s_add_u32 s36, s36, {G_OFF}")
    a("v_and_b32 v4, 15, v2")
    a(f"v_lshlrev_b32 v4, {FSH}, v4")
    a("v_add_u32 v4, s36, v4")
    OFR = 64
    a("s_lshl_b32 s36, s10, 2")
    a("s_add_u32 s36, s36, s16")
    a("s_lshl_b32 s36, s36, 6")
    a("s_lshl_b32 s37, s15, 5")
    a("s_add_u32 s36, s36, s37")
    a("s_lshl_b32 s36, s36, 10")
    a(f"s_add_u32 s36, s36, {OF_OFF}")
    a("s_and_b32 s50, s11, 7")
    a("s_lshl_b32 s51, s50, 1")
    a("s_sub_u32 s52, 16, s51")
    a("s_mov_b32 s48, 0")
    a("s_mov_b32 s54, 0")
    a("s_mov_b32 s47, 0")
    a("s_mov_b32 s49, 0")
    if E("EARLYPOLL", 0):
        a("buffer_load_dword v5, v4, s[24:27], 0 offen sc1")
        a("s_waitcnt vmcnt(1)")
        a("s_barrier")
    else:
        a("s_waitcnt vmcnt(0)")
        a("s_barrier")
        a("buffer_load_dword v5, v4, s[24:27], 0 offen sc1")
    WF = [48, 56]
    def og_loads(i):
        a(f"s_add_u32 s53, s50, {i}")
        a("s_and_b32 s53, s53, 7")
        a("s_lshl_b32 s53, s53, 12")
        a("s_add_u32 s53, s53, s36")
        for q in range(4):
            a(f"buffer_load_dwordx4 {vr(OFR+16*i+4*q,4)}, v3, s[24:27], s53 offen offset:{q*1024} sc1")
    def og_mfma(i):
        a(f"s_add_u32 s53, s50, {i}")
        a("s_and_b32 s53, s53, 7")
        a("s_lshl_b32 s53, s53, 13")
        a("v_add_u32 v14, s53, v12")
        a("v_add_u32 v15, s53, v13")
        def wreads(setb, q):
            for ct in range(2):
                for jj in range(2):
                    a(f"ds_read_b64_tr_b16 {vr(setb+4*ct+2*jj,2)}, v{14+ct} offset:{q*2048+jj*1024}")
        def mm(setb, q):
            for ct in range(2):
                a(f"v_mfma_f32_32x32x16_bf16 {vr(ACC+16*ct,16)}, {vr(setb+4*ct,4)}, {vr(OFR+16*i+4*q,4)}, {vr(ACC+16*ct,16)}")
        return wreads, mm
    a.label("L_og_round")
    a("s_waitcnt vmcnt(0)")
    a("s_or_b32 s48, s48, s49")
    a("v_cmp_eq_u32 vcc, s46, v5")
    a("s_add_u32 s47, s47, 1")
    a("s_lshr_b32 s49, vcc_lo, 1")
    a("s_and_b32 s49, s49, vcc_lo")
    a("s_and_b32 s49, s49, 0x5555")
    a("s_lshr_b32 s53, s49, s51")
    a("s_lshl_b32 s49, s49, s52")
    a("s_or_b32 s49, s49, s53")
    a("s_and_b32 s49, s49, 0x5555")
    a(f"s_cmp_ge_u32 s47, {POLL_MAX}")
    a("s_cselect_b32 s49, 0x5555, s49")
    a("s_andn2_b32 s49, s49, s48")
    if E("DIAG3"):
        a("s_cmp_eq_u32 s47, 1")
        a("s_cbranch_scc0 L_d3a")
        stamp(a, 2)
        a("s_mov_b32 s70, s49")
        a.label("L_d3a")
        a("s_cmp_eq_u32 s47, 2")
        a("s_cbranch_scc0 L_d3b")
        stamp(a, 3)
        a("s_mov_b32 s72, s49")
        a.label("L_d3b")
        a("s_mov_b32 s74, s47")
    stamp(a, 10)
    a("s_cmp_eq_u32 s49, 0x5555")
    a("s_cbranch_scc1 L_og_fast")
    for i in range(8):
        a(f"s_bitcmp1_b32 s49, {2*i}")
        a(f"s_cbranch_scc0 L_og_nl{i}")
        og_loads(i)
        a.label(f"L_og_nl{i}")
    a("s_or_b32 s53, s48, s49")
    a("s_cmp_eq_u32 s53, 0x5555")
    a("s_cbranch_scc1 L_og_nopoll")
    a("s_cmp_eq_u32 s49, 0")
    a("s_cbranch_scc0 L_og_poll")
    a("s_sleep 4")
    a.label("L_og_poll")
    a("buffer_load_dword v5, v4, s[24:27], 0 offen sc1")
    a.label("L_og_nopoll")
    for i in range(8):
        a(f"s_bitcmp1_b32 s54, {2*i}")
        a(f"s_cbranch_scc1 L_og_nm{i}")
        a(f"s_bitcmp1_b32 s48, {2*i}")
        a(f"s_cbranch_scc0 L_og_round")
        a(f"s_bitset1_b32 s54, {2*i}")
        wreads, mm = og_mfma(i)
        wreads(WF[0], 0); wreads(WF[1], 1)
        a("s_waitcnt lgkmcnt(4)"); mm(WF[0], 0)
        wreads(WF[0], 2)
        a("s_waitcnt lgkmcnt(4)"); mm(WF[1], 1)
        wreads(WF[1], 3)
        a("s_waitcnt lgkmcnt(4)"); mm(WF[0], 2)
        a("s_waitcnt lgkmcnt(0)"); mm(WF[1], 3)
        a.label(f"L_og_nm{i}")
    a("s_branch L_og_done")
    a.label("L_og_fast")
    for i in range(8): og_loads(i)
    for i in range(8):
        wreads, mm = og_mfma(i)
        wreads(WF[0], 0); wreads(WF[1], 1)
        a(f"s_waitcnt vmcnt({28-4*i+2}) lgkmcnt(4)"); mm(WF[0], 0)
        wreads(WF[0], 2)
        a("s_waitcnt lgkmcnt(4)"); mm(WF[1], 1)
        wreads(WF[1], 3)
        a(f"s_waitcnt vmcnt({28-4*i}) lgkmcnt(4)"); mm(WF[0], 2)
        a("s_waitcnt lgkmcnt(0)"); mm(WF[1], 3)
    a.label("L_og_done")
    stamp(a, 11)
    a("s_lshl_b32 s36, s14, 12")
    a(f"s_add_u32 s36, s36, {XCH_OFF}")
    a("v_add_u32 v5, s36, v3")
    a("s_xor_b32 s36, s14, 4")
    a("s_lshl_b32 s36, s36, 12")
    a(f"s_add_u32 s36, s36, {XCH_OFF}")
    a("v_add_u32 v6, s36, v3")
    a("s_nop 9")
    a("s_cmp_eq_u32 s15, 0")
    a("s_cbranch_scc1 L_op_kh0")
    for q in range(4): a(f"ds_write_b128 v5, {vr(ACC+4*q,4)} offset:{q*1024}")
    for r in range(16): a(f"v_mov_b32 v{48+r}, v{ACC+16+r}")
    a("s_branch L_op_x")
    a.label("L_op_kh0")
    for q in range(4): a(f"ds_write_b128 v5, {vr(ACC+16+4*q,4)} offset:{q*1024}")
    for r in range(16): a(f"v_mov_b32 v{48+r}, v{ACC+r}")
    a.label("L_op_x")
    a("s_waitcnt lgkmcnt(0)")
    a("s_barrier")
    for q in range(4): a(f"ds_read_b128 {vr(64+4*q,4)}, v6 offset:{q*1024}")
    a("s_waitcnt lgkmcnt(0)")
    for r in range(16): a(f"v_add_f32 v{48+r}, v{48+r}, v{64+r}")
    for r in range(8): a(f"v_cvt_pk_bf16_f32 v{64+r}, v{48+2*r}, v{48+2*r+1}")
    a("v_and_b32 v5, 31, v2")
    a("v_lshlrev_b32 v5, 11, v5")
    a("v_lshrrev_b32 v6, 5, v2")
    a("v_lshlrev_b32 v6, 4, v6")
    a("v_add_u32 v5, v5, v6")
    for g in (0, 2):
        a(f"v_permlane32_swap_b32 v{64+2*g}, v{64+2*g+2}")
        a(f"v_permlane32_swap_b32 v{64+2*g+1}, v{64+2*g+3}")
    a("s_lshl_b32 s36, s10, 2")
    a("s_add_u32 s36, s36, s16")
    a("s_lshl_b32 s36, s36, 16")
    a("s_lshl_b32 s37, s11, 7")
    a("s_add_u32 s36, s36, s37")
    a("s_lshl_b32 s37, s15, 6")
    a("s_add_u32 s36, s36, s37")
    a(f"buffer_store_dwordx4 {vr(64,4)}, v5, s[32:35], s36 offen")
    a(f"buffer_store_dwordx4 {vr(68,4)}, v5, s[32:35], s36 offen offset:32")
    if STAMP:
        a("s_waitcnt vmcnt(0)")
        stamp(a, 12); stamp_rt(a, 13); stamp_store(a, 16)
    if DBGT:
        a("s_waitcnt vmcnt(0)")
        dbgt(a, 11, True); dbgt(a, 12)
    a("s_endpgm")
    if QPF:
        a.label("L_qpf_out")
        qpf("c")
        a("s_branch L_qpf_back")
    a.label("L_flag_out")
    a("s_waitcnt vmcnt(0)")
    a(f"s_lshl_b32 s36, s10, {8+D2}")
    a(f"s_lshl_b32 s39, s11, {4+D2}")
    a("s_add_u32 s36, s36, s39")
    a(f"s_lshl_b32 s39, s14, {2+D2}")
    a("s_add_u32 s36, s36, s39")
    a(f"s_add_u32 s36, s36, {FLG_OFF}")
    a("v_mov_b32 v4, s36")
    a("v_mov_b32 v5, s46")
    a("s_mov_b64 exec, 1")
    a("buffer_store_dword v5, v4, s[24:27], 0 offen sc1")
    a("s_mov_b64 exec, -1")
    a("s_branch L_flag_back")
    a.label("L_at_slow")
    X = S[0]; PX = P[0]
    a(f"v_mov_b32 v{M}, 0xff800000")
    a(f"v_mov_b32 v{L}, 0")
    for r in range(16): a(f"v_mov_b32 v{O+r}, 0")
    a("s_lshl_b32 s36, s17, 18")
    a("s_mov_b32 s47, 0")
    a.label("L_at_slow_loop")
    a(f"buffer_load_dwordx4 {vr(K,4)}, v3, s[24:27], s36 offen sc1")
    a(f"buffer_load_dwordx4 {vr(K+4,4)}, v3, s[24:27], s36 offen offset:1024 sc1")
    a(f"buffer_load_dwordx4 {vr(V,4)}, v3, s[24:27], s36 offen offset:2048 sc1")
    a(f"buffer_load_dwordx4 {vr(V+4,4)}, v3, s[24:27], s36 offen offset:3072 sc1")
    a("s_waitcnt vmcnt(0)")
    a(f"v_mfma_f32_32x32x16_bf16 {vr(X,16)}, {vr(K,4)}, {vr(Q,4)}, 0")
    a(f"v_mfma_f32_32x32x16_bf16 {vr(X,16)}, {vr(K+4,4)}, {vr(Q+4,4)}, {vr(X,16)}")
    a("s_nop 15"); a("s_nop 3")
    a(f"v_max_f32 v4, v{X}, v{X+1}")
    for r in range(2, 16): a(f"v_max_f32 v4, v4, v{X+r}")
    a("v_mov_b32 v5, v4")
    a("s_nop 1")
    a("v_permlane32_swap_b32 v4, v5")
    a("s_nop 1")
    a("v_max_f32 v4, v4, v5")
    a(f"v_max_f32 v4, v4, v{M}")
    a(f"v_sub_f32 v5, v{M}, v4")
    a("v_exp_f32 v5, v5")
    a(f"v_mov_b32 v{M}, v4")
    for r in range(16): a(f"v_sub_f32 v{X+r}, v{X+r}, v4")
    for r in range(16): a(f"v_exp_f32 v{X+r}, v{X+r}")
    a("s_nop 0")
    for r in range(8): a(f"v_cvt_pk_bf16_f32 v{PX+r}, v{X+2*r}, v{X+2*r+1}")
    a(f"v_mul_f32 v{L}, v{L}, v5")
    for r in range(16): a(f"v_mul_f32 v{O+r}, v{O+r}, v5")
    for r in range(8):
        a(f"v_lshlrev_b32 v6, 16, v{PX+r}")
        a(f"v_and_b32 v7, 0xffff0000, v{PX+r}")
        a(f"v_add_f32 v{L}, v{L}, v6")
        a(f"v_add_f32 v{L}, v{L}, v7")
    a("s_nop 1")
    a(f"v_mfma_f32_32x32x16_bf16 {vr(O,16)}, {vr(V,4)}, {vr(PX,4)}, {vr(O,16)}")
    a(f"v_mfma_f32_32x32x16_bf16 {vr(O,16)}, {vr(V+4,4)}, {vr(PX+4,4)}, {vr(O,16)}")
    a("s_nop 15"); a("s_nop 3")
    a("s_add_u32 s36, s36, 4096")
    a("s_add_u32 s47, s47, 1")
    a("s_cmp_lt_u32 s47, 64")
    a("s_cbranch_scc1 L_at_slow_loop")
    a(f"v_mov_b32 v5, v{L}")
    a(f"v_mov_b32 v4, v{L}")
    a("s_nop 1")
    a("v_permlane32_swap_b32 v4, v5")
    a("s_nop 1")
    a(f"v_add_f32 v{L}, v4, v5")
    a("s_branch L_at_fin")
    a.label("L_end")
    a("s_endpgm")
    return a.text()

HEADER = """; Fused multi-head attention: QKV projection -> softmax attention -> output projection, one persistent launch.
; @launch grid=(256,1,1) block=(512,1,1) lds=163840
"""
def main(out):
    vg = 256 if (STAMP or DBGT) else 244
    sg = 96 if (STAMP or DBGT) else 64
    txt = HEADER + '.amdgcn_target "amdgcn-amd-amdhsa--gfx950"\n.text\n' + gen()
    txt += f""".section .rodata,"a"
.p2align 6
.amdhsa_kernel {KNAME}
  .amdhsa_next_free_vgpr {vg}
  .amdhsa_next_free_sgpr {sg}
  .amdhsa_accum_offset {(vg+3)//4*4}
  .amdhsa_group_segment_fixed_size 0
  .amdhsa_kernarg_size 48
  .amdhsa_user_sgpr_count 2
  .amdhsa_user_sgpr_kernarg_segment_ptr 1
  .amdhsa_system_sgpr_workgroup_id_x 1
.end_amdhsa_kernel
"""
    open(out, "w").write(txt)
if __name__ == "__main__":
    main(sys.argv[1] if len(sys.argv) > 1 else "cdna_kernels/%s.s" % NAME)
```

```python
import sys, os, struct
NAME = "standalone__softmax_full_mha__prompt"
KNAME = NAME + "_kernel"
E = lambda k, d=0: int(os.environ.get(k, str(d)))
STAMP = E("STAMP")
STAMP_OFF = 32 << 20

class A:
    def __init__(self): self.l = []
    def __call__(self, s): self.l.append("    " + s)
    def label(self, s): self.l.append(s + ":")
    def raw(self, s): self.l.append(s)
    def text(self): return "\n".join(self.l) + "\n"
def vr(b, n=1): return f"v{b}" if n == 1 else f"v[{b}:{b+n-1}]"
def f32bits(x): return struct.unpack('<I', struct.pack('<f', x))[0]

class Lgkm:
    def __init__(self, a): self.a = a; self.q = []
    def issue(self, tag): self.q.append(tag)
    def need(self, tags):
        idx = -1
        for i, t in enumerate(self.q):
            if t in tags: idx = i
        if idx < 0: return
        n = len(self.q) - 1 - idx
        assert n <= 15
        self.a(f"s_waitcnt lgkmcnt({n})")
        self.q = self.q[idx+1:]
    def all(self):
        if self.q:
            self.a("s_waitcnt lgkmcnt(0)")
            self.q = []

KVF_OFF = 0
OF_OFF  = 8 << 20
FSH = E("FSH", 7)
D2 = FSH - 2
G_OFF = (12 << 20) + (1024 << FSH)
FLG_OFF = 12 << 20
WS_USED = 13 << 20
QSCALE = 0.17677669529663687 * 1.4426950408889634
G1_NSLOT = 4; G1_SLOT = 40960
AT_SLOT = 32768
QX_OFF = 131072
AT_R = 4
WO_LDS = 0
CNT_OFF = 147456 + 64
SCR_OFF = 147456 + 1024
XCH_OFF = 131072
EP_OFF = 147456
POLL_MAX = 40000

def stamp(a, k):
    if STAMP:
        a(f"s_memtime s[{60+2*k}:{61+2*k}]"); a("s_waitcnt lgkmcnt(0)")
def stamp_rt(a, k):
    if STAMP:
        a(f"s_memrealtime s[{60+2*k}:{61+2*k}]"); a("s_waitcnt lgkmcnt(0)")
def stamp_store(a, n):
    if STAMP:
        a(f"s_lshl_b32 s58, s2, 3"); a(f"s_add_u32 s58, s58, s14"); a(f"s_lshl_b32 s58, s58, 7")
        a(f"s_add_u32 s58, s58, {STAMP_OFF}")
        a(f"s_add_u32 s56, s8, s58"); a(f"s_addc_u32 s57, s9, 0")
        a("v_mov_b32 v254, 0")
        for k in range(n):
            a(f"v_mov_b32 v255, s{60+2*k}")
            a(f"global_store_dword v254, v255, s[56:57] offset:{4*k}")
        a("s_waitcnt vmcnt(0)")

DBGT = E("DBGT")
DSLOT = {1:0, 13:1, 3:2, 5:3, 7:4, 9:5, 11:6}
def dbgt(a, slot, neg=False):
    if DBGT and neg:
        i = DSLOT[slot]
        a(f"s_memrealtime s[{60+2*i}:{61+2*i}]")
        a("s_waitcnt lgkmcnt(0)")
        if slot == 11:
            a(f"s_and_b32 s92, s2, 0x7f")
            a("s_cmp_eq_u32 s92, 0")
            a("s_cbranch_scc0 L_dbg_skip")
            a("s_cmp_eq_u32 s14, 4")
            a("s_cbranch_scc0 L_dbg_skip")
            a("s_lshr_b32 s92, s2, 7")
            a("s_mul_i32 s92, s92, 28")
            a("v_mov_b32 v251, s92")
            for k in range(7):
                a(f"v_mov_b32 v250, s{60+2*k}")
                a(f"global_store_dword v251, v250, s[90:91] offset:{4+4*k}")
            a.label("L_dbg_skip")

def srd(a, d, plo, off, nrec):
    if off is None:
        a(f"s_mov_b32 s{d}, s{plo}"); a(f"s_mov_b32 s{d+1}, s{plo+1}")
    else:
        a(f"s_add_u32 s{d}, s{plo}, {off}"); a(f"s_addc_u32 s{d+1}, s{plo+1}, 0")
    a(f"s_mov_b32 s{d+2}, {nrec}"); a(f"s_mov_b32 s{d+3}, 0x20000")

def poll(a, name, voff, mask=None):
    a(f"s_mov_b32 s47, 0")
    a.label(f"L_poll_{name}")
    a(f"buffer_load_dword v5, v{voff}, s[24:27], 0 offen sc1")
    a("s_waitcnt vmcnt(0)")
    a("v_cmp_ne_u32 vcc, s46, v5")
    a("s_add_u32 s47, s47, 1")
    if mask is not None: a(f"s_and_b64 vcc, vcc, s[{mask}:{mask+1}]")
    a("s_cmp_eq_u64 vcc, 0")
    a(f"s_cbranch_scc1 L_poll_{name}_done")
    a(f"s_cmp_ge_u32 s47, {POLL_MAX}")
    a(f"s_cbranch_scc1 L_poll_{name}_done")
    a("s_sleep 1")
    a(f"s_branch L_poll_{name}")
    a.label(f"L_poll_{name}_done")

def gen():
    a = A()
    a.raw(f".globl {KNAME}\n.p2align 8\n.type {KNAME},@function\n{KNAME}:")
    a("s_cmp_ge_u32 s2, 256")
    a("s_cbranch_scc1 L_end")
    a("s_load_dwordx4 s[4:7], s[0:1], 0")
    a("s_load_dwordx2 s[8:9], s[0:1], 40")
    a("s_load_dwordx4 s[40:43], s[0:1], 16")
    a("s_load_dwordx2 s[44:45], s[0:1], 32")
    a("s_and_b32 s12, s2, 7")
    a("s_lshr_b32 s11, s2, 3")
    a("s_mov_b32 s13, 0")
    if E("MAP", 2) == 0:
        a("s_lshr_b32 s10, s12, 1")
        a("s_lshl_b32 s10, s10, 2")
        a("s_and_b32 s16, s11, 3")
        a("s_add_u32 s10, s10, s16")
        a("s_lshr_b32 s11, s11, 2")
        a("s_and_b32 s12, s12, 1")
        a("s_lshl_b32 s12, s12, 3")
        a("s_add_u32 s11, s11, s12")
    elif E("MAP", 2) == 2:
        a("s_lshl_b32 s10, s12, 1")
        a("s_and_b32 s16, s11, 1")
        a("s_add_u32 s10, s10, s16")
        a("s_lshr_b32 s11, s11, 1")
    else:
        a("s_and_b32 s10, s12, 1")
        a("s_lshl_b32 s10, s10, 3")
        a("s_and_b32 s16, s11, 7")
        a("s_add_u32 s10, s10, s16")
        a("s_lshr_b32 s11, s11, 3")
        a("s_lshr_b32 s12, s12, 1")
        a("s_lshl_b32 s12, s12, 2")
        a("s_add_u32 s11, s11, s12")
    a("v_lshrrev_b32 v1, 6, v0")
    a("v_and_b32 v2, 63, v0")
    a("v_lshlrev_b32 v3, 4, v2")
    a("v_readfirstlane_b32 s14, v1")
    a("s_waitcnt lgkmcnt(0)")
    stamp_rt(a, 0); stamp(a, 1)
    if DBGT:
        a("s_mov_b32 s90, s44"); a("s_mov_b32 s91, s45")
    dbgt(a, 1, True); dbgt(a, 2)
    srd(a, 24, 8, None, WS_USED)
    ONES = 224; IDX = 228; VLO = 229; VHI = 230; VONE = 231; VCA = 232; VCR = 233; VCV = 234; VD0 = 235; VB = VLO
    def at_consts():
        a("s_lshr_b32 s50, s14, 2")
        a("s_and_b32 s51, s14, 3")
        a("s_lshl_b32 s52, s50, 12")
        a(f"v_add_u32 v{VLO}, s52, v3")
        a(f"v_add_u32 v{VHI}, 65536, v{VLO}")
        a("v_and_b32 v4, 6, v2")
        a("v_mov_b32 v5, 0x3f803f80")
        a("v_cmp_eq_u32 vcc, 0, v4")
        a("s_lshl_b32 s52, s51, 12")
        a(f"v_mov_b32 v{VONE}, 1")
        a(f"v_cndmask_b32 v{ONES}, 0, v5, vcc")
        a(f"v_cndmask_b32 v{ONES+1}, 0, v5, vcc")
        a("v_cmp_eq_u32 vcc, 4, v4")
        for q in range(2): a(f"v_add_u32 v{VD0+q}, s52, v3")
        a(f"v_cndmask_b32 v{ONES+2}, 0, v5, vcc")
        a(f"v_cndmask_b32 v{ONES+3}, 0, v5, vcc")
        a("v_and_b32 v4, 1, v2")
        a("v_mov_b32 v5, 0x44444444")
        a("v_mov_b32 v7, 0xeeeeeeee")
        a("v_cmp_eq_u32 vcc, 0, v4")
        for q in range(2, 4): a(f"v_add_u32 v{VD0+q}, s52, v3")
        a(f"v_cndmask_b32 v{IDX}, v7, v5, vcc")
        a("s_lshl_b32 s52, s50, 2")
        a(f"s_add_u32 s52, s52, {CNT_OFF}")
        a(f"v_mov_b32 v{VCR}, s52")
        a("s_lshl_b32 s52, s14, 8")
        a(f"s_add_u32 s52, s52, {SCR_OFF}")
        a("v_lshlrev_b32 v4, 2, v2")
        a(f"v_add_u32 v{VCA}, s52, v4")
        a("v_cmp_eq_u32 vcc, 0, v2")
        a(f"s_lshl_b32 s52, s10, {8+D2}")
        a(f"s_add_u32 s52, s52, {FLG_OFF}")
        a(f"v_cndmask_b32 v{VCA}, v{VCA}, v{VCR}, vcc")
        a(f"v_lshlrev_b32 v239, {FSH}, v2")
        a("v_add_u32 v239, s52, v239")
    a("s_cmp_lt_u32 s14, 4")
    a("s_cbranch_scc1 L_g1_compute")
    a("s_sub_u32 s15, s14, 4")
    a("s_lshl_b32 s16, s11, 18")
    a("s_sub_u32 s17, 0x400000, s16")
    a("s_add_u32 s28, s4, s16"); a("s_addc_u32 s29, s5, 0"); a("s_mov_b32 s30, s17"); a("s_mov_b32 s31, 0x20000")
    a("s_lshl_b32 s16, s10, 7")
    a("s_sub_u32 s17, 0x600000, s16")
    a("s_add_u32 s32, s6, s16"); a("s_addc_u32 s33, s7, 0"); a("s_mov_b32 s34, s17"); a("s_mov_b32 s35, 0x20000")
    a("v_lshrrev_b32 v4, 3, v2")
    a("v_lshlrev_b32 v5, 11, v4")
    a("v_and_b32 v6, 7, v2")
    a("v_lshrrev_b32 v7, 4, v2")
    a("v_xor_b32 v8, v6, v7")
    a("v_lshlrev_b32 v8, 4, v8")
    a("v_add_u32 v5, v5, v8")
    a("s_lshl_b32 s16, s15, 16")
    a("v_add_u32 v10, s16, v5")
    a("v_xor_b32 v11, 64, v10")
    a("v_mul_u32_u24 v5, 6144, v4")
    a("v_and_b32 v7, 1, v7")
    a("v_lshlrev_b32 v7, 2, v7")
    a("v_xor_b32 v8, v6, v7")
    a("v_lshlrev_b32 v8, 4, v8")
    a("v_add_u32 v5, v5, v8")
    a("s_mul_i32 s16, s15, 98304")
    a("v_add_u32 v12, s16, v5")
    a("s_lshl_b32 s18, s15, 12")
    a("s_lshl_b32 s19, s15, 11")
    a("s_add_u32 s19, s19, 16384")
    a("s_mov_b32 s20, s13")
    a("s_mov_b32 s36, 0")
    if E("X0PF", 0):
        a("s_and_b32 s36, s10, 1")
        a("s_lshl_b32 s36, s36, 6")
        a("v_add_u32 v13, s36, v2")
        a("v_lshlrev_b32 v13, 11, v13")
        a("s_lshl_b32 s36, s15, 7")
        a("buffer_load_dword v16, v13, s[28:31], s36 offen")
        a("s_mov_b32 s36, 0")
        a("s_waitcnt vmcnt(0)")
    first = [True]
    XPF = E("XPF", 0)
    NV = 11 if XPF else 10
    if XPF:
        a("v_and_b32 v13, 15, v2")
        a("s_and_b32 s36, s10, 1")
        a("s_lshl_b32 s36, s36, 2")
        a("s_add_u32 s36, s36, s15")
        a("s_lshl_b32 s36, s36, 4")
        a("v_add_u32 v13, s36, v13")
        a("v_lshlrev_b32 v13, 11, v13")
        a("s_mov_b32 s36, 0")
    if E("DIAG1"): stamp(a, 4)
    def issue_stage():
        a("s_lshl_b32 s21, s20, 7")
        a("s_mul_i32 s22, s20, 393216")
        a("s_add_u32 s37, s36, s18")
        a("s_add_u32 s39, s36, s19")
        for i in range(4):
            a(f"s_add_u32 m0, s37, {i*1024}")
            a(f"s_add_u32 s38, s21, {i*16384}")
            a(f"buffer_load_dwordx4 v{10+(i&1)}, s[28:31], s38 offen lds")
            if E("DIAG1") and first[0] and i in (0, 3): stamp(a, 5 if i == 0 else 6)
        for t in range(3):
            for kb in range(2):
                a(f"s_add_u32 m0, s39, {t*8192+kb*1024}")
                a(f"s_add_u32 s38, s22, {t*2048+kb*49152}")
                a(f"buffer_load_dwordx4 v12, s[32:35], s38 offen lds")
                if E("DIAG1") and first[0] and kb == 0 and t == 0: stamp(a, 7)
        first[0] = False
        if XPF:
            a(f"s_add_u32 s38, s20, {XPF}")
            a("s_lshl_b32 s37, s38, 7")
            a("s_cmp_lt_u32 s38, 16")
            a("s_cselect_b32 s38, s37, 0x7ff00000")
            a("buffer_load_dword v16, v13, s[28:31], s38 offen")
        a("s_add_u32 s20, s20, 1")
        a("s_and_b32 s20, s20, 15")
        a(f"s_add_u32 s36, s36, {G1_SLOT}")
        a(f"s_cmp_eq_u32 s36, {G1_SLOT*G1_NSLOT}")
        a("s_cselect_b32 s36, 0, s36")
    issue_stage()
    stamp(a, 2)
    issue_stage()
    a(f"s_waitcnt vmcnt({NV})")
    stamp(a, 3)
    a("s_barrier")
    if E("DIAG1"):
        a("s_waitcnt vmcnt(0)"); stamp(a, 8); stamp_rt(a, 13); stamp_store(a, 16); a("s_endpgm")
    dbgt(a, 13, True); dbgt(a, 14)
    LA = E("LA", 3)
    if LA == 3:
        issue_stage()
        a("s_mov_b32 s23, 0")
        a.label("L_g1_ldloop")
        a(f"s_waitcnt vmcnt({NV})")
        a("s_barrier")
        issue_stage()
        a("s_add_u32 s23, s23, 1")
        a("s_cmp_lt_u32 s23, 13")
        a("s_cbranch_scc1 L_g1_ldloop")
        for k in range(3):
            a(f"s_waitcnt vmcnt({NV if k == 0 else 0})")
            a("s_barrier")
    else:
        issue_stage(); issue_stage()
        for k in range(3):
            a(f"s_waitcnt vmcnt({2*NV})")
            a("s_barrier")
            issue_stage()
        a("s_mov_b32 s23, 3")
        a.label("L_g1_ldloop")
        a(f"s_waitcnt vmcnt({NV*(G1_NSLOT-2)})")
        a("s_barrier")
        issue_stage()
        a("s_add_u32 s23, s23, 1")
        a(f"s_cmp_lt_u32 s23, {16-G1_NSLOT}")
        a("s_cbranch_scc1 L_g1_ldloop")
        for k in range(G1_NSLOT):
            a(f"s_waitcnt vmcnt({NV*max(0, G1_NSLOT-2-k)})")
            a("s_barrier")
    if E("DIAG5"): a("s_endpgm")
    at_consts()
    a("s_branch L_g1_done")
    a.label("L_g1_compute")
    ACC = 128; SETS = [64, 84]; XA = 104; WA = 108
    QPF = E("QPF", 1)
    NSH = {2: 16, 0: 8, 1: 4}[E("MAP", 2)]
    def qpf(tag):
        a("s_cmp_eq_u32 s14, 3")
        a(f"s_cbranch_scc1 L_qpf_x{tag}")
        a("s_cmp_eq_u32 s14, 0")
        a(f"s_cbranch_scc0 L_qpf_done{tag}")
        a("global_load_dword v16, v14, s[6:7]")
        a("v_add_u32 v14, 1572864, v14")
        if NSH == 8:
            a("global_load_dword v16, v15, s[6:7]")
            a("v_add_u32 v15, 1572864, v15")
        a(f"s_branch L_qpf_done{tag}")
        a.label(f"L_qpf_x{tag}")
        a("global_load_dwordx4 v[16:19], v14, s[4:5]")
        a("v_add_u32 v13, 4096, v14")
        a("global_load_dwordx4 v[16:19], v15, s[4:5]")
        a("global_load_dwordx4 v[16:19], v13, s[4:5]")
        a("v_add_u32 v13, 4096, v15")
        a("v_add_u32 v14, 512, v14")
        a("global_load_dwordx4 v[16:19], v13, s[4:5]")
        a("v_add_u32 v15, 512, v15")
        a.label(f"L_qpf_done{tag}")
    if QPF:
        a("s_cmp_eq_u32 s14, 3")
        a("s_cbranch_scc1 L_qpf_setx")
        def wline(dst, lane0, nl):
            a(f"v_min_u32 v{dst}, {nl-1}, v2")
            a(f"s_and_b32 s16, s11, {NSH-1}")
            a(f"s_mul_i32 s16, s16, {768//NSH}")
            a(f"s_add_u32 s16, s16, {lane0}")
            a(f"v_add_u32 v{dst}, s16, v{dst}")
            a("s_mov_b32 s17, 0x5556")
            a(f"v_mul_u32_u24 v12, s17, v{dst}")
            a("v_lshrrev_b32 v12, 16, v12")
            a("v_mul_u32_u24 v13, 3, v12")
            a(f"v_sub_u32 v13, v{dst}, v13")
            a(f"v_mul_u32_u24 v{dst}, 6144, v12")
            a("v_lshlrev_b32 v13, 11, v13")
            a(f"v_add_u32 v{dst}, v{dst}, v13")
            a("s_lshl_b32 s16, s10, 7")
            a(f"v_add_u32 v{dst}, s16, v{dst}")
        if NSH == 16:
            wline(14, 0, 48); a("v_mov_b32 v15, v14")
        else:
            wline(14, 0, 64); wline(15, 64, 32)
        a("s_branch L_qpf_set")
        a.label("L_qpf_setx")
        a("v_lshrrev_b32 v14, 5, v2")
        a("v_lshlrev_b32 v14, 11, v14")
        a("v_and_b32 v15, 31, v2")
        a("v_lshlrev_b32 v15, 4, v15")
        a("v_add_u32 v14, v14, v15")
        a("s_lshl_b32 s16, s2, 14")
        a("v_add_u32 v14, s16, v14")
        a("v_add_u32 v15, 8192, v14")
        a.label("L_qpf_set")
        qpf("a")
    a("s_cmp_eq_u32 s14, 0")
    a("s_cbranch_scc0 L_nocas")
    a("v_mov_b32 v243, 0")
    a("s_cmp_eq_u32 s2, 0")
    a("s_cbranch_scc0 L_nocas")
    a("s_memrealtime s[16:17]")
    a("s_waitcnt lgkmcnt(0)")
    a("s_or_b32 s16, s16, 1")
    a("v_mov_b32 v240, s16")
    a("s_mov_b64 exec, 1")
    a("global_store_dword v243, v240, s[44:45] sc1")
    a("s_mov_b64 exec, -1")
    a.label("L_nocas")
    a("s_lshl_b32 s16, s2, 13")
    a("s_lshl_b32 s17, s14, 11")
    a("s_add_u32 s16, s16, s17")
    a("v_add_u32 v4, s16, v3")
    a("global_load_dwordx4 v[16:19], v4, s[40:41]")
    a("global_load_dwordx4 v[16:19], v4, s[40:41] offset:1024")
    a("s_getpc_b64 s[16:17]")
    a.label("L_pc")
    a("s_sub_u32 s16, s16, L_pc-" + KNAME)
    a("s_subb_u32 s17, s17, 0")
    a("v_lshlrev_b32 v4, 7, v2")
    a("s_lshl_b32 s18, s14, 13")
    a("v_add_u32 v4, s18, v4")
    a("v_cmp_gt_u32 vcc, L_end-" + KNAME + ", v4")
    a("s_and_saveexec_b64 s[18:19], vcc")
    a("s_cbranch_execz L_nocode")
    a("global_load_dword v16, v4, s[16:17]")
    a.label("L_nocode")
    a("s_mov_b64 exec, s[18:19]")
    a("s_lshr_b32 s15, s14, 1")
    a("s_and_b32 s16, s14, 1")
    a("v_and_b32 v4, 31, v2")
    a("s_lshl_b32 s17, s15, 6")
    a("v_add_u32 v4, s17, v4")
    a("v_lshlrev_b32 v4, 7, v4")
    a("v_lshrrev_b32 v5, 1, v2")
    a("v_and_b32 v5, 7, v5")
    a("v_lshrrev_b32 v6, 5, v2")
    a("v_xor_b32 v5, v5, v6")
    for ks in range(4):
        a(f"v_xor_b32 v7, {2*ks}, v5")
        a(f"v_lshlrev_b32 v7, 4, v7")
        a(f"v_add_u32 v{XA+ks}, v4, v7")
    a("v_and_b32 v7, 15, v2")
    a("v_lshrrev_b32 v7, 2, v7")
    a("v_lshlrev_b32 v8, 3, v6")
    a("v_add_u32 v8, v8, v7")
    a("v_lshlrev_b32 v8, 7, v8")
    a("v_lshrrev_b32 v9, 4, v2")
    a("v_and_b32 v9, 1, v9")
    a("v_lshlrev_b32 v9, 1, v9")
    a("v_and_b32 v10, 3, v2")
    a("v_lshrrev_b32 v11, 1, v10")
    a("v_add_u32 v9, v9, v11")
    a("s_lshl_b32 s17, s16, 2")
    a("v_add_u32 v9, s17, v9")
    a("v_lshrrev_b32 v11, 1, v7")
    a("v_lshlrev_b32 v11, 2, v11")
    a("v_xor_b32 v9, v9, v11")
    a("v_lshlrev_b32 v9, 4, v9")
    a("v_add_u32 v8, v8, v9")
    a("v_and_b32 v10, 1, v10")
    a("v_lshlrev_b32 v10, 3, v10")
    a("v_add_u32 v8, v8, v10")
    a(f"v_add_u32 v{WA}, 16384, v8")
    for r in range(96): a(f"v_mov_b32 v{ACC+r}, 0")
    if E("PREF", 0):
        a("s_lshl_b32 s19, s2, 14")
        a("s_lshl_b32 s17, s14, 12")
        a("s_add_u32 s19, s19, s17")
        a("v_add_u32 v4, s19, v3")
        for q in range(4): a(f"global_load_dwordx4 v[{16+4*q}:{19+4*q}], v4, s[4:5] offset:{q*1024}")
        a("s_mul_i32 s19, s2, 24576")
        a("s_mul_i32 s17, s14, 6144")
        a("s_add_u32 s19, s19, s17")
        a("v_add_u32 v4, s19, v3")
        for q in range(4): a(f"global_load_dwordx4 v[{32+4*q}:{35+4*q}], v4, s[6:7] offset:{q*1024}")
        a("v_add_u32 v4, 4096, v4")
        for q in range(2): a(f"global_load_dwordx4 v[{48+4*q}:{51+4*q}], v4, s[6:7] offset:{q*1024}")
    at_consts()
    a("s_lshl_b32 s17, s10, 1")
    a("s_add_u32 s17, s17, s16")
    a("s_lshl_b32 s19, s11, 2")
    a("s_lshl_b32 s20, s15, 1")
    a("s_add_u32 s19, s19, s20")
    a("s_lshl_b32 s20, s17, 6")
    a("s_add_u32 s20, s20, s19")
    a("s_lshl_b32 s48, s20, 12")
    a("s_lshl_b32 s20, s15, 14")
    a("s_lshl_b32 s21, s16, 12")
    a("s_add_u32 s20, s20, s21")
    a("v_add_u32 v57, s20, v3")
    a("s_lshl_b32 s20, s16, 2")
    a("s_lshl_b32 s21, s15, 1")
    a("s_add_u32 s20, s20, s21")
    a("s_lshl_b32 s20, s20, 11")
    a(f"s_add_u32 s20, s20, {QX_OFF}")
    a("v_add_u32 v58, s20, v3")
    a(f"s_mov_b32 s23, {f32bits(QSCALE)}")
    a("s_mov_b32 s18, 0")
    a(f"s_mov_b32 s21, {-(G1_NSLOT-1)*G1_SLOT & 0xffffffff}")
    a(f"s_mov_b32 s22, {G1_SLOT}")
    a("s_barrier")
    if E("DIAG1"):
        a("s_waitcnt vmcnt(0)"); a("s_endpgm")
    stamp(a, 2)
    a("v_mov_b32 v243, 0")
    a("global_load_dword v242, v243, s[44:45] sc1")
    if QPF: qpf("b")
    lg = Lgkm(a)
    def reads(setb, ks, tagp):
        x0, x1, w0, w1, w2 = setb, setb+4, setb+8, setb+12, setb+16
        return [(tagp+"x0", f"ds_read_b128 {vr(x0,4)}, v{XA+ks}"),
                (tagp+"w0", f"ds_read_b64_tr_b16 {vr(w0,2)}, v{WA} offset:{ks*2048}"),
                (tagp+"w0", f"ds_read_b64_tr_b16 {vr(w0+2,2)}, v{WA} offset:{ks*2048+512}"),
                (tagp+"x1", f"ds_read_b128 {vr(x1,4)}, v{XA+ks} offset:4096"),
                (tagp+"w1", f"ds_read_b64_tr_b16 {vr(w1,2)}, v{WA} offset:{8192+ks*2048}"),
                (tagp+"w1", f"ds_read_b64_tr_b16 {vr(w1+2,2)}, v{WA} offset:{8192+ks*2048+512}"),
                (tagp+"w2", f"ds_read_b64_tr_b16 {vr(w2,2)}, v{WA} offset:{16384+ks*2048}"),
                (tagp+"w2", f"ds_read_b64_tr_b16 {vr(w2+2,2)}, v{WA} offset:{16384+ks*2048+512}")]
    def mfma(setb, i, t):
        x = setb + 4*i; w = setb + 8 + 4*t; acc = ACC + 16*(i*3+t)
        if t < 2: return f"v_mfma_f32_32x32x16_bf16 {vr(acc,16)}, {vr(w,4)}, {vr(x,4)}, {vr(acc,16)}"
        return f"v_mfma_f32_32x32x16_bf16 {vr(acc,16)}, {vr(x,4)}, {vr(w,4)}, {vr(acc,16)}"
    for tag, ins in reads(SETS[0], 0, "A"):
        a(ins); lg.issue(tag)
    a.raw(".p2align 6")
    a.label("L_g1_loop")
    order = [(0,1),(0,2),(1,1),(1,2),(0,0),(1,0)]
    needs = [["x0","w1"],["w2"],["x1"],[],["w0"],[]]
    def reads2(setb, ks, tagp):
        R = reads(setb, ks, tagp)
        return [R[0], R[4], R[5], R[6], R[7], R[3], R[1], R[2]]
    a.l = a.l[:-10]; lg.q = []
    for tag, ins in reads2(SETS[0], 0, "A"):
        a(ins); lg.issue(tag)
    a.raw(".p2align 6")
    a.label("L_g1_loop")
    for ks in range(4):
        cur = SETS[ks & 1]; nxt = SETS[(ks+1) & 1]
        cp = "AB"[ks & 1]; np_ = "AB"[(ks+1) & 1]
        if ks == 3:
            lg.all()
            a("s_add_u32 s18, s18, 1")
            if QPF:
                a("s_and_b32 s19, s18, 11")
                a("s_cmp_eq_u32 s19, 2")
                a("s_cbranch_scc1 L_qpf_out")
                a.label("L_qpf_back")
            a("s_and_b32 s19, s18, %d" % (G1_NSLOT-1))
            a("s_cmp_eq_u32 s19, 0")
            a("s_cselect_b32 s20, s21, s22")
            for k in range(4): a(f"v_add_u32 v{XA+k}, s20, v{XA+k}")
            a(f"v_add_u32 v{WA}, s20, v{WA}")
            a("s_barrier")
            if E("DIAG5"):
                a("s_memtime s[92:93]"); a("s_waitcnt lgkmcnt(0)")
                a("s_mov_b32 m0, s18")
                a("s_movreld_b32 s64, s92")
        R = reads2(nxt, (ks+1) & 3, np_)
        slots = [[], R[0:2], R[2:4], R[4:6], R[6:8], []]
        for k in range(6):
            for tag, ins in slots[k]:
                a(ins); lg.issue(tag)
            lg.need([cp+t for t in needs[k]])
            a(mfma(cur, *order[k]))
    a("s_cmp_lt_u32 s18, 16")
    a("s_cbranch_scc1 L_g1_loop")
    if E("DIAG4"): a("s_endpgm")
    if E("DIAG5"):
        a("s_lshl_b32 s58, s2, 3"); a("s_add_u32 s58, s58, s14"); a("s_lshl_b32 s58, s58, 7")
        a(f"s_add_u32 s58, s58, {STAMP_OFF}")
        a("s_add_u32 s56, s8, s58"); a("s_addc_u32 s57, s9, 0")
        a("v_mov_b32 v254, 0")
        a("v_mov_b32 v255, s62"); a("global_store_dword v254, v255, s[56:57]")
        a("v_mov_b32 v255, s64"); a("global_store_dword v254, v255, s[56:57] offset:4")
        for k in range(1, 17):
            a(f"v_mov_b32 v255, s{64+k}"); a(f"global_store_dword v254, v255, s[56:57] offset:{4+4*k}")
        a("s_waitcnt vmcnt(0)"); a("s_endpgm")
    a("s_waitcnt lgkmcnt(0) vmcnt(0)")
    stamp(a, 3)
    a("s_nop 11")
    T = 64
    n = 0
    for i in range(2):
        for t in (1, 2):
            acc = ACC + 16*(i*3+t); base = T + 8*(n % 4); n += 1
            for r in range(8): a(f"v_cvt_pk_bf16_f32 v{base+r}, v{acc+2*r}, v{acc+2*r+1}")
            o = i*4096 + (t-1)*2048
            a(f"s_add_u32 s28, s48, {o}")
            a(f"buffer_store_dwordx4 {vr(base,4)}, v3, s[24:27], s28 offen sc1")
            a(f"buffer_store_dwordx4 {vr(base+4,4)}, v3, s[24:27], s28 offen offset:1024 sc1")
            a(f"ds_write_b128 v57, {vr(base,4)} offset:{i*8192+(t-1)*2048}")
            a(f"ds_write_b128 v57, {vr(base+4,4)} offset:{i*8192+(t-1)*2048+1024}")
    for i in range(2):
        acc = ACC + 16*(i*3); base = 96 + 8*i
        for r in range(16): a(f"v_mul_f32 v{acc+r}, s23, v{acc+r}")
        for r in range(8): a(f"v_cvt_pk_bf16_f32 v{base+r}, v{acc+2*r}, v{acc+2*r+1}")
        a(f"ds_write_b128 v58, {vr(base,4)} offset:{i*2048}")
        a(f"ds_write_b128 v58, {vr(base+4,4)} offset:{i*2048+1024}")
    a("s_cmp_eq_u32 s14, 0")
    a("s_cbranch_scc0 L_noep")
    a("s_mov_b32 s19, 0")
    a.label("L_tag_spin")
    a("v_readfirstlane_b32 s20, v242")
    a("s_add_u32 s19, s19, 1")
    a("s_cmp_lg_u32 s20, 0")
    a("s_cbranch_scc1 L_tag_ok")
    a(f"s_cmp_ge_u32 s19, {POLL_MAX}")
    a("s_cbranch_scc1 L_tag_ok")
    a("s_sleep 1")
    a("global_load_dword v242, v243, s[44:45] sc1")
    a("s_waitcnt vmcnt(0)")
    a("s_branch L_tag_spin")
    a.label("L_tag_ok")
    a(f"v_mov_b32 v6, {EP_OFF}")
    a("s_mov_b64 exec, 1")
    a("ds_write_b32 v6, v242")
    a("v_mov_b32 v7, 0")
    a(f"ds_write_b64 v6, v[7:8] offset:64" if False else f"ds_write_b32 v6, v7 offset:64")
    a(f"ds_write_b32 v6, v7 offset:68")
    a("s_mov_b64 exec, -1")
    a.label("L_noep")
    a("s_waitcnt lgkmcnt(0)")
    a.label("L_g1_done")
    a("s_barrier")
    dbgt(a, 3, True); dbgt(a, 4)
    stamp(a, 4)
    Q, K, V = 8, 16, 24
    S = [32, 48]; P = [64, 72]; O = 80; L = 96; M = 107
    a("s_lshr_b32 s15, s14, 2")
    a("s_and_b32 s16, s14, 3")
    a("s_lshl_b32 s17, s10, 1")
    a("s_add_u32 s17, s17, s15")
    a("s_lshl_b32 s18, s11, 2")
    a("s_add_u32 s18, s18, s16")
    a("s_lshl_b32 s20, s14, 11")
    a(f"s_add_u32 s20, s20, {QX_OFF}")
    a("v_add_u32 v4, s20, v3")
    a(f"ds_read_b128 {vr(Q,4)}, v4")
    a(f"ds_read_b128 {vr(Q+4,4)}, v4 offset:1024")
    a(f"v_mov_b32 v6, {EP_OFF}")
    a("ds_read_b32 v6, v6")
    a(f"ds_read_b128 {vr(K,4)}, v{VLO}")
    a(f"ds_read_b128 {vr(K+4,4)}, v{VLO} offset:1024")
    for r in range(4): a(f"v_mov_b32 v{L+r}, 0")
    a("s_lshl_b32 s20, s17, 18")
    a("s_add_u32 s28, s8, s20"); a("s_addc_u32 s29, s9, 0"); a("s_mov_b32 s30, 262144"); a("s_mov_b32 s31, 0x20000")
    a("s_lshl_b32 s21, s16, 13")
    a("s_lshl_b32 s36, s15, 12")
    a("s_add_u32 s21, s21, s36")
    a("s_waitcnt lgkmcnt(0)")
    a("v_readfirstlane_b32 s46, v6")
    a(f"v_mfma_f32_32x32x16_bf16 {vr(S[0],16)}, {vr(K,4)}, {vr(Q,4)}, 0")
    a(f"v_mfma_f32_32x32x16_bf16 {vr(S[0],16)}, {vr(K+4,4)}, {vr(Q+4,4)}, {vr(S[0],16)}")
    lg = Lgkm(a)
    def ldsa(slot, t, f):
        off = slot*AT_SLOT + t*8192 + f*1024
        return f"v{VLO if off < 65536 else VHI} offset:{off & 0xffff}"
    a(f"ds_read_b128 {vr(K,4)}, {ldsa(0,1,0)}"); lg.issue("K")
    a(f"ds_read_b128 {vr(K+4,4)}, {ldsa(0,1,1)}"); lg.issue("K")
    a("s_nop 7")
    PRIO = E("PRIO", 1)
    def at_step(i, own, slot, tag=""):
        X = S[i & 1]; Y = S[(i+1) & 1]; PX = P[i & 1]; PY = P[(i+1) & 1]
        ex = lambda r: a(f"v_exp_f32 v{X+r}, v{X+r}")
        cv = lambda r: a(f"v_cvt_pk_bf16_f32 v{PX+r}, v{X+2*r}, v{X+2*r+1}")
        def kread():
            t = i + 2
            if own and t >= 4: return
            sl = slot if t < 4 else (slot+1) & 3
            a(f"ds_read_b128 {vr(K,4)}, {ldsa(sl, t % 4, 0)}"); lg.issue("K")
            a(f"ds_read_b128 {vr(K+4,4)}, {ldsa(sl, t % 4, 1)}"); lg.issue("K")
        def vread():
            a(f"ds_read_b128 {vr(V,4)}, {ldsa(slot, i, 2)}"); lg.issue("V")
            a(f"ds_read_b128 {vr(V+4,4)}, {ldsa(slot, i, 3)}"); lg.issue("V")
        def dma1(q):
            if own or E("DMAMODE", 1) == 0: return
            a(f"buffer_load_dwordx4 v{VD0+q}, s[28:31], s55 offen offset:{q*1024} sc1 lds")
        qk0 = f"v_mfma_f32_32x32x16_bf16 {vr(Y,16)}, {vr(K,4)}, {vr(Q,4)}, 0"
        qk1 = f"v_mfma_f32_32x32x16_bf16 {vr(Y,16)}, {vr(K+4,4)}, {vr(Q+4,4)}, {vr(Y,16)}"
        pv0 = f"v_mfma_f32_32x32x16_bf16 {vr(O,16)}, {vr(V,4)}, {vr(PY,4)}, {vr(O,16)}"
        pv1 = f"v_mfma_f32_32x32x16_bf16 {vr(O,16)}, {vr(V+4,4)}, {vr(PY+4,4)}, {vr(O,16)}"
        smf = f"v_smfmac_f32_16x16x64_bf16 {vr(L,4)}, {vr(ONES,4)}, {vr(PY,8)}, v{IDX}"
        if own and i == 1: pv0 = f"v_mfma_f32_32x32x16_bf16 {vr(O,16)}, {vr(V,4)}, {vr(PY,4)}, 0"
        nopv = own and i == 0
        if PRIO: a(f"s_setprio {3-i}")
        has_qk = not (own and i == 3)
        if own and i == E("FLAGSTEP", 2):
            a("s_cmp_lt_u32 s14, 4")
            a("s_cbranch_scc1 L_flag_out")
            a.label("L_flag_back")
        SCH = E("SCH", 1)
        if SCH == 0:
            if has_qk:
                lg.need(["K"]); a(qk0)
            ex(0); ex(1); ex(2); ex(3)
            if has_qk: a(qk1)
            if i == 2 and not own and not E("X_NOSYNC"):
                lg.need(["C"])
                a(f"v_readfirstlane_b32 s36, v{VCV}")
                ex(4)
                a("s_cmp_ge_u32 s36, s47")
                a(f"s_cbranch_scc0 L_cnt_spin{tag}")
                a.label(f"L_cnt_back{tag}")
                kread(); ex(5); cv(0); ex(6); cv(1)
            else:
                kread(); ex(4); ex(5); cv(0); ex(6); cv(1)
            lg.need(["V"])
            if i == 0 and not own and not E("X_NOSYNC"):
                a("s_waitcnt vmcnt(4)")
                a(f"ds_add_u32 v{VCA}, v{VONE}"); lg.issue("A")
            a(pv0); ex(7)
            if i == 2 and not own: a(f"s_add_u32 m0, s21, {((slot+3)&3)*AT_SLOT}")
            ex(8); cv(2)
            if i >= 2: dma1(2*(i-2))
            ex(9); cv(3)
            a(pv1)
            if i == 1 and not own and not E("X_NOSYNC"):
                a(f"ds_read_b32 v{VCV}, v{VCR}"); lg.issue("C")
            if i >= 2: dma1(2*(i-2)+1)
            ex(10); ex(11); cv(4); ex(12); cv(5)
            a(smf); vread(); ex(13); ex(14); cv(6); ex(15)
            if i == 3 and not own:
                a("s_add_u32 s55, s55, s56")
                cv(7)
                a("s_and_b32 s55, s55, s57")
                a("s_add_u32 s47, s47, 4")
            else:
                a("s_nop 0")
                cv(7)
        else:
            if has_qk:
                lg.need(["K"]); a(qk0)
            ex(0); ex(1); ex(2); ex(3)
            if has_qk: a(qk1)
            if i == 2 and not own and not E("X_NOSYNC"):
                lg.need(["C"])
                a(f"v_cmp_gt_u32 vcc, s47, v{VCV}")
                ex(4); ex(5)
                a(f"s_cbranch_vccnz L_cnt_spin{tag}")
                a.label(f"L_cnt_back{tag}")
                kread(); ex(6); ex(7)
            else:
                kread(); ex(4); ex(5); ex(6); ex(7)
            lg.need(["V"])
            if i == 0 and not own and not E("X_NOSYNC"):
                a("s_waitcnt vmcnt(4)")
                a(f"ds_add_u32 v{VCA}, v{VONE}"); lg.issue("A")
            if not nopv: a(pv0)
            ex(8)
            if i == 2 and not own: a(f"s_add_u32 m0, s21, {((slot+3)&3)*AT_SLOT}")
            ex(9)
            if i >= 2: dma1(2*(i-2))
            ex(10); ex(11)
            if not nopv: a(pv1)
            if i == 1 and not own and not E("X_NOSYNC"):
                a(f"ds_read_b32 v{VCV}, v{VCR}"); lg.issue("C")
            if i >= 2: dma1(2*(i-2)+1)
            ex(12); ex(13); ex(14); ex(15)
            if not nopv: a(smf)
            vread()
            if nopv: a("s_nop 0")
            cv(0); cv(1); cv(2)
            if i == 3 and not own: a("s_add_u32 s55, s55, s56")
            cv(3); cv(4)
            if i == 3 and not own: a("s_and_b32 s55, s55, s57")
            cv(5); cv(6)
            if i == 3 and not own: a("s_add_u32 s47, s47, 4")
            cv(7)
    for i in range(4): at_step(i, True, 0)
    stamp(a, 5)
    a("s_cmp_eq_u32 s14, 7")
    a("s_cbranch_scc0 L_at_nopoll")
    if E("PART1", 1):
        a("s_add_u32 s36, s11, 1")
        a("s_lshl_b32 s36, s36, 2")
        a("s_and_b32 s36, s36, 63")
        a("s_sub_u32 s37, 64, s36")
        a("s_mov_b64 s[58:59], 0xfff")
        a("s_lshl_b64 s[48:49], s[58:59], s36")
        a("s_lshr_b64 s[58:59], s[58:59], s37")
        a("s_cmp_eq_u32 s36, 0")
        a("s_cselect_b64 s[58:59], 0, s[58:59]")
        a("s_or_b64 s[48:49], s[48:49], s[58:59]")
        poll(a, "f", 239, 48)
    else:
        poll(a, "f", 239)
    a.label("L_at_nopoll")
    a("s_barrier")
    stamp(a, 6)
    def kvstage(st):
        a(f"s_add_u32 s36, s11, {st}")
        a("s_and_b32 s36, s36, 15")
        a(f"s_add_u32 m0, s21, {st*AT_SLOT}")
        a("s_lshl_b32 s36, s36, 14")
        for q in range(4):
            a(f"buffer_load_dwordx4 v{VD0+q}, s[28:31], s36 offen offset:{q*1024} sc1 lds")
    kvstage(1); kvstage(2)
    a("s_add_u32 s55, s11, 4")
    a("s_and_b32 s55, s55, 15")
    a("s_lshl_b32 s55, s55, 14")
    a("s_mov_b32 s56, 16384"); a("s_mov_b32 s57, 0x3c000")
    a("s_mov_b32 s47, 4")
    a("s_waitcnt vmcnt(4)")
    a("s_barrier")
    if E("PART1", 1):
        a("s_and_b32 s36, s14, 3")
        a("s_cmp_eq_u32 s36, 3")
        a("s_cbranch_scc0 L_at_nopoll2")
        poll(a, "f2", 239)
        a("s_mov_b32 s47, 4")
        a.label("L_at_nopoll2")
    kvstage(3)
    stamp(a, 7)
    a(f"ds_read_b128 {vr(K,4)}, {ldsa(1,0,0)}")
    a(f"ds_read_b128 {vr(K+4,4)}, {ldsa(1,0,1)}")
    a("s_waitcnt lgkmcnt(0)")
    a(f"v_mfma_f32_32x32x16_bf16 {vr(S[0],16)}, {vr(K,4)}, {vr(Q,4)}, 0")
    a(f"v_mfma_f32_32x32x16_bf16 {vr(S[0],16)}, {vr(K+4,4)}, {vr(Q+4,4)}, {vr(S[0],16)}")
    a(f"ds_read_b128 {vr(K,4)}, {ldsa(1,1,0)}")
    a(f"ds_read_b128 {vr(K+4,4)}, {ldsa(1,1,1)}")
    a("s_waitcnt lgkmcnt(0)")
    a("s_nop 7")
    stamp(a, 14)
    dbgt(a, 5, True); dbgt(a, 6)
    lg.q = ["K", "K", "V", "V"]
    a.raw(".p2align 6")
    a.label("L_at_loop")
    for c in range(4):
        slot = (c+1) & 3
        for i in range(4): at_step(i, False, slot, str(c))
        assert lg.q == ["K", "K", "V", "V"], lg.q
        if c == 2:
            a("s_cmp_eq_u32 s47, 64")
            a("s_cbranch_scc1 L_at_tail")
    a("s_cmp_eq_u32 s47, 52")
    a("s_cbranch_scc0 L_at_loop")
    stamp(a, 15)
    a("s_lshl_b32 s39, s11, 7")
    a("s_sub_u32 s36, 0x200000, s39")
    a("s_add_u32 s28, s40, s39"); a("s_addc_u32 s29, s41, 0"); a("s_mov_b32 s30, s36"); a("s_mov_b32 s31, 0x20000")
    a("s_mov_b32 s55, 0"); a("s_mov_b32 s56, 524288"); a("s_mov_b32 s57, -1")
    a("v_lshrrev_b32 v4, 3, v2")
    a("v_lshlrev_b32 v4, 11, v4")
    a("v_and_b32 v5, 7, v2")
    a("v_lshrrev_b32 v6, 4, v2")
    a("v_and_b32 v6, 1, v6")
    a("v_lshlrev_b32 v6, 2, v6")
    a("v_xor_b32 v5, v5, v6")
    a("v_lshlrev_b32 v5, 4, v5")
    a("v_add_u32 v4, v4, v5")
    a("s_lshl_b32 s36, s21, 4")
    a("v_add_u32 v4, s36, v4")
    for q in range(4): a(f"v_add_u32 v{VD0+q}, {q*(16384-1024)}, v4")
    a("s_branch L_at_loop")
    for c in range(4 if not E("X_NOSYNC") else 0):
        a.label(f"L_cnt_spin{c}")
        a("s_mov_b32 s39, 0")
        a.label(f"L_cnt_spin2{c}")
        a(f"ds_read_b32 v{VCV}, v{VCR}")
        a("s_waitcnt lgkmcnt(0)")
        a(f"v_readfirstlane_b32 s36, v{VCV}")
        a("s_add_u32 s39, s39, 1")
        a(f"s_cmp_ge_u32 s39, {POLL_MAX*16}")
        a(f"s_cbranch_scc1 L_cnt_back{c}")
        a("s_cmp_ge_u32 s36, s47")
        a(f"s_cbranch_scc0 L_cnt_spin2{c}")
        a(f"s_branch L_cnt_back{c}")
    a.label("L_at_tail")
    a("s_setprio 0")
    PL = P[1]
    a("s_waitcnt lgkmcnt(0)")
    a(f"v_mfma_f32_32x32x16_bf16 {vr(O,16)}, {vr(V,4)}, {vr(PL,4)}, {vr(O,16)}")
    a(f"v_mfma_f32_32x32x16_bf16 {vr(O,16)}, {vr(V+4,4)}, {vr(PL+4,4)}, {vr(O,16)}")
    a(f"v_smfmac_f32_16x16x64_bf16 {vr(L,4)}, {vr(ONES,4)}, {vr(PL,8)}, v{IDX}")
    stamp(a, 8)
    dbgt(a, 7, True); dbgt(a, 8)
    a("s_nop 8")
    a("s_nop 7")
    a(f"v_add_f32 v{L}, v{L}, v{L+1}")
    a(f"v_mov_b32 v4, {f32bits(2.0**-40)}")
    a(f"v_mov_b32 v5, {f32bits(2.0**40)}")
    a(f"v_cmp_nge_f32 vcc, v{L}, v4")
    a(f"v_cmp_nle_f32 s[44:45], v{L}, v5")
    a("s_or_b64 s[44:45], s[44:45], vcc")
    a(f"v_add_f32 v6, abs(v{O}), abs(v{O+1})")
    a(f"v_add_f32 v7, abs(v{O+2}), abs(v{O+3})")
    for r in range(4, 16, 2):
        a(f"v_add_f32 v6, v6, abs(v{O+r})")
        a(f"v_add_f32 v7, v7, abs(v{O+r+1})")
    a(f"v_mov_b32 v5, {f32bits(2.0**100)}")
    a("v_add_f32 v6, v6, v7")
    a("v_cmp_nlt_f32 vcc, v6, v5")
    a("s_or_b64 s[44:45], s[44:45], vcc")
    a("s_cmp_lg_u64 s[44:45], 0")
    a("s_cbranch_scc1 L_at_slow")
    a.label("L_at_fin")
    a(f"v_rcp_f32 v4, v{L}")
    a("s_nop 0")
    for r in range(16): a(f"v_mul_f32 v{O+r}, v{O+r}, v4")
    for r in range(8): a(f"v_cvt_pk_bf16_f32 v{P[0]+r}, v{O+2*r}, v{O+2*r+1}")
    a("s_lshl_b32 s19, s18, 6")
    a("s_lshl_b32 s36, s17, 1")
    a("s_add_u32 s19, s19, s36")
    a("s_lshl_b32 s19, s19, 10")
    a(f"s_add_u32 s19, s19, {OF_OFF}")
    a(f"buffer_store_dwordx4 {vr(P[0],4)}, v3, s[24:27], s19 offen sc1")
    a(f"buffer_store_dwordx4 {vr(P[0]+4,4)}, v3, s[24:27], s19 offen offset:1024 sc1")
    srd(a, 32, 42, None, 0x400000)
    a(f"s_lshl_b32 s36, s11, {9+D2}")
    a(f"s_lshl_b32 s37, s16, {7+D2}")
    a("s_add_u32 s36, s36, s37")
    a(f"s_lshl_b32 s37, s10, {3+D2}")
    a("s_add_u32 s36, s36, s37")
    a(f"s_lshl_b32 s37, s15, {2+D2}")
    a("s_add_u32 s36, s36, s37")
    a(f"s_add_u32 s36, s36, {G_OFF}")
    a("v_mov_b32 v5, s36")
    a("v_mov_b32 v6, s46")
    a("s_waitcnt vmcnt(0)")
    a("s_mov_b64 exec, 1")
    a("buffer_store_dword v6, v5, s[24:27], 0 offen sc1")
    a("s_mov_b64 exec, -1")
    a("s_barrier")
    a(f"s_add_u32 m0, s21, {3*AT_SLOT}")
    a("s_lshl_b32 s36, s14, 12")
    a(f"s_add_u32 s36, s36, {XCH_OFF}")
    for q in range(4):
        a(f"buffer_load_dwordx4 v{VD0+q}, s[28:31], s55 offen offset:{q*1024} lds")
    a("v_add_u32 v196, s36, v3")
    for r in range(4): a(f"v_mov_b32 v{200+r}, -1")
    a("ds_write_b128 v196, v[200:203] offset:3072")
    a("s_xor_b32 s36, s14, 4")
    a("s_lshl_b32 s36, s36, 12")
    a(f"s_add_u32 s36, s36, {XCH_OFF}")
    a("v_add_u32 v197, s36, v3")
    stamp(a, 9)
    a("v_lshrrev_b32 v5, 5, v2")
    a("v_and_b32 v6, 15, v2")
    a("v_lshrrev_b32 v6, 2, v6")
    a("v_lshlrev_b32 v7, 2, v5")
    a("v_add_u32 v7, v7, v6")
    a("v_lshlrev_b32 v7, 7, v7")
    a("v_lshrrev_b32 v8, 4, v2")
    a("v_and_b32 v8, 1, v8")
    a("v_lshlrev_b32 v8, 1, v8")
    a("v_and_b32 v9, 3, v2")
    a("v_lshrrev_b32 v10, 1, v9")
    a("v_add_u32 v8, v8, v10")
    a("v_lshrrev_b32 v10, 1, v6")
    a("v_lshlrev_b32 v10, 2, v10")
    a("v_xor_b32 v8, v8, v10")
    a("v_lshlrev_b32 v8, 4, v8")
    a("v_add_u32 v7, v7, v8")
    a("v_and_b32 v9, 1, v9")
    a("v_lshlrev_b32 v9, 3, v9")
    a("v_add_u32 v7, v7, v9")
    a("s_lshl_b32 s36, s15, 16")
    a(f"s_add_u32 s36, s36, {WO_LDS}")
    a("v_add_u32 v12, s36, v7")
    a("v_xor_b32 v13, 64, v12")
    ACC = 16
    for r in range(32): a(f"v_mov_b32 v{ACC+r}, 0")
    a(f"s_lshl_b32 s36, s10, {9+D2}")
    a(f"s_lshl_b32 s37, s16, {7+D2}")
    a("s_add_u32 s36, s36, s37")
    a(f"s_lshl_b32 s37, s15, {6+D2}")
    a("s_add_u32 s36, s36, s37")
    a(f"s_add_u32 s36, s36, {G_OFF}")
    a("v_and_b32 v4, 15, v2")
    a(f"v_lshlrev_b32 v4, {FSH}, v4")
    a("v_add_u32 v4, s36, v4")
    OFR = 64
    a("s_lshl_b32 s36, s10, 2")
    a("s_add_u32 s36, s36, s16")
    a("s_lshl_b32 s36, s36, 6")
    a("s_lshl_b32 s37, s15, 5")
    a("s_add_u32 s36, s36, s37")
    a("s_lshl_b32 s36, s36, 10")
    a(f"s_add_u32 s36, s36, {OF_OFF}")
    a("s_and_b32 s50, s11, 7")
    a("s_lshl_b32 s51, s50, 1")
    a("s_sub_u32 s52, 16, s51")
    a("s_mov_b32 s48, 0")
    a("s_mov_b32 s54, 0")
    a("s_mov_b32 s47, 0")
    a("s_mov_b32 s49, 0")
    if E("EARLYPOLL", 0):
        a("buffer_load_dword v5, v4, s[24:27], 0 offen sc1")
        a("s_waitcnt vmcnt(1)")
        a("s_barrier")
    else:
        a("s_waitcnt vmcnt(0) lgkmcnt(0)")
        a("s_barrier")
        a("buffer_load_dword v5, v4, s[24:27], 0 offen sc1")
    WF = [48, 56]
    def og_loads(i):
        a(f"s_add_u32 s53, s50, {i}")
        a("s_and_b32 s53, s53, 7")
        a("s_lshl_b32 s53, s53, 12")
        a("s_add_u32 s53, s53, s36")
        for q in range(4):
            a(f"buffer_load_dwordx4 {vr(OFR+16*i+4*q,4)}, v3, s[24:27], s53 offen offset:{q*1024} sc1")
    def og_mfma(i):
        a(f"s_add_u32 s53, s50, {i}")
        a("s_and_b32 s53, s53, 7")
        a("s_lshl_b32 s53, s53, 13")
        a("v_add_u32 v14, s53, v12")
        a("v_add_u32 v15, s53, v13")
        def wreads(setb, q):
            for ct in range(2):
                for jj in range(2):
                    a(f"ds_read_b64_tr_b16 {vr(setb+4*ct+2*jj,2)}, v{14+ct} offset:{q*2048+jj*1024}")
        def mm(setb, q):
            for ct in range(2):
                a(f"v_mfma_f32_32x32x16_bf16 {vr(ACC+16*ct,16)}, {vr(setb+4*ct,4)}, {vr(OFR+16*i+4*q,4)}, {vr(ACC+16*ct,16)}")
        return wreads, mm
    a.label("L_og_round")
    a("s_waitcnt vmcnt(0)")
    a("s_or_b32 s48, s48, s49")
    a("v_cmp_eq_u32 vcc, s46, v5")
    a("s_add_u32 s47, s47, 1")
    a("s_lshr_b32 s49, vcc_lo, 1")
    a("s_and_b32 s49, s49, vcc_lo")
    a("s_and_b32 s49, s49, 0x5555")
    a("s_lshr_b32 s53, s49, s51")
    a("s_lshl_b32 s49, s49, s52")
    a("s_or_b32 s49, s49, s53")
    a("s_and_b32 s49, s49, 0x5555")
    a(f"s_cmp_ge_u32 s47, {POLL_MAX}")
    a("s_cselect_b32 s49, 0x5555, s49")
    a("s_andn2_b32 s49, s49, s48")
    if E("DIAG3"):
        a("s_cmp_eq_u32 s47, 1")
        a("s_cbranch_scc0 L_d3a")
        stamp(a, 2)
        a("s_mov_b32 s70, s49")
        a.label("L_d3a")
        a("s_cmp_eq_u32 s47, 2")
        a("s_cbranch_scc0 L_d3b")
        stamp(a, 3)
        a("s_mov_b32 s72, s49")
        a.label("L_d3b")
        a("s_mov_b32 s74, s47")
    stamp(a, 10)
    a("s_cmp_eq_u32 s49, 0x5555")
    a("s_cbranch_scc1 L_og_fast")
    for i in range(8):
        a(f"s_bitcmp1_b32 s49, {2*i}")
        a(f"s_cbranch_scc0 L_og_nl{i}")
        og_loads(i)
        a.label(f"L_og_nl{i}")
    a("s_or_b32 s53, s48, s49")
    a("s_cmp_eq_u32 s53, 0x5555")
    a("s_cbranch_scc1 L_og_nopoll")
    a("s_cmp_eq_u32 s49, 0")
    a("s_cbranch_scc0 L_og_poll")
    a("s_sleep 4")
    a.label("L_og_poll")
    a("buffer_load_dword v5, v4, s[24:27], 0 offen sc1")
    a.label("L_og_nopoll")
    for i in range(8):
        a(f"s_bitcmp1_b32 s54, {2*i}")
        a(f"s_cbranch_scc1 L_og_nm{i}")
        a(f"s_bitcmp1_b32 s48, {2*i}")
        a(f"s_cbranch_scc0 L_og_round")
        a(f"s_bitset1_b32 s54, {2*i}")
        wreads, mm = og_mfma(i)
        wreads(WF[0], 0); wreads(WF[1], 1)
        a("s_waitcnt lgkmcnt(4)"); mm(WF[0], 0)
        wreads(WF[0], 2)
        a("s_waitcnt lgkmcnt(4)"); mm(WF[1], 1)
        wreads(WF[1], 3)
        a("s_waitcnt lgkmcnt(4)"); mm(WF[0], 2)
        a("s_waitcnt lgkmcnt(0)"); mm(WF[1], 3)
        a.label(f"L_og_nm{i}")
    a("s_branch L_og_done")
    a.label("L_og_fast")
    for i in range(8): og_loads(i)
    for i in range(8):
        wreads, mm = og_mfma(i)
        wreads(WF[0], 0); wreads(WF[1], 1)
        a(f"s_waitcnt vmcnt({28-4*i+2}) lgkmcnt(4)"); mm(WF[0], 0)
        wreads(WF[0], 2)
        a("s_waitcnt lgkmcnt(4)"); mm(WF[1], 1)
        wreads(WF[1], 3)
        a(f"s_waitcnt vmcnt({28-4*i}) lgkmcnt(4)"); mm(WF[0], 2)
        a("s_waitcnt lgkmcnt(0)"); mm(WF[1], 3)
    a.label("L_og_done")
    stamp(a, 11)
    a("s_nop 11")
    a("s_cmp_eq_u32 s15, 0")
    a("s_cbranch_scc1 L_op_kh0")
    for q in range(4): a(f"ds_write_b128 v196, {vr(ACC+4*q,4)} offset:{q*1024}")
    for r in range(16): a(f"v_mov_b32 v{48+r}, v{ACC+16+r}")
    a("s_branch L_op_x")
    a.label("L_op_kh0")
    for q in range(4): a(f"ds_write_b128 v196, {vr(ACC+16+4*q,4)} offset:{q*1024}")
    for r in range(16): a(f"v_mov_b32 v{48+r}, v{ACC+r}")
    a.label("L_op_x")
    a("s_mov_b32 s47, 0")
    a.label("L_op_spin")
    a(f"ds_read_b128 {vr(76,4)}, v197 offset:3072")
    a("s_add_u32 s47, s47, 1")
    a("s_waitcnt lgkmcnt(0)")
    a("v_cmp_eq_u32 vcc, -1, v76")
    a(f"s_cmp_ge_u32 s47, {POLL_MAX*16}")
    a("s_cbranch_scc1 L_op_go")
    a("s_cmp_eq_u64 vcc, 0")
    a("s_cbranch_scc0 L_op_spin")
    a.label("L_op_go")
    for q in range(3): a(f"ds_read_b128 {vr(64+4*q,4)}, v197 offset:{q*1024}")
    a("s_waitcnt lgkmcnt(0)")
    for r in range(16): a(f"v_add_f32 v{48+r}, v{48+r}, v{64+r}")
    for r in range(8): a(f"v_cvt_pk_bf16_f32 v{64+r}, v{48+2*r}, v{48+2*r+1}")
    a("v_and_b32 v5, 31, v2")
    a("v_lshlrev_b32 v5, 11, v5")
    a("v_lshrrev_b32 v6, 5, v2")
    a("v_lshlrev_b32 v6, 4, v6")
    a("v_add_u32 v5, v5, v6")
    for g in (0, 2):
        a(f"v_permlane32_swap_b32 v{64+2*g}, v{64+2*g+2}")
        a(f"v_permlane32_swap_b32 v{64+2*g+1}, v{64+2*g+3}")
    a("s_lshl_b32 s36, s10, 2")
    a("s_add_u32 s36, s36, s16")
    a("s_lshl_b32 s36, s36, 16")
    a("s_lshl_b32 s37, s11, 7")
    a("s_add_u32 s36, s36, s37")
    a("s_lshl_b32 s37, s15, 6")
    a("s_add_u32 s36, s36, s37")
    a(f"buffer_store_dwordx4 {vr(64,4)}, v5, s[32:35], s36 offen")
    a(f"buffer_store_dwordx4 {vr(68,4)}, v5, s[32:35], s36 offen offset:32")
    if STAMP:
        a("s_waitcnt vmcnt(0)")
        stamp(a, 12); stamp_rt(a, 13); stamp_store(a, 16)
    if DBGT:
        a("s_waitcnt vmcnt(0)")
        dbgt(a, 11, True); dbgt(a, 12)
    a("s_endpgm")
    if QPF:
        a.label("L_qpf_out")
        qpf("c")
        a("s_branch L_qpf_back")
    a.label("L_flag_out")
    a("s_waitcnt vmcnt(0)")
    a(f"s_lshl_b32 s36, s10, {8+D2}")
    a(f"s_lshl_b32 s39, s11, {4+D2}")
    a("s_add_u32 s36, s36, s39")
    a(f"s_lshl_b32 s39, s14, {2+D2}")
    a("s_add_u32 s36, s36, s39")
    a(f"s_add_u32 s36, s36, {FLG_OFF}")
    a("v_mov_b32 v4, s36")
    a("v_mov_b32 v5, s46")
    a("s_mov_b64 exec, 1")
    a("buffer_store_dword v5, v4, s[24:27], 0 offen sc1")
    a("s_mov_b64 exec, -1")
    a("s_branch L_flag_back")
    a.label("L_at_slow")
    X = S[0]; PX = P[0]
    a(f"v_mov_b32 v{M}, 0xff800000")
    a(f"v_mov_b32 v{L}, 0")
    for r in range(16): a(f"v_mov_b32 v{O+r}, 0")
    a("s_lshl_b32 s36, s17, 18")
    a("s_mov_b32 s47, 0")
    a.label("L_at_slow_loop")
    a(f"buffer_load_dwordx4 {vr(K,4)}, v3, s[24:27], s36 offen sc1")
    a(f"buffer_load_dwordx4 {vr(K+4,4)}, v3, s[24:27], s36 offen offset:1024 sc1")
    a(f"buffer_load_dwordx4 {vr(V,4)}, v3, s[24:27], s36 offen offset:2048 sc1")
    a(f"buffer_load_dwordx4 {vr(V+4,4)}, v3, s[24:27], s36 offen offset:3072 sc1")
    a("s_waitcnt vmcnt(0)")
    a(f"v_mfma_f32_32x32x16_bf16 {vr(X,16)}, {vr(K,4)}, {vr(Q,4)}, 0")
    a(f"v_mfma_f32_32x32x16_bf16 {vr(X,16)}, {vr(K+4,4)}, {vr(Q+4,4)}, {vr(X,16)}")
    a("s_nop 15"); a("s_nop 3")
    a(f"v_max_f32 v4, v{X}, v{X+1}")
    for r in range(2, 16): a(f"v_max_f32 v4, v4, v{X+r}")
    a("v_mov_b32 v5, v4")
    a("s_nop 1")
    a("v_permlane32_swap_b32 v4, v5")
    a("s_nop 1")
    a("v_max_f32 v4, v4, v5")
    a(f"v_max_f32 v4, v4, v{M}")
    a(f"v_sub_f32 v5, v{M}, v4")
    a("v_exp_f32 v5, v5")
    a(f"v_mov_b32 v{M}, v4")
    for r in range(16): a(f"v_sub_f32 v{X+r}, v{X+r}, v4")
    for r in range(16): a(f"v_exp_f32 v{X+r}, v{X+r}")
    a("s_nop 0")
    for r in range(8): a(f"v_cvt_pk_bf16_f32 v{PX+r}, v{X+2*r}, v{X+2*r+1}")
    a(f"v_mul_f32 v{L}, v{L}, v5")
    for r in range(16): a(f"v_mul_f32 v{O+r}, v{O+r}, v5")
    for r in range(8):
        a(f"v_lshlrev_b32 v6, 16, v{PX+r}")
        a(f"v_and_b32 v7, 0xffff0000, v{PX+r}")
        a(f"v_add_f32 v{L}, v{L}, v6")
        a(f"v_add_f32 v{L}, v{L}, v7")
    a("s_nop 1")
    a(f"v_mfma_f32_32x32x16_bf16 {vr(O,16)}, {vr(V,4)}, {vr(PX,4)}, {vr(O,16)}")
    a(f"v_mfma_f32_32x32x16_bf16 {vr(O,16)}, {vr(V+4,4)}, {vr(PX+4,4)}, {vr(O,16)}")
    a("s_nop 15"); a("s_nop 3")
    a("s_add_u32 s36, s36, 4096")
    a("s_add_u32 s47, s47, 1")
    a("s_cmp_lt_u32 s47, 64")
    a("s_cbranch_scc1 L_at_slow_loop")
    a(f"v_mov_b32 v5, v{L}")
    a(f"v_mov_b32 v4, v{L}")
    a("s_nop 1")
    a("v_permlane32_swap_b32 v4, v5")
    a("s_nop 1")
    a(f"v_add_f32 v{L}, v4, v5")
    a("s_branch L_at_fin")
    a.label("L_end")
    a("s_endpgm")
    return a.text()

HEADER = """; Fused multi-head attention: QKV projection -> softmax attention -> output projection, one persistent launch.
; @launch grid=(256,1,1) block=(512,1,1) lds=163840
"""
def main(out):
    vg = 256 if (STAMP or DBGT) else 244
    sg = 96 if (STAMP or DBGT) else 64
    txt = HEADER + '.amdgcn_target "amdgcn-amd-amdhsa--gfx950"\n.text\n' + gen()
    txt += f""".section .rodata,"a"
.p2align 6
.amdhsa_kernel {KNAME}
  .amdhsa_next_free_vgpr {vg}
  .amdhsa_next_free_sgpr {sg}
  .amdhsa_accum_offset {(vg+3)//4*4}
  .amdhsa_group_segment_fixed_size 0
  .amdhsa_kernarg_size 48
  .amdhsa_user_sgpr_count 2
  .amdhsa_user_sgpr_kernarg_segment_ptr 1
  .amdhsa_system_sgpr_workgroup_id_x 1
.end_amdhsa_kernel
"""
    open(out, "w").write(txt)
if __name__ == "__main__":
    main(sys.argv[1] if len(sys.argv) > 1 else "cdna_kernels/%s.s" % NAME)
```

```python
import sys, os, struct
NAME = "standalone__softmax_full_mha__prompt"
KNAME = NAME + "_kernel"
E = lambda k, d=0: int(os.environ.get(k, str(d)))
STAMP = E("STAMP")
KVSC = "" if E("PLAINKV", 0) else " sc1"
OLSC = "" if E("PLAINO", 0) else " sc1"
STAMP_OFF = 32 << 20

class A:
    def __init__(self): self.l = []
    def __call__(self, s): self.l.append("    " + s)
    def label(self, s): self.l.append(s + ":")
    def raw(self, s): self.l.append(s)
    def text(self): return "\n".join(self.l) + "\n"
def vr(b, n=1): return f"v{b}" if n == 1 else f"v[{b}:{b+n-1}]"
def f32bits(x): return struct.unpack('<I', struct.pack('<f', x))[0]

class Lgkm:
    def __init__(self, a): self.a = a; self.q = []
    def issue(self, tag): self.q.append(tag)
    def need(self, tags):
        idx = -1
        for i, t in enumerate(self.q):
            if t in tags: idx = i
        if idx < 0: return
        n = len(self.q) - 1 - idx
        assert n <= 15
        self.a(f"s_waitcnt lgkmcnt({n})")
        self.q = self.q[idx+1:]
    def all(self):
        if self.q:
            self.a("s_waitcnt lgkmcnt(0)")
            self.q = []

KVF_OFF = 0
OF_OFF  = 8 << 20
FSH = E("FSH", 7)
D2 = FSH - 2
G_OFF = (12 << 20) + (1024 << FSH)
FLG_OFF = 12 << 20
WS_USED = 13 << 20
QSCALE = 0.17677669529663687 * 1.4426950408889634
G1_NSLOT = 4; G1_SLOT = 40960
AT_SLOT = 32768
QX_OFF = 131072
AT_R = 4
WO_LDS = 0
CNT_OFF = 147456 + 64
SCR_OFF = 147456 + 1024
XCH_OFF = 131072
EP_OFF = 147456
POLL_MAX = 40000

def stamp(a, k):
    if STAMP:
        a(f"s_memtime s[{60+2*k}:{61+2*k}]"); a("s_waitcnt lgkmcnt(0)")
def stamp_rt(a, k):
    if STAMP:
        a(f"s_memrealtime s[{60+2*k}:{61+2*k}]"); a("s_waitcnt lgkmcnt(0)")
def stamp_store(a, n):
    if STAMP:
        a(f"s_lshl_b32 s58, s2, 3"); a(f"s_add_u32 s58, s58, s14"); a(f"s_lshl_b32 s58, s58, 7")
        a(f"s_add_u32 s58, s58, {STAMP_OFF}")
        a(f"s_add_u32 s56, s8, s58"); a(f"s_addc_u32 s57, s9, 0")
        a("v_mov_b32 v254, 0")
        for k in range(n):
            a(f"v_mov_b32 v255, s{60+2*k}")
            a(f"global_store_dword v254, v255, s[56:57] offset:{4*k}")
        a("s_waitcnt vmcnt(0)")

DBGT = E("DBGT")
DSLOT = {1:0, 13:1, 3:2, 5:3, 7:4, 9:5, 11:6}
def dbgt(a, slot, neg=False):
    if DBGT and neg:
        i = DSLOT[slot]
        a(f"s_memrealtime s[{60+2*i}:{61+2*i}]")
        a("s_waitcnt lgkmcnt(0)")
        if slot == 11:
            a(f"s_and_b32 s92, s2, 0x7f")
            a("s_cmp_eq_u32 s92, 0")
            a("s_cbranch_scc0 L_dbg_skip")
            a("s_cmp_eq_u32 s14, 4")
            a("s_cbranch_scc0 L_dbg_skip")
            a("s_lshr_b32 s92, s2, 7")
            a("s_mul_i32 s92, s92, 28")
            a("v_mov_b32 v251, s92")
            for k in range(7):
                a(f"v_mov_b32 v250, s{60+2*k}")
                a(f"global_store_dword v251, v250, s[90:91] offset:{4+4*k}")
            a.label("L_dbg_skip")

def srd(a, d, plo, off, nrec):
    if off is None:
        a(f"s_mov_b32 s{d}, s{plo}"); a(f"s_mov_b32 s{d+1}, s{plo+1}")
    else:
        a(f"s_add_u32 s{d}, s{plo}, {off}"); a(f"s_addc_u32 s{d+1}, s{plo+1}, 0")
    a(f"s_mov_b32 s{d+2}, {nrec}"); a(f"s_mov_b32 s{d+3}, 0x20000")

def poll(a, name, voff, mask=None):
    a(f"s_mov_b32 s47, 0")
    a.label(f"L_poll_{name}")
    a(f"buffer_load_dword v5, v{voff}, s[24:27], 0 offen sc1")
    a("s_waitcnt vmcnt(0)")
    a("v_cmp_ne_u32 vcc, s46, v5")
    a("s_add_u32 s47, s47, 1")
    if mask is not None: a(f"s_and_b64 vcc, vcc, s[{mask}:{mask+1}]")
    a("s_cmp_eq_u64 vcc, 0")
    a(f"s_cbranch_scc1 L_poll_{name}_done")
    a(f"s_cmp_ge_u32 s47, {POLL_MAX}")
    a(f"s_cbranch_scc1 L_poll_{name}_done")
    a("s_sleep 1")
    a(f"s_branch L_poll_{name}")
    a.label(f"L_poll_{name}_done")

def gen():
    a = A()
    a.raw(f".globl {KNAME}\n.p2align 8\n.type {KNAME},@function\n{KNAME}:")
    a("s_cmp_ge_u32 s2, 256")
    a("s_cbranch_scc1 L_end")
    a("s_load_dwordx4 s[4:7], s[0:1], 0")
    a("s_load_dwordx2 s[8:9], s[0:1], 40")
    a("s_load_dwordx4 s[40:43], s[0:1], 16")
    a("s_load_dwordx2 s[44:45], s[0:1], 32")
    a("s_and_b32 s12, s2, 7")
    a("s_lshr_b32 s11, s2, 3")
    a("s_mov_b32 s13, 0")
    if E("MAP", 2) == 0:
        a("s_lshr_b32 s10, s12, 1")
        a("s_lshl_b32 s10, s10, 2")
        a("s_and_b32 s16, s11, 3")
        a("s_add_u32 s10, s10, s16")
        a("s_lshr_b32 s11, s11, 2")
        a("s_and_b32 s12, s12, 1")
        a("s_lshl_b32 s12, s12, 3")
        a("s_add_u32 s11, s11, s12")
    elif E("MAP", 2) == 2:
        a("s_lshl_b32 s10, s12, 1")
        a("s_and_b32 s16, s11, 1")
        a("s_add_u32 s10, s10, s16")
        a("s_lshr_b32 s11, s11, 1")
    else:
        a("s_and_b32 s10, s12, 1")
        a("s_lshl_b32 s10, s10, 3")
        a("s_and_b32 s16, s11, 7")
        a("s_add_u32 s10, s10, s16")
        a("s_lshr_b32 s11, s11, 3")
        a("s_lshr_b32 s12, s12, 1")
        a("s_lshl_b32 s12, s12, 2")
        a("s_add_u32 s11, s11, s12")
    a("v_lshrrev_b32 v1, 6, v0")
    a("v_and_b32 v2, 63, v0")
    a("v_lshlrev_b32 v3, 4, v2")
    a("v_readfirstlane_b32 s14, v1")
    a("s_waitcnt lgkmcnt(0)")
    stamp_rt(a, 0); stamp(a, 1)
    if DBGT:
        a("s_mov_b32 s90, s44"); a("s_mov_b32 s91, s45")
    dbgt(a, 1, True); dbgt(a, 2)
    srd(a, 24, 8, None, WS_USED)
    ONES = 224; IDX = 228; VLO = 229; VHI = 230; VONE = 231; VCA = 232; VCR = 233; VCV = 234; VD0 = 235; VB = VLO
    def at_consts():
        a("s_lshr_b32 s50, s14, 2")
        a("s_and_b32 s51, s14, 3")
        a("s_lshl_b32 s52, s50, 12")
        a(f"v_add_u32 v{VLO}, s52, v3")
        a(f"v_add_u32 v{VHI}, 65536, v{VLO}")
        a("v_and_b32 v4, 6, v2")
        a("v_mov_b32 v5, 0x3f803f80")
        a("v_cmp_eq_u32 vcc, 0, v4")
        a("s_lshl_b32 s52, s51, 12")
        a(f"v_mov_b32 v{VONE}, 1")
        a(f"v_cndmask_b32 v{ONES}, 0, v5, vcc")
        a(f"v_cndmask_b32 v{ONES+1}, 0, v5, vcc")
        a("v_cmp_eq_u32 vcc, 4, v4")
        for q in range(2): a(f"v_add_u32 v{VD0+q}, s52, v3")
        a(f"v_cndmask_b32 v{ONES+2}, 0, v5, vcc")
        a(f"v_cndmask_b32 v{ONES+3}, 0, v5, vcc")
        a("v_and_b32 v4, 1, v2")
        a("v_mov_b32 v5, 0x44444444")
        a("v_mov_b32 v7, 0xeeeeeeee")
        a("v_cmp_eq_u32 vcc, 0, v4")
        for q in range(2, 4): a(f"v_add_u32 v{VD0+q}, s52, v3")
        a(f"v_cndmask_b32 v{IDX}, v7, v5, vcc")
        a("s_lshl_b32 s52, s50, 2")
        a(f"s_add_u32 s52, s52, {CNT_OFF}")
        a(f"v_mov_b32 v{VCR}, s52")
        a("s_lshl_b32 s52, s14, 8")
        a(f"s_add_u32 s52, s52, {SCR_OFF}")
        a("v_lshlrev_b32 v4, 2, v2")
        a(f"v_add_u32 v{VCA}, s52, v4")
        a("v_cmp_eq_u32 vcc, 0, v2")
        a(f"s_lshl_b32 s52, s10, {8+D2}")
        a(f"s_add_u32 s52, s52, {FLG_OFF}")
        a(f"v_cndmask_b32 v{VCA}, v{VCA}, v{VCR}, vcc")
        a(f"v_lshlrev_b32 v239, {FSH}, v2")
        a("v_add_u32 v239, s52, v239")
    a("s_cmp_lt_u32 s14, 4")
    a("s_cbranch_scc1 L_g1_compute")
    a("s_sub_u32 s15, s14, 4")
    a("s_lshl_b32 s16, s11, 18")
    a("s_sub_u32 s17, 0x400000, s16")
    a("s_add_u32 s28, s4, s16"); a("s_addc_u32 s29, s5, 0"); a("s_mov_b32 s30, s17"); a("s_mov_b32 s31, 0x20000")
    a("s_lshl_b32 s16, s10, 7")
    a("s_sub_u32 s17, 0x600000, s16")
    a("s_add_u32 s32, s6, s16"); a("s_addc_u32 s33, s7, 0"); a("s_mov_b32 s34, s17"); a("s_mov_b32 s35, 0x20000")
    a("v_lshrrev_b32 v4, 3, v2")
    a("v_lshlrev_b32 v5, 11, v4")
    a("v_and_b32 v6, 7, v2")
    a("v_lshrrev_b32 v7, 4, v2")
    a("v_xor_b32 v8, v6, v7")
    a("v_lshlrev_b32 v8, 4, v8")
    a("v_add_u32 v5, v5, v8")
    a("s_lshl_b32 s16, s15, 16")
    a("v_add_u32 v10, s16, v5")
    a("v_xor_b32 v11, 64, v10")
    a("v_mul_u32_u24 v5, 6144, v4")
    a("v_and_b32 v7, 1, v7")
    a("v_lshlrev_b32 v7, 2, v7")
    a("v_xor_b32 v8, v6, v7")
    a("v_lshlrev_b32 v8, 4, v8")
    a("v_add_u32 v5, v5, v8")
    a("s_mul_i32 s16, s15, 98304")
    a("v_add_u32 v12, s16, v5")
    a("s_lshl_b32 s18, s15, 12")
    a("s_lshl_b32 s19, s15, 11")
    a("s_add_u32 s19, s19, 16384")
    a("s_mov_b32 s20, s13")
    a("s_mov_b32 s36, 0")
    if E("X0PF", 0):
        a("s_and_b32 s36, s10, 1")
        a("s_lshl_b32 s36, s36, 6")
        a("v_add_u32 v13, s36, v2")
        a("v_lshlrev_b32 v13, 11, v13")
        a("s_lshl_b32 s36, s15, 7")
        a("buffer_load_dword v16, v13, s[28:31], s36 offen")
        a("s_mov_b32 s36, 0")
        a("s_waitcnt vmcnt(0)")
    first = [True]
    XPF = E("XPF", 0)
    NV = 11 if XPF else 10
    if XPF:
        a("v_and_b32 v13, 15, v2")
        a("s_and_b32 s36, s10, 1")
        a("s_lshl_b32 s36, s36, 2")
        a("s_add_u32 s36, s36, s15")
        a("s_lshl_b32 s36, s36, 4")
        a("v_add_u32 v13, s36, v13")
        a("v_lshlrev_b32 v13, 11, v13")
        a("s_mov_b32 s36, 0")
    if E("DIAG1"): stamp(a, 4)
    def issue_stage():
        a("s_lshl_b32 s21, s20, 7")
        a("s_mul_i32 s22, s20, 393216")
        a("s_add_u32 s37, s36, s18")
        a("s_add_u32 s39, s36, s19")
        for i in range(4):
            a(f"s_add_u32 m0, s37, {i*1024}")
            a(f"s_add_u32 s38, s21, {i*16384}")
            a(f"buffer_load_dwordx4 v{10+(i&1)}, s[28:31], s38 offen lds")
            if E("DIAG1") and first[0] and i in (0, 3): stamp(a, 5 if i == 0 else 6)
        for t in range(3):
            for kb in range(2):
                a(f"s_add_u32 m0, s39, {t*8192+kb*1024}")
                a(f"s_add_u32 s38, s22, {t*2048+kb*49152}")
                a(f"buffer_load_dwordx4 v12, s[32:35], s38 offen lds")
                if E("DIAG1") and first[0] and kb == 0 and t == 0: stamp(a, 7)
        first[0] = False
        if XPF:
            a(f"s_add_u32 s38, s20, {XPF}")
            a("s_lshl_b32 s37, s38, 7")
            a("s_cmp_lt_u32 s38, 16")
            a("s_cselect_b32 s38, s37, 0x7ff00000")
            a("buffer_load_dword v16, v13, s[28:31], s38 offen")
        a("s_add_u32 s20, s20, 1")
        a("s_and_b32 s20, s20, 15")
        a(f"s_add_u32 s36, s36, {G1_SLOT}")
        a(f"s_cmp_eq_u32 s36, {G1_SLOT*G1_NSLOT}")
        a("s_cselect_b32 s36, 0, s36")
    issue_stage()
    stamp(a, 2)
    issue_stage()
    a(f"s_waitcnt vmcnt({NV})")
    stamp(a, 3)
    a("s_barrier")
    if E("DIAG1"):
        a("s_waitcnt vmcnt(0)"); stamp(a, 8); stamp_rt(a, 13); stamp_store(a, 16); a("s_endpgm")
    dbgt(a, 13, True); dbgt(a, 14)
    LA = E("LA", 3)
    if LA == 3:
        issue_stage()
        a("s_mov_b32 s23, 0")
        a.label("L_g1_ldloop")
        a(f"s_waitcnt vmcnt({NV})")
        a("s_barrier")
        issue_stage()
        a("s_add_u32 s23, s23, 1")
        a("s_cmp_lt_u32 s23, 13")
        a("s_cbranch_scc1 L_g1_ldloop")
        for k in range(3):
            a(f"s_waitcnt vmcnt({NV if k == 0 else 0})")
            a("s_barrier")
    else:
        issue_stage(); issue_stage()
        for k in range(3):
            a(f"s_waitcnt vmcnt({2*NV})")
            a("s_barrier")
            issue_stage()
        a("s_mov_b32 s23, 3")
        a.label("L_g1_ldloop")
        a(f"s_waitcnt vmcnt({NV*(G1_NSLOT-2)})")
        a("s_barrier")
        issue_stage()
        a("s_add_u32 s23, s23, 1")
        a(f"s_cmp_lt_u32 s23, {16-G1_NSLOT}")
        a("s_cbranch_scc1 L_g1_ldloop")
        for k in range(G1_NSLOT):
            a(f"s_waitcnt vmcnt({NV*max(0, G1_NSLOT-2-k)})")
            a("s_barrier")
    if E("DIAG5"): a("s_endpgm")
    at_consts()
    a("s_branch L_g1_done")
    a.label("L_g1_compute")
    ACC = 128; SETS = [64, 84]; XA = 104; WA = 108
    QPF = E("QPF", 1)
    NSH = {2: 16, 0: 8, 1: 4}[E("MAP", 2)]
    def qpf(tag):
        a("s_cmp_eq_u32 s14, 3")
        a(f"s_cbranch_scc1 L_qpf_x{tag}")
        a("s_cmp_eq_u32 s14, 0")
        a(f"s_cbranch_scc0 L_qpf_done{tag}")
        a("global_load_dword v16, v14, s[6:7]")
        a("v_add_u32 v14, 1572864, v14")
        if NSH == 8:
            a("global_load_dword v16, v15, s[6:7]")
            a("v_add_u32 v15, 1572864, v15")
        a(f"s_branch L_qpf_done{tag}")
        a.label(f"L_qpf_x{tag}")
        a("global_load_dwordx4 v[16:19], v14, s[4:5]")
        a("v_add_u32 v13, 4096, v14")
        a("global_load_dwordx4 v[16:19], v15, s[4:5]")
        a("global_load_dwordx4 v[16:19], v13, s[4:5]")
        a("v_add_u32 v13, 4096, v15")
        a("v_add_u32 v14, 512, v14")
        a("global_load_dwordx4 v[16:19], v13, s[4:5]")
        a("v_add_u32 v15, 512, v15")
        a.label(f"L_qpf_done{tag}")
    if QPF:
        a("s_cmp_eq_u32 s14, 3")
        a("s_cbranch_scc1 L_qpf_setx")
        def wline(dst, lane0, nl):
            a(f"v_min_u32 v{dst}, {nl-1}, v2")
            a(f"s_and_b32 s16, s11, {NSH-1}")
            a(f"s_mul_i32 s16, s16, {768//NSH}")
            a(f"s_add_u32 s16, s16, {lane0}")
            a(f"v_add_u32 v{dst}, s16, v{dst}")
            a("s_mov_b32 s17, 0x5556")
            a(f"v_mul_u32_u24 v12, s17, v{dst}")
            a("v_lshrrev_b32 v12, 16, v12")
            a("v_mul_u32_u24 v13, 3, v12")
            a(f"v_sub_u32 v13, v{dst}, v13")
            a(f"v_mul_u32_u24 v{dst}, 6144, v12")
            a("v_lshlrev_b32 v13, 11, v13")
            a(f"v_add_u32 v{dst}, v{dst}, v13")
            a("s_lshl_b32 s16, s10, 7")
            a(f"v_add_u32 v{dst}, s16, v{dst}")
        if NSH == 16:
            wline(14, 0, 48); a("v_mov_b32 v15, v14")
        else:
            wline(14, 0, 64); wline(15, 64, 32)
        a("s_branch L_qpf_set")
        a.label("L_qpf_setx")
        a("v_lshrrev_b32 v14, 5, v2")
        a("v_lshlrev_b32 v14, 11, v14")
        a("v_and_b32 v15, 31, v2")
        a("v_lshlrev_b32 v15, 4, v15")
        a("v_add_u32 v14, v14, v15")
        a("s_lshl_b32 s16, s2, 14")
        a("v_add_u32 v14, s16, v14")
        a("v_add_u32 v15, 8192, v14")
        a.label("L_qpf_set")
        qpf("a")
    a("s_cmp_eq_u32 s14, 0")
    a("s_cbranch_scc0 L_nocas")
    a("v_mov_b32 v243, 0")
    a("s_cmp_eq_u32 s2, 0")
    a("s_cbranch_scc0 L_nocas")
    a("s_memrealtime s[16:17]")
    a("s_waitcnt lgkmcnt(0)")
    a("s_or_b32 s16, s16, 1")
    a("v_mov_b32 v240, s16")
    a("s_mov_b64 exec, 1")
    a("global_store_dword v243, v240, s[44:45] sc1")
    a("s_mov_b64 exec, -1")
    a.label("L_nocas")
    a("s_lshl_b32 s16, s2, 13")
    a("s_lshl_b32 s17, s14, 11")
    a("s_add_u32 s16, s16, s17")
    a("v_add_u32 v4, s16, v3")
    a("global_load_dwordx4 v[16:19], v4, s[40:41]")
    a("global_load_dwordx4 v[16:19], v4, s[40:41] offset:1024")
    a("s_getpc_b64 s[16:17]")
    a.label("L_pc")
    a("s_sub_u32 s16, s16, L_pc-" + KNAME)
    a("s_subb_u32 s17, s17, 0")
    a("v_lshlrev_b32 v4, 7, v2")
    a("s_lshl_b32 s18, s14, 13")
    a("v_add_u32 v4, s18, v4")
    a("v_cmp_gt_u32 vcc, L_end-" + KNAME + ", v4")
    a("s_and_saveexec_b64 s[18:19], vcc")
    a("s_cbranch_execz L_nocode")
    a("global_load_dword v16, v4, s[16:17]")
    a.label("L_nocode")
    a("s_mov_b64 exec, s[18:19]")
    a("s_lshr_b32 s15, s14, 1")
    a("s_and_b32 s16, s14, 1")
    a("v_and_b32 v4, 31, v2")
    a("s_lshl_b32 s17, s15, 6")
    a("v_add_u32 v4, s17, v4")
    a("v_lshlrev_b32 v4, 7, v4")
    a("v_lshrrev_b32 v5, 1, v2")
    a("v_and_b32 v5, 7, v5")
    a("v_lshrrev_b32 v6, 5, v2")
    a("v_xor_b32 v5, v5, v6")
    for ks in range(4):
        a(f"v_xor_b32 v7, {2*ks}, v5")
        a(f"v_lshlrev_b32 v7, 4, v7")
        a(f"v_add_u32 v{XA+ks}, v4, v7")
    a("v_and_b32 v7, 15, v2")
    a("v_lshrrev_b32 v7, 2, v7")
    a("v_lshlrev_b32 v8, 3, v6")
    a("v_add_u32 v8, v8, v7")
    a("v_lshlrev_b32 v8, 7, v8")
    a("v_lshrrev_b32 v9, 4, v2")
    a("v_and_b32 v9, 1, v9")
    a("v_lshlrev_b32 v9, 1, v9")
    a("v_and_b32 v10, 3, v2")
    a("v_lshrrev_b32 v11, 1, v10")
    a("v_add_u32 v9, v9, v11")
    a("s_lshl_b32 s17, s16, 2")
    a("v_add_u32 v9, s17, v9")
    a("v_lshrrev_b32 v11, 1, v7")
    a("v_lshlrev_b32 v11, 2, v11")
    a("v_xor_b32 v9, v9, v11")
    a("v_lshlrev_b32 v9, 4, v9")
    a("v_add_u32 v8, v8, v9")
    a("v_and_b32 v10, 1, v10")
    a("v_lshlrev_b32 v10, 3, v10")
    a("v_add_u32 v8, v8, v10")
    a(f"v_add_u32 v{WA}, 16384, v8")
    for r in range(96): a(f"v_mov_b32 v{ACC+r}, 0")
    if E("PREF", 0):
        a("s_lshl_b32 s19, s2, 14")
        a("s_lshl_b32 s17, s14, 12")
        a("s_add_u32 s19, s19, s17")
        a("v_add_u32 v4, s19, v3")
        for q in range(4): a(f"global_load_dwordx4 v[{16+4*q}:{19+4*q}], v4, s[4:5] offset:{q*1024}")
        a("s_mul_i32 s19, s2, 24576")
        a("s_mul_i32 s17, s14, 6144")
        a("s_add_u32 s19, s19, s17")
        a("v_add_u32 v4, s19, v3")
        for q in range(4): a(f"global_load_dwordx4 v[{32+4*q}:{35+4*q}], v4, s[6:7] offset:{q*1024}")
        a("v_add_u32 v4, 4096, v4")
        for q in range(2): a(f"global_load_dwordx4 v[{48+4*q}:{51+4*q}], v4, s[6:7] offset:{q*1024}")
    at_consts()
    a("s_lshl_b32 s17, s10, 1")
    a("s_add_u32 s17, s17, s16")
    a("s_lshl_b32 s19, s11, 2")
    a("s_lshl_b32 s20, s15, 1")
    a("s_add_u32 s19, s19, s20")
    a("s_lshl_b32 s20, s17, 6")
    a("s_add_u32 s20, s20, s19")
    a("s_lshl_b32 s48, s20, 12")
    a("s_lshl_b32 s20, s15, 14")
    a("s_lshl_b32 s21, s16, 12")
    a("s_add_u32 s20, s20, s21")
    a("v_add_u32 v57, s20, v3")
    a("s_lshl_b32 s20, s16, 2")
    a("s_lshl_b32 s21, s15, 1")
    a("s_add_u32 s20, s20, s21")
    a("s_lshl_b32 s20, s20, 11")
    a(f"s_add_u32 s20, s20, {QX_OFF}")
    a("v_add_u32 v58, s20, v3")
    a(f"s_mov_b32 s23, {f32bits(QSCALE)}")
    a("s_mov_b32 s18, 0")
    a(f"s_mov_b32 s21, {-(G1_NSLOT-1)*G1_SLOT & 0xffffffff}")
    a(f"s_mov_b32 s22, {G1_SLOT}")
    a("s_barrier")
    if E("DIAG1"):
        a("s_waitcnt vmcnt(0)"); a("s_endpgm")
    stamp(a, 2)
    a("v_mov_b32 v243, 0")
    a("global_load_dword v242, v243, s[44:45] sc1")
    if QPF: qpf("b")
    lg = Lgkm(a)
    def reads(setb, ks, tagp):
        x0, x1, w0, w1, w2 = setb, setb+4, setb+8, setb+12, setb+16
        return [(tagp+"x0", f"ds_read_b128 {vr(x0,4)}, v{XA+ks}"),
                (tagp+"w0", f"ds_read_b64_tr_b16 {vr(w0,2)}, v{WA} offset:{ks*2048}"),
                (tagp+"w0", f"ds_read_b64_tr_b16 {vr(w0+2,2)}, v{WA} offset:{ks*2048+512}"),
                (tagp+"x1", f"ds_read_b128 {vr(x1,4)}, v{XA+ks} offset:4096"),
                (tagp+"w1", f"ds_read_b64_tr_b16 {vr(w1,2)}, v{WA} offset:{8192+ks*2048}"),
                (tagp+"w1", f"ds_read_b64_tr_b16 {vr(w1+2,2)}, v{WA} offset:{8192+ks*2048+512}"),
                (tagp+"w2", f"ds_read_b64_tr_b16 {vr(w2,2)}, v{WA} offset:{16384+ks*2048}"),
                (tagp+"w2", f"ds_read_b64_tr_b16 {vr(w2+2,2)}, v{WA} offset:{16384+ks*2048+512}")]
    def mfma(setb, i, t):
        x = setb + 4*i; w = setb + 8 + 4*t; acc = ACC + 16*(i*3+t)
        if t < 2: return f"v_mfma_f32_32x32x16_bf16 {vr(acc,16)}, {vr(w,4)}, {vr(x,4)}, {vr(acc,16)}"
        return f"v_mfma_f32_32x32x16_bf16 {vr(acc,16)}, {vr(x,4)}, {vr(w,4)}, {vr(acc,16)}"
    for tag, ins in reads(SETS[0], 0, "A"):
        a(ins); lg.issue(tag)
    a.raw(".p2align 6")
    a.label("L_g1_loop")
    order = [(0,1),(0,2),(1,1),(1,2),(0,0),(1,0)]
    needs = [["x0","w1"],["w2"],["x1"],[],["w0"],[]]
    def reads2(setb, ks, tagp):
        R = reads(setb, ks, tagp)
        return [R[0], R[4], R[5], R[6], R[7], R[3], R[1], R[2]]
    a.l = a.l[:-10]; lg.q = []
    for tag, ins in reads2(SETS[0], 0, "A"):
        a(ins); lg.issue(tag)
    a.raw(".p2align 6")
    a.label("L_g1_loop")
    for ks in range(4):
        cur = SETS[ks & 1]; nxt = SETS[(ks+1) & 1]
        cp = "AB"[ks & 1]; np_ = "AB"[(ks+1) & 1]
        if ks == 3:
            lg.all()
            a("s_add_u32 s18, s18, 1")
            if QPF:
                a("s_and_b32 s19, s18, 11")
                a("s_cmp_eq_u32 s19, 2")
                a("s_cbranch_scc1 L_qpf_out")
                a.label("L_qpf_back")
            a("s_and_b32 s19, s18, %d" % (G1_NSLOT-1))
            a("s_cmp_eq_u32 s19, 0")
            a("s_cselect_b32 s20, s21, s22")
            for k in range(4): a(f"v_add_u32 v{XA+k}, s20, v{XA+k}")
            a(f"v_add_u32 v{WA}, s20, v{WA}")
            a("s_barrier")
            if E("DIAG5"):
                a("s_memtime s[92:93]"); a("s_waitcnt lgkmcnt(0)")
                a("s_mov_b32 m0, s18")
                a("s_movreld_b32 s64, s92")
        R = reads2(nxt, (ks+1) & 3, np_)
        slots = [[], R[0:2], R[2:4], R[4:6], R[6:8], []]
        for k in range(6):
            for tag, ins in slots[k]:
                a(ins); lg.issue(tag)
            lg.need([cp+t for t in needs[k]])
            a(mfma(cur, *order[k]))
    a("s_cmp_lt_u32 s18, 16")
    a("s_cbranch_scc1 L_g1_loop")
    if E("DIAG4"): a("s_endpgm")
    if E("DIAG5"):
        a("s_lshl_b32 s58, s2, 3"); a("s_add_u32 s58, s58, s14"); a("s_lshl_b32 s58, s58, 7")
        a(f"s_add_u32 s58, s58, {STAMP_OFF}")
        a("s_add_u32 s56, s8, s58"); a("s_addc_u32 s57, s9, 0")
        a("v_mov_b32 v254, 0")
        a("v_mov_b32 v255, s62"); a("global_store_dword v254, v255, s[56:57]")
        a("v_mov_b32 v255, s64"); a("global_store_dword v254, v255, s[56:57] offset:4")
        for k in range(1, 17):
            a(f"v_mov_b32 v255, s{64+k}"); a(f"global_store_dword v254, v255, s[56:57] offset:{4+4*k}")
        a("s_waitcnt vmcnt(0)"); a("s_endpgm")
    a("s_waitcnt lgkmcnt(0) vmcnt(0)")
    stamp(a, 3)
    a("s_nop 11")
    T = 64
    n = 0
    for i in range(2):
        for t in (1, 2):
            acc = ACC + 16*(i*3+t); base = T + 8*(n % 4); n += 1
            for r in range(8): a(f"v_cvt_pk_bf16_f32 v{base+r}, v{acc+2*r}, v{acc+2*r+1}")
            o = i*4096 + (t-1)*2048
            a(f"s_add_u32 s28, s48, {o}")
            a(f"buffer_store_dwordx4 {vr(base,4)}, v3, s[24:27], s28 offen sc1")
            a(f"buffer_store_dwordx4 {vr(base+4,4)}, v3, s[24:27], s28 offen offset:1024 sc1")
            a(f"ds_write_b128 v57, {vr(base,4)} offset:{i*8192+(t-1)*2048}")
            a(f"ds_write_b128 v57, {vr(base+4,4)} offset:{i*8192+(t-1)*2048+1024}")
    for i in range(2):
        acc = ACC + 16*(i*3); base = 96 + 8*i
        for r in range(16): a(f"v_mul_f32 v{acc+r}, s23, v{acc+r}")
        for r in range(8): a(f"v_cvt_pk_bf16_f32 v{base+r}, v{acc+2*r}, v{acc+2*r+1}")
        a(f"ds_write_b128 v58, {vr(base,4)} offset:{i*2048}")
        a(f"ds_write_b128 v58, {vr(base+4,4)} offset:{i*2048+1024}")
    a("s_cmp_eq_u32 s14, 0")
    a("s_cbranch_scc0 L_noep")
    a("s_mov_b32 s19, 0")
    a.label("L_tag_spin")
    a("v_readfirstlane_b32 s20, v242")
    a("s_add_u32 s19, s19, 1")
    a("s_cmp_lg_u32 s20, 0")
    a("s_cbranch_scc1 L_tag_ok")
    a(f"s_cmp_ge_u32 s19, {POLL_MAX}")
    a("s_cbranch_scc1 L_tag_ok")
    a("s_sleep 1")
    a("global_load_dword v242, v243, s[44:45] sc1")
    a("s_waitcnt vmcnt(0)")
    a("s_branch L_tag_spin")
    a.label("L_tag_ok")
    a(f"v_mov_b32 v6, {EP_OFF}")
    a("s_mov_b64 exec, 1")
    a("ds_write_b32 v6, v242")
    a("v_mov_b32 v7, 0")
    a(f"ds_write_b64 v6, v[7:8] offset:64" if False else f"ds_write_b32 v6, v7 offset:64")
    a(f"ds_write_b32 v6, v7 offset:68")
    a("s_mov_b64 exec, -1")
    a.label("L_noep")
    a("s_waitcnt lgkmcnt(0)")
    a.label("L_g1_done")
    a("s_barrier")
    dbgt(a, 3, True); dbgt(a, 4)
    stamp(a, 4)
    Q, K, V = 8, 16, 24
    S = [32, 48]; P = [64, 72]; O = 80; L = 96; M = 107
    a("s_lshr_b32 s15, s14, 2")
    a("s_and_b32 s16, s14, 3")
    a("s_lshl_b32 s17, s10, 1")
    a("s_add_u32 s17, s17, s15")
    a("s_lshl_b32 s18, s11, 2")
    a("s_add_u32 s18, s18, s16")
    a("s_lshl_b32 s20, s14, 11")
    a(f"s_add_u32 s20, s20, {QX_OFF}")
    a("v_add_u32 v4, s20, v3")
    a(f"ds_read_b128 {vr(Q,4)}, v4")
    a(f"ds_read_b128 {vr(Q+4,4)}, v4 offset:1024")
    a(f"v_mov_b32 v6, {EP_OFF}")
    a("ds_read_b32 v6, v6")
    a(f"ds_read_b128 {vr(K,4)}, v{VLO}")
    a(f"ds_read_b128 {vr(K+4,4)}, v{VLO} offset:1024")
    for r in range(4): a(f"v_mov_b32 v{L+r}, 0")
    a("s_lshl_b32 s20, s17, 18")
    a("s_add_u32 s28, s8, s20"); a("s_addc_u32 s29, s9, 0"); a("s_mov_b32 s30, 262144"); a("s_mov_b32 s31, 0x20000")
    a("s_lshl_b32 s21, s16, 13")
    a("s_lshl_b32 s36, s15, 12")
    a("s_add_u32 s21, s21, s36")
    a("s_waitcnt lgkmcnt(0)")
    a("v_readfirstlane_b32 s46, v6")
    a(f"v_mfma_f32_32x32x16_bf16 {vr(S[0],16)}, {vr(K,4)}, {vr(Q,4)}, 0")
    a(f"v_mfma_f32_32x32x16_bf16 {vr(S[0],16)}, {vr(K+4,4)}, {vr(Q+4,4)}, {vr(S[0],16)}")
    lg = Lgkm(a)
    def ldsa(slot, t, f):
        off = slot*AT_SLOT + t*8192 + f*1024
        return f"v{VLO if off < 65536 else VHI} offset:{off & 0xffff}"
    a(f"ds_read_b128 {vr(K,4)}, {ldsa(0,1,0)}"); lg.issue("K")
    a(f"ds_read_b128 {vr(K+4,4)}, {ldsa(0,1,1)}"); lg.issue("K")
    a("s_nop 7")
    PRIO = E("PRIO", 1)
    def at_step(i, own, slot, tag=""):
        X = S[i & 1]; Y = S[(i+1) & 1]; PX = P[i & 1]; PY = P[(i+1) & 1]
        ex = lambda r: a(f"v_exp_f32 v{X+r}, v{X+r}")
        cv = lambda r: a(f"v_cvt_pk_bf16_f32 v{PX+r}, v{X+2*r}, v{X+2*r+1}")
        def kread():
            t = i + 2
            if own and t >= 4: return
            sl = slot if t < 4 else (slot+1) & 3
            a(f"ds_read_b128 {vr(K,4)}, {ldsa(sl, t % 4, 0)}"); lg.issue("K")
            a(f"ds_read_b128 {vr(K+4,4)}, {ldsa(sl, t % 4, 1)}"); lg.issue("K")
        def vread():
            a(f"ds_read_b128 {vr(V,4)}, {ldsa(slot, i, 2)}"); lg.issue("V")
            a(f"ds_read_b128 {vr(V+4,4)}, {ldsa(slot, i, 3)}"); lg.issue("V")
        def dma1(q):
            if own or E("DMAMODE", 1) == 0: return
            a(f"buffer_load_dwordx4 v{VD0+q}, s[28:31], s55 offen offset:{q*1024}{KVSC} lds")
        qk0 = f"v_mfma_f32_32x32x16_bf16 {vr(Y,16)}, {vr(K,4)}, {vr(Q,4)}, 0"
        qk1 = f"v_mfma_f32_32x32x16_bf16 {vr(Y,16)}, {vr(K+4,4)}, {vr(Q+4,4)}, {vr(Y,16)}"
        pv0 = f"v_mfma_f32_32x32x16_bf16 {vr(O,16)}, {vr(V,4)}, {vr(PY,4)}, {vr(O,16)}"
        pv1 = f"v_mfma_f32_32x32x16_bf16 {vr(O,16)}, {vr(V+4,4)}, {vr(PY+4,4)}, {vr(O,16)}"
        smf = f"v_smfmac_f32_16x16x64_bf16 {vr(L,4)}, {vr(ONES,4)}, {vr(PY,8)}, v{IDX}"
        if own and i == 1: pv0 = f"v_mfma_f32_32x32x16_bf16 {vr(O,16)}, {vr(V,4)}, {vr(PY,4)}, 0"
        nopv = own and i == 0
        if PRIO: a(f"s_setprio {3-i}")
        has_qk = not (own and i == 3)
        if own and i == E("FLAGSTEP", 2):
            a("s_cmp_lt_u32 s14, 4")
            a("s_cbranch_scc1 L_flag_out")
            a.label("L_flag_back")
        SCH = E("SCH", 1)
        if SCH == 0:
            if has_qk:
                lg.need(["K"]); a(qk0)
            ex(0); ex(1); ex(2); ex(3)
            if has_qk: a(qk1)
            if i == 2 and not own and not E("X_NOSYNC"):
                lg.need(["C"])
                a(f"v_readfirstlane_b32 s36, v{VCV}")
                ex(4)
                a("s_cmp_ge_u32 s36, s47")
                a(f"s_cbranch_scc0 L_cnt_spin{tag}")
                a.label(f"L_cnt_back{tag}")
                kread(); ex(5); cv(0); ex(6); cv(1)
            else:
                kread(); ex(4); ex(5); cv(0); ex(6); cv(1)
            lg.need(["V"])
            if i == 0 and not own and not E("X_NOSYNC"):
                a("s_waitcnt vmcnt(4)")
                a(f"ds_add_u32 v{VCA}, v{VONE}"); lg.issue("A")
            a(pv0); ex(7)
            if i == 2 and not own: a(f"s_add_u32 m0, s21, {((slot+3)&3)*AT_SLOT}")
            ex(8); cv(2)
            if i >= 2: dma1(2*(i-2))
            ex(9); cv(3)
            a(pv1)
            if i == 1 and not own and not E("X_NOSYNC"):
                a(f"ds_read_b32 v{VCV}, v{VCR}"); lg.issue("C")
            if i >= 2: dma1(2*(i-2)+1)
            ex(10); ex(11); cv(4); ex(12); cv(5)
            a(smf); vread(); ex(13); ex(14); cv(6); ex(15)
            if i == 3 and not own:
                a("s_add_u32 s55, s55, s56")
                cv(7)
                a("s_and_b32 s55, s55, s57")
                a("s_add_u32 s47, s47, 4")
            else:
                a("s_nop 0")
                cv(7)
        else:
            if has_qk:
                lg.need(["K"]); a(qk0)
            ex(0); ex(1); ex(2); ex(3)
            if has_qk: a(qk1)
            if i == 2 and not own and not E("X_NOSYNC"):
                lg.need(["C"])
                a(f"v_cmp_gt_u32 vcc, s47, v{VCV}")
                ex(4); ex(5)
                a(f"s_cbranch_vccnz L_cnt_spin{tag}")
                a.label(f"L_cnt_back{tag}")
                kread(); ex(6); ex(7)
            else:
                kread(); ex(4); ex(5); ex(6); ex(7)
            lg.need(["V"])
            if i == 0 and not own and not E("X_NOSYNC"):
                a("s_waitcnt vmcnt(4)")
                a(f"ds_add_u32 v{VCA}, v{VONE}"); lg.issue("A")
            if not nopv: a(pv0)
            ex(8)
            if i == 2 and not own: a(f"s_add_u32 m0, s21, {((slot+3)&3)*AT_SLOT}")
            ex(9)
            if i >= 2: dma1(2*(i-2))
            ex(10); ex(11)
            if not nopv: a(pv1)
            if i == 1 and not own and not E("X_NOSYNC"):
                a(f"ds_read_b32 v{VCV}, v{VCR}"); lg.issue("C")
            if i >= 2: dma1(2*(i-2)+1)
            ex(12); ex(13); ex(14); ex(15)
            if not nopv: a(smf)
            vread()
            if nopv: a("s_nop 0")
            cv(0); cv(1); cv(2)
            if i == 3 and not own: a("s_add_u32 s55, s55, s56")
            cv(3); cv(4)
            if i == 3 and not own: a("s_and_b32 s55, s55, s57")
            cv(5); cv(6)
            if i == 3 and not own: a("s_add_u32 s47, s47, 4")
            cv(7)
    for i in range(4): at_step(i, True, 0)
    stamp(a, 5)
    a("s_cmp_eq_u32 s14, 7")
    a("s_cbranch_scc0 L_at_nopoll")
    if E("PART1", 1):
        a("s_add_u32 s36, s11, 1")
        a("s_lshl_b32 s36, s36, 2")
        a("s_and_b32 s36, s36, 63")
        a("s_sub_u32 s37, 64, s36")
        a("s_mov_b64 s[58:59], 0xfff")
        a("s_lshl_b64 s[48:49], s[58:59], s36")
        a("s_lshr_b64 s[58:59], s[58:59], s37")
        a("s_cmp_eq_u32 s36, 0")
        a("s_cselect_b64 s[58:59], 0, s[58:59]")
        a("s_or_b64 s[48:49], s[48:49], s[58:59]")
        poll(a, "f", 239, 48)
    else:
        poll(a, "f", 239)
    a.label("L_at_nopoll")
    a("s_barrier")
    stamp(a, 6)
    def kvstage(st):
        a(f"s_add_u32 s36, s11, {st}")
        a("s_and_b32 s36, s36, 15")
        a(f"s_add_u32 m0, s21, {st*AT_SLOT}")
        a("s_lshl_b32 s36, s36, 14")
        for q in range(4):
            a(f"buffer_load_dwordx4 v{VD0+q}, s[28:31], s36 offen offset:{q*1024}{KVSC} lds")
    kvstage(1); kvstage(2)
    a("s_add_u32 s55, s11, 4")
    a("s_and_b32 s55, s55, 15")
    a("s_lshl_b32 s55, s55, 14")
    a("s_mov_b32 s56, 16384"); a("s_mov_b32 s57, 0x3c000")
    a("s_mov_b32 s47, 4")
    a("s_waitcnt vmcnt(4)")
    a("s_barrier")
    if E("PART1", 1):
        a("s_and_b32 s36, s14, 3")
        a("s_cmp_eq_u32 s36, 3")
        a("s_cbranch_scc0 L_at_nopoll2")
        poll(a, "f2", 239)
        a("s_mov_b32 s47, 4")
        a.label("L_at_nopoll2")
    kvstage(3)
    stamp(a, 7)
    a(f"ds_read_b128 {vr(K,4)}, {ldsa(1,0,0)}")
    a(f"ds_read_b128 {vr(K+4,4)}, {ldsa(1,0,1)}")
    a("s_waitcnt lgkmcnt(0)")
    a(f"v_mfma_f32_32x32x16_bf16 {vr(S[0],16)}, {vr(K,4)}, {vr(Q,4)}, 0")
    a(f"v_mfma_f32_32x32x16_bf16 {vr(S[0],16)}, {vr(K+4,4)}, {vr(Q+4,4)}, {vr(S[0],16)}")
    a(f"ds_read_b128 {vr(K,4)}, {ldsa(1,1,0)}")
    a(f"ds_read_b128 {vr(K+4,4)}, {ldsa(1,1,1)}")
    a("s_waitcnt lgkmcnt(0)")
    a("s_nop 7")
    stamp(a, 14)
    dbgt(a, 5, True); dbgt(a, 6)
    lg.q = ["K", "K", "V", "V"]
    a.raw(".p2align 6")
    a.label("L_at_loop")
    for c in range(4):
        slot = (c+1) & 3
        for i in range(4): at_step(i, False, slot, str(c))
        assert lg.q == ["K", "K", "V", "V"], lg.q
        if c == 2:
            a("s_cmp_eq_u32 s47, 64")
            a("s_cbranch_scc1 L_at_tail")
    a("s_cmp_eq_u32 s47, 52")
    a("s_cbranch_scc0 L_at_loop")
    stamp(a, 15)
    a("s_lshl_b32 s39, s11, 7")
    a("s_sub_u32 s36, 0x200000, s39")
    a("s_add_u32 s28, s40, s39"); a("s_addc_u32 s29, s41, 0"); a("s_mov_b32 s30, s36"); a("s_mov_b32 s31, 0x20000")
    a("s_mov_b32 s55, 0"); a("s_mov_b32 s56, 524288"); a("s_mov_b32 s57, -1")
    a("v_lshrrev_b32 v4, 3, v2")
    a("v_lshlrev_b32 v4, 11, v4")
    a("v_and_b32 v5, 7, v2")
    a("v_lshrrev_b32 v6, 4, v2")
    a("v_and_b32 v6, 1, v6")
    a("v_lshlrev_b32 v6, 2, v6")
    a("v_xor_b32 v5, v5, v6")
    a("v_lshlrev_b32 v5, 4, v5")
    a("v_add_u32 v4, v4, v5")
    a("s_lshl_b32 s36, s21, 4")
    a("v_add_u32 v4, s36, v4")
    for q in range(4): a(f"v_add_u32 v{VD0+q}, {q*(16384-1024)}, v4")
    a("s_branch L_at_loop")
    for c in range(4 if not E("X_NOSYNC") else 0):
        a.label(f"L_cnt_spin{c}")
        a("s_mov_b32 s39, 0")
        a.label(f"L_cnt_spin2{c}")
        a(f"ds_read_b32 v{VCV}, v{VCR}")
        a("s_waitcnt lgkmcnt(0)")
        a(f"v_readfirstlane_b32 s36, v{VCV}")
        a("s_add_u32 s39, s39, 1")
        a(f"s_cmp_ge_u32 s39, {POLL_MAX*16}")
        a(f"s_cbranch_scc1 L_cnt_back{c}")
        a("s_cmp_ge_u32 s36, s47")
        a(f"s_cbranch_scc0 L_cnt_spin2{c}")
        a(f"s_branch L_cnt_back{c}")
    a.label("L_at_tail")
    a("s_setprio 0")
    PL = P[1]
    a("s_waitcnt lgkmcnt(0)")
    a(f"v_mfma_f32_32x32x16_bf16 {vr(O,16)}, {vr(V,4)}, {vr(PL,4)}, {vr(O,16)}")
    a(f"v_mfma_f32_32x32x16_bf16 {vr(O,16)}, {vr(V+4,4)}, {vr(PL+4,4)}, {vr(O,16)}")
    a(f"v_smfmac_f32_16x16x64_bf16 {vr(L,4)}, {vr(ONES,4)}, {vr(PL,8)}, v{IDX}")
    stamp(a, 8)
    dbgt(a, 7, True); dbgt(a, 8)
    a("s_nop 8")
    a("s_nop 7")
    a(f"v_add_f32 v{L}, v{L}, v{L+1}")
    a(f"v_mov_b32 v4, {f32bits(2.0**-40)}")
    a(f"v_mov_b32 v5, {f32bits(2.0**40)}")
    a(f"v_cmp_nge_f32 vcc, v{L}, v4")
    a(f"v_cmp_nle_f32 s[44:45], v{L}, v5")
    a("s_or_b64 s[44:45], s[44:45], vcc")
    a(f"v_add_f32 v6, abs(v{O}), abs(v{O+1})")
    a(f"v_add_f32 v7, abs(v{O+2}), abs(v{O+3})")
    for r in range(4, 16, 2):
        a(f"v_add_f32 v6, v6, abs(v{O+r})")
        a(f"v_add_f32 v7, v7, abs(v{O+r+1})")
    a(f"v_mov_b32 v5, {f32bits(2.0**100)}")
    a("v_add_f32 v6, v6, v7")
    a("v_cmp_nlt_f32 vcc, v6, v5")
    a("s_or_b64 s[44:45], s[44:45], vcc")
    a("s_cmp_lg_u64 s[44:45], 0")
    a("s_cbranch_scc1 L_at_slow")
    a.label("L_at_fin")
    a(f"v_rcp_f32 v4, v{L}")
    a("s_nop 0")
    for r in range(16): a(f"v_mul_f32 v{O+r}, v{O+r}, v4")
    for r in range(8): a(f"v_cvt_pk_bf16_f32 v{P[0]+r}, v{O+2*r}, v{O+2*r+1}")
    EP2 = E("EP2", 0)
    if EP2:
        a(f"s_lshl_b32 s36, s10, {9+D2}")
        a(f"s_lshl_b32 s37, s16, {7+D2}")
        a("s_add_u32 s36, s36, s37")
        a(f"s_lshl_b32 s37, s15, {6+D2}")
        a("s_add_u32 s36, s36, s37")
        a(f"s_add_u32 s36, s36, {G_OFF}")
        a("v_and_b32 v198, 15, v2")
        a(f"v_lshlrev_b32 v198, {FSH}, v198")
        a("v_add_u32 v198, s36, v198")
    a("s_lshl_b32 s19, s18, 6")
    a("s_lshl_b32 s36, s17, 1")
    a("s_add_u32 s19, s19, s36")
    a("s_lshl_b32 s19, s19, 10")
    a(f"s_add_u32 s19, s19, {OF_OFF}")
    a(f"buffer_store_dwordx4 {vr(P[0],4)}, v3, s[24:27], s19 offen sc1")
    a(f"buffer_store_dwordx4 {vr(P[0]+4,4)}, v3, s[24:27], s19 offen offset:1024 sc1")
    if EP2: a("buffer_load_dword v199, v198, s[24:27], 0 offen sc1")
    srd(a, 32, 42, None, 0x400000)
    a(f"s_lshl_b32 s36, s11, {9+D2}")
    a(f"s_lshl_b32 s37, s16, {7+D2}")
    a("s_add_u32 s36, s36, s37")
    a(f"s_lshl_b32 s37, s10, {3+D2}")
    a("s_add_u32 s36, s36, s37")
    a(f"s_lshl_b32 s37, s15, {2+D2}")
    a("s_add_u32 s36, s36, s37")
    a(f"s_add_u32 s36, s36, {G_OFF}")
    a("v_mov_b32 v5, s36")
    a("v_mov_b32 v6, s46")
    a("s_waitcnt vmcnt(1)" if EP2 else "s_waitcnt vmcnt(0)")
    a("s_mov_b64 exec, 1")
    a("buffer_store_dword v6, v5, s[24:27], 0 offen sc1")
    a("s_mov_b64 exec, -1")
    a("s_barrier")
    a(f"s_add_u32 m0, s21, {3*AT_SLOT}")
    a("s_lshl_b32 s36, s14, 12")
    a(f"s_add_u32 s36, s36, {XCH_OFF}")
    for q in range(4):
        a(f"buffer_load_dwordx4 v{VD0+q}, s[28:31], s55 offen offset:{q*1024} lds")
    a("v_add_u32 v196, s36, v3")
    for r in range(4): a(f"v_mov_b32 v{200+r}, -1")
    a("ds_write_b128 v196, v[200:203] offset:3072")
    a("s_xor_b32 s36, s14, 4")
    a("s_lshl_b32 s36, s36, 12")
    a(f"s_add_u32 s36, s36, {XCH_OFF}")
    a("v_add_u32 v197, s36, v3")
    stamp(a, 9)
    a("v_lshrrev_b32 v5, 5, v2")
    a("v_and_b32 v6, 15, v2")
    a("v_lshrrev_b32 v6, 2, v6")
    a("v_lshlrev_b32 v7, 2, v5")
    a("v_add_u32 v7, v7, v6")
    a("v_lshlrev_b32 v7, 7, v7")
    a("v_lshrrev_b32 v8, 4, v2")
    a("v_and_b32 v8, 1, v8")
    a("v_lshlrev_b32 v8, 1, v8")
    a("v_and_b32 v9, 3, v2")
    a("v_lshrrev_b32 v10, 1, v9")
    a("v_add_u32 v8, v8, v10")
    a("v_lshrrev_b32 v10, 1, v6")
    a("v_lshlrev_b32 v10, 2, v10")
    a("v_xor_b32 v8, v8, v10")
    a("v_lshlrev_b32 v8, 4, v8")
    a("v_add_u32 v7, v7, v8")
    a("v_and_b32 v9, 1, v9")
    a("v_lshlrev_b32 v9, 3, v9")
    a("v_add_u32 v7, v7, v9")
    a("s_lshl_b32 s36, s15, 16")
    a(f"s_add_u32 s36, s36, {WO_LDS}")
    a("v_add_u32 v12, s36, v7")
    a("v_xor_b32 v13, 64, v12")
    ACC = 16; ACCB = 204
    for r in range(32): a(f"v_mov_b32 v{ACC+r}, 0")
    for r in range(32): a(f"v_mov_b32 v{ACCB+r}, 0")
    a(f"s_lshl_b32 s36, s10, {9+D2}")
    a(f"s_lshl_b32 s37, s16, {7+D2}")
    a("s_add_u32 s36, s36, s37")
    a(f"s_lshl_b32 s37, s15, {6+D2}")
    a("s_add_u32 s36, s36, s37")
    a(f"s_add_u32 s36, s36, {G_OFF}")
    a("v_and_b32 v4, 15, v2")
    a(f"v_lshlrev_b32 v4, {FSH}, v4")
    a("v_add_u32 v4, s36, v4")
    OFR = 64
    a("s_lshl_b32 s36, s10, 2")
    a("s_add_u32 s36, s36, s16")
    a("s_lshl_b32 s36, s36, 6")
    a("s_lshl_b32 s37, s15, 5")
    a("s_add_u32 s36, s36, s37")
    a("s_lshl_b32 s36, s36, 10")
    a(f"s_add_u32 s36, s36, {OF_OFF}")
    B0M = E("B0MODE", 0)
    if B0M == 0: a("s_and_b32 s50, s11, 7")
    elif B0M == 1: a("s_mov_b32 s50, 0")
    elif B0M == 2:
        a("s_and_b32 s50, s11, 1"); a("s_lshl_b32 s50, s50, 2")
    elif B0M == 3:
        a("s_and_b32 s50, s11, 3"); a("s_lshl_b32 s50, s50, 1")
    a("s_lshl_b32 s51, s50, 1")
    a("s_sub_u32 s52, 16, s51")
    a("s_mov_b32 s48, 0")
    a("s_mov_b32 s54, 0")
    a("s_mov_b32 s47, 0")
    a("s_mov_b32 s49, 0")
    if E("EARLYPOLL", 0):
        a("buffer_load_dword v5, v4, s[24:27], 0 offen sc1")
        a("s_waitcnt vmcnt(1)")
        a("s_barrier")
    elif not EP2:
        a("s_waitcnt vmcnt(0) lgkmcnt(0)")
        a("s_barrier")
        a("buffer_load_dword v5, v4, s[24:27], 0 offen sc1")
    WF = [48, 56]
    def og_loads(i):
        a(f"s_add_u32 s53, s50, {i}")
        a("s_and_b32 s53, s53, 7")
        a("s_lshl_b32 s53, s53, 12")
        a("s_add_u32 s53, s53, s36")
        for q in range(4):
            a(f"buffer_load_dwordx4 {vr(OFR+16*i+4*q,4)}, v3, s[24:27], s53 offen offset:{q*1024}{OLSC}")
    if EP2:
        assert E("CAD", 1) and not E("EARLYPOLL", 0)
        a("s_waitcnt vmcnt(5)")
        a("v_cmp_eq_u32 vcc, s46, v199")
        a("s_lshr_b32 s49, vcc_lo, 1")
        a("s_and_b32 s49, s49, vcc_lo")
        a("s_and_b32 s49, s49, 0x5555")
        a("s_lshr_b32 s53, s49, s51")
        a("s_lshl_b32 s49, s49, s52")
        a("s_or_b32 s49, s49, s53")
        a("s_and_b32 s49, s49, 0x5555")
        a("s_lshr_b32 s44, s49, 2")
        a("s_and_b32 s44, s44, s49")
        a("s_and_b32 s44, s44, 0x1111")
        a("s_lshl_b32 s59, s44, 2")
        a("s_or_b32 s59, s59, s44")
        for p in range(4):
            a(f"s_bitcmp1_b32 s44, {4*p}")
            a(f"s_cbranch_scc0 L_ep_nl{p}")
            og_loads(2*p); og_loads(2*p+1)
            a.label(f"L_ep_nl{p}")
        a("s_bcnt1_i32_b32 s53, s44")
        for n in range(4, 0, -1):
            a(f"s_cmp_eq_u32 s53, {n}")
            a(f"s_cbranch_scc1 L_ep_w{n}")
        a("s_waitcnt vmcnt(0) lgkmcnt(0)")
        a("s_branch L_ep_wd")
        for n in range(1, 5):
            a.label(f"L_ep_w{n}")
            a(f"s_waitcnt vmcnt({8*n}) lgkmcnt(0)")
            if n < 4: a("s_branch L_ep_wd")
        a.label("L_ep_wd")
        a("s_barrier")
        a("s_mov_b32 s58, s59")
        a("s_mov_b32 s49, 0")
        a("s_cmp_eq_u32 s59, 0x5555")
        a("s_cselect_b32 s57, 1, 0")
        a("s_cbranch_scc1 L_og_next")
        a("buffer_load_dword v5, v4, s[24:27], 0 offen sc1")
        a("s_branch L_og_next")
    def og_mfma(i):
        a(f"s_add_u32 s53, s50, {i}")
        a("s_and_b32 s53, s53, 7")
        a("s_lshl_b32 s53, s53, 13")
        a("v_add_u32 v14, s53, v12")
        a("v_add_u32 v15, s53, v13")
        def wreads(setb, q):
            for ct in range(2):
                for jj in range(2):
                    a(f"ds_read_b64_tr_b16 {vr(setb+4*ct+2*jj,2)}, v{14+ct} offset:{q*2048+jj*1024}")
        def mm(setb, q):
            ac = ACC if i < 4 else ACCB
            for ct in range(2):
                a(f"v_mfma_f32_32x32x16_bf16 {vr(ac+16*ct,16)}, {vr(setb+4*ct,4)}, {vr(OFR+16*i+4*q,4)}, {vr(ac+16*ct,16)}")
        return wreads, mm
    if E("CAD", 1):
        if not EP2:
            a("s_mov_b32 s58, 0"); a("s_mov_b32 s59, 0"); a("s_mov_b32 s57, 0")
        a.label("L_og_round")
        a("s_bcnt1_i32_b32 s53, s49")
        for n in range(8, 0, -1):
            a(f"s_cmp_ge_u32 s53, {n}")
            a(f"s_cbranch_scc1 L_og_w{n}")
        a("s_waitcnt vmcnt(0)")
        a("s_branch L_og_wd")
        for n in range(1, 9):
            a.label(f"L_og_w{n}")
            a(f"s_waitcnt vmcnt({4*n})")
            if n < 8: a("s_branch L_og_wd")
        a.label("L_og_wd")
        a("s_mov_b32 s48, s58")
        a("v_cmp_eq_u32 vcc, s46, v5")
        a("s_add_u32 s47, s47, 1")
        a("s_lshr_b32 s49, vcc_lo, 1")
        a("s_and_b32 s49, s49, vcc_lo")
        a("s_and_b32 s49, s49, 0x5555")
        a("s_lshr_b32 s53, s49, s51")
        a("s_lshl_b32 s49, s49, s52")
        a("s_or_b32 s49, s49, s53")
        a("s_and_b32 s49, s49, 0x5555")
        a(f"s_cmp_ge_u32 s47, {POLL_MAX}")
        a("s_cselect_b32 s49, 0x5555, s49")
        a("s_andn2_b32 s49, s49, s59")
        stamp(a, 10)
        a("s_cmp_eq_u32 s49, 0x5555")
        a("s_cbranch_scc1 L_og_fast")
        a("s_mov_b32 s58, s59")
        a("s_or_b32 s59, s59, s49")
        a("s_cmp_eq_u32 s59, 0x5555")
        a("s_cselect_b32 s57, 1, 0")
        a("s_cbranch_scc1 L_og_nopoll")
        a("s_cmp_eq_u32 s49, 0")
        a("s_cbranch_scc0 L_og_poll")
        a("s_sleep 2")
        a.label("L_og_poll")
        a("buffer_load_dword v5, v4, s[24:27], 0 offen sc1")
        a.label("L_og_nopoll")
        for i in range(8):
            a(f"s_bitcmp1_b32 s49, {2*i}")
            a(f"s_cbranch_scc0 L_og_nl{i}")
            og_loads(i)
            a.label(f"L_og_nl{i}")
        a.label("L_og_pass")
        for i in range(8):
            if i == 4: a.label("L_og_chainB")
            a(f"s_bitcmp1_b32 s54, {2*i}")
            a(f"s_cbranch_scc1 L_og_nm{i}")
            a(f"s_bitcmp1_b32 s48, {2*i}")
            a(f"s_cbranch_scc0 {'L_og_chainB' if i < 4 else 'L_og_next'}")
            a(f"s_bitset1_b32 s54, {2*i}")
            wreads, mm = og_mfma(i)
            wreads(WF[0], 0); wreads(WF[1], 1)
            a("s_waitcnt lgkmcnt(4)"); mm(WF[0], 0)
            wreads(WF[0], 2)
            a("s_waitcnt lgkmcnt(4)"); mm(WF[1], 1)
            wreads(WF[1], 3)
            a("s_waitcnt lgkmcnt(4)"); mm(WF[0], 2)
            a("s_waitcnt lgkmcnt(0)"); mm(WF[1], 3)
            a.label(f"L_og_nm{i}")
        a("s_cmp_eq_u32 s54, 0x5555")
        a("s_cbranch_scc1 L_og_done")
        a.label("L_og_next")
        if EP2:
            a("s_cmp_eq_u32 s44, 0")
            a("s_cbranch_scc1 L_ep_none")
            a("s_ff1_i32_b32 s53, s44")
            a("s_bitset0_b32 s44, s53")
            a("s_lshl_b32 s45, 5, s53")
            a("s_or_b32 s48, s48, s45")
            a("s_bcnt1_i32_b32 s53, s44")
            for n in range(3, 0, -1):
                a(f"s_cmp_eq_u32 s53, {n}")
                a(f"s_cbranch_scc1 L_ep_v{n}")
            a("s_waitcnt vmcnt(0)")
            a("s_branch L_og_pass")
            for n in range(1, 4):
                a.label(f"L_ep_v{n}")
                a(f"s_waitcnt vmcnt({8*n})")
                a("s_branch L_og_pass")
            a.label("L_ep_none")
        a("s_cmp_eq_u32 s57, 0")
        a("s_cbranch_scc1 L_og_round")
        a("s_waitcnt vmcnt(0)")
        a("s_mov_b32 s48, 0x5555")
        a("s_branch L_og_pass")
    else:
        a.label("L_og_round")
        a("s_waitcnt vmcnt(0)")
        a("s_or_b32 s48, s48, s49")
        a("v_cmp_eq_u32 vcc, s46, v5")
        a("s_add_u32 s47, s47, 1")
        a("s_lshr_b32 s49, vcc_lo, 1")
        a("s_and_b32 s49, s49, vcc_lo")
        a("s_and_b32 s49, s49, 0x5555")
        a("s_lshr_b32 s53, s49, s51")
        a("s_lshl_b32 s49, s49, s52")
        a("s_or_b32 s49, s49, s53")
        a("s_and_b32 s49, s49, 0x5555")
        a(f"s_cmp_ge_u32 s47, {POLL_MAX}")
        a("s_cselect_b32 s49, 0x5555, s49")
        a("s_andn2_b32 s49, s49, s48")
        if E("DIAG3"):
            a("s_cmp_eq_u32 s47, 1")
            a("s_cbranch_scc0 L_d3a")
            stamp(a, 2)
            a("s_mov_b32 s70, s49")
            a.label("L_d3a")
            a("s_cmp_eq_u32 s47, 2")
            a("s_cbranch_scc0 L_d3b")
            stamp(a, 3)
            a("s_mov_b32 s72, s49")
            a.label("L_d3b")
            a("s_mov_b32 s74, s47")
        stamp(a, 10)
        a("s_cmp_eq_u32 s49, 0x5555")
        a("s_cbranch_scc1 L_og_fast")
        for i in range(8):
            a(f"s_bitcmp1_b32 s49, {2*i}")
            a(f"s_cbranch_scc0 L_og_nl{i}")
            og_loads(i)
            a.label(f"L_og_nl{i}")
        a("s_or_b32 s53, s48, s49")
        a("s_cmp_eq_u32 s53, 0x5555")
        a("s_cbranch_scc1 L_og_nopoll")
        a("s_cmp_eq_u32 s49, 0")
        a("s_cbranch_scc0 L_og_poll")
        a("s_sleep 4")
        a.label("L_og_poll")
        a("buffer_load_dword v5, v4, s[24:27], 0 offen sc1")
        a.label("L_og_nopoll")
        for i in range(8):
            a(f"s_bitcmp1_b32 s54, {2*i}")
            a(f"s_cbranch_scc1 L_og_nm{i}")
            a(f"s_bitcmp1_b32 s48, {2*i}")
            a(f"s_cbranch_scc0 L_og_round")
            a(f"s_bitset1_b32 s54, {2*i}")
            wreads, mm = og_mfma(i)
            wreads(WF[0], 0); wreads(WF[1], 1)
            a("s_waitcnt lgkmcnt(4)"); mm(WF[0], 0)
            wreads(WF[0], 2)
            a("s_waitcnt lgkmcnt(4)"); mm(WF[1], 1)
            wreads(WF[1], 3)
            a("s_waitcnt lgkmcnt(4)"); mm(WF[0], 2)
            a("s_waitcnt lgkmcnt(0)"); mm(WF[1], 3)
            a.label(f"L_og_nm{i}")
    a("s_branch L_og_done")
    a.label("L_og_fast")
    for i in range(8): og_loads(i)
    for i in range(8):
        wreads, mm = og_mfma(i)
        wreads(WF[0], 0); wreads(WF[1], 1)
        a(f"s_waitcnt vmcnt({28-4*i+2}) lgkmcnt(4)"); mm(WF[0], 0)
        wreads(WF[0], 2)
        a("s_waitcnt lgkmcnt(4)"); mm(WF[1], 1)
        wreads(WF[1], 3)
        a(f"s_waitcnt vmcnt({28-4*i}) lgkmcnt(4)"); mm(WF[0], 2)
        a("s_waitcnt lgkmcnt(0)"); mm(WF[1], 3)
    a.label("L_og_done")
    stamp(a, 11)
    a("s_nop 11")
    a("s_nop 1")
    for r in range(32): a(f"v_add_f32 v{ACC+r}, v{ACC+r}, v{ACCB+r}")
    a("s_cmp_eq_u32 s15, 0")
    a("s_cbranch_scc1 L_op_kh0")
    for q in range(4): a(f"ds_write_b128 v196, {vr(ACC+4*q,4)} offset:{q*1024}")
    for r in range(16): a(f"v_mov_b32 v{48+r}, v{ACC+16+r}")
    a("s_branch L_op_x")
    a.label("L_op_kh0")
    for q in range(4): a(f"ds_write_b128 v196, {vr(ACC+16+4*q,4)} offset:{q*1024}")
    for r in range(16): a(f"v_mov_b32 v{48+r}, v{ACC+r}")
    a.label("L_op_x")
    a("s_mov_b32 s47, 0")
    a.label("L_op_spin")
    a(f"ds_read_b128 {vr(76,4)}, v197 offset:3072")
    a("s_add_u32 s47, s47, 1")
    a("s_waitcnt lgkmcnt(0)")
    a("v_cmp_eq_u32 vcc, -1, v76")
    a(f"s_cmp_ge_u32 s47, {POLL_MAX*16}")
    a("s_cbranch_scc1 L_op_go")
    a("s_cmp_eq_u64 vcc, 0")
    a("s_cbranch_scc0 L_op_spin")
    a.label("L_op_go")
    for q in range(3): a(f"ds_read_b128 {vr(64+4*q,4)}, v197 offset:{q*1024}")
    a("s_waitcnt lgkmcnt(0)")
    for r in range(16): a(f"v_add_f32 v{48+r}, v{48+r}, v{64+r}")
    for r in range(8): a(f"v_cvt_pk_bf16_f32 v{64+r}, v{48+2*r}, v{48+2*r+1}")
    a("v_and_b32 v5, 31, v2")
    a("v_lshlrev_b32 v5, 11, v5")
    a("v_lshrrev_b32 v6, 5, v2")
    a("v_lshlrev_b32 v6, 4, v6")
    a("v_add_u32 v5, v5, v6")
    for g in (0, 2):
        a(f"v_permlane32_swap_b32 v{64+2*g}, v{64+2*g+2}")
        a(f"v_permlane32_swap_b32 v{64+2*g+1}, v{64+2*g+3}")
    a("s_lshl_b32 s36, s10, 2")
    a("s_add_u32 s36, s36, s16")
    a("s_lshl_b32 s36, s36, 16")
    a("s_lshl_b32 s37, s11, 7")
    a("s_add_u32 s36, s36, s37")
    a("s_lshl_b32 s37, s15, 6")
    a("s_add_u32 s36, s36, s37")
    OSC = {0: "", 1: " sc1", 2: " nt", 3: " sc0 sc1"}[E("OUTSC", 0)]
    a(f"buffer_store_dwordx4 {vr(64,4)}, v5, s[32:35], s36 offen{OSC}")
    a(f"buffer_store_dwordx4 {vr(68,4)}, v5, s[32:35], s36 offen offset:32{OSC}")
    if STAMP:
        a("s_waitcnt vmcnt(0)")
        stamp(a, 12); stamp_rt(a, 13); stamp_store(a, 16)
    if DBGT:
        a("s_waitcnt vmcnt(0)")
        dbgt(a, 11, True); dbgt(a, 12)
    a("s_endpgm")
    if QPF:
        a.label("L_qpf_out")
        qpf("c")
        a("s_branch L_qpf_back")
    a.label("L_flag_out")
    a("s_waitcnt vmcnt(0)")
    a(f"s_lshl_b32 s36, s10, {8+D2}")
    a(f"s_lshl_b32 s39, s11, {4+D2}")
    a("s_add_u32 s36, s36, s39")
    a(f"s_lshl_b32 s39, s14, {2+D2}")
    a("s_add_u32 s36, s36, s39")
    a(f"s_add_u32 s36, s36, {FLG_OFF}")
    a("v_mov_b32 v4, s36")
    a("v_mov_b32 v5, s46")
    a("s_mov_b64 exec, 1")
    a("buffer_store_dword v5, v4, s[24:27], 0 offen sc1")
    a("s_mov_b64 exec, -1")
    a("s_branch L_flag_back")
    a.label("L_at_slow")
    X = S[0]; PX = P[0]
    a(f"v_mov_b32 v{M}, 0xff800000")
    a(f"v_mov_b32 v{L}, 0")
    for r in range(16): a(f"v_mov_b32 v{O+r}, 0")
    a("s_lshl_b32 s36, s17, 18")
    a("s_mov_b32 s47, 0")
    a.label("L_at_slow_loop")
    a(f"buffer_load_dwordx4 {vr(K,4)}, v3, s[24:27], s36 offen sc1")
    a(f"buffer_load_dwordx4 {vr(K+4,4)}, v3, s[24:27], s36 offen offset:1024 sc1")
    a(f"buffer_load_dwordx4 {vr(V,4)}, v3, s[24:27], s36 offen offset:2048 sc1")
    a(f"buffer_load_dwordx4 {vr(V+4,4)}, v3, s[24:27], s36 offen offset:3072 sc1")
    a("s_waitcnt vmcnt(0)")
    a(f"v_mfma_f32_32x32x16_bf16 {vr(X,16)}, {vr(K,4)}, {vr(Q,4)}, 0")
    a(f"v_mfma_f32_32x32x16_bf16 {vr(X,16)}, {vr(K+4,4)}, {vr(Q+4,4)}, {vr(X,16)}")
    a("s_nop 15"); a("s_nop 3")
    a(f"v_max_f32 v4, v{X}, v{X+1}")
    for r in range(2, 16): a(f"v_max_f32 v4, v4, v{X+r}")
    a("v_mov_b32 v5, v4")
    a("s_nop 1")
    a("v_permlane32_swap_b32 v4, v5")
    a("s_nop 1")
    a("v_max_f32 v4, v4, v5")
    a(f"v_max_f32 v4, v4, v{M}")
    a(f"v_sub_f32 v5, v{M}, v4")
    a("v_exp_f32 v5, v5")
    a(f"v_mov_b32 v{M}, v4")
    for r in range(16): a(f"v_sub_f32 v{X+r}, v{X+r}, v4")
    for r in range(16): a(f"v_exp_f32 v{X+r}, v{X+r}")
    a("s_nop 0")
    for r in range(8): a(f"v_cvt_pk_bf16_f32 v{PX+r}, v{X+2*r}, v{X+2*r+1}")
    a(f"v_mul_f32 v{L}, v{L}, v5")
    for r in range(16): a(f"v_mul_f32 v{O+r}, v{O+r}, v5")
    for r in range(8):
        a(f"v_lshlrev_b32 v6, 16, v{PX+r}")
        a(f"v_and_b32 v7, 0xffff0000, v{PX+r}")
        a(f"v_add_f32 v{L}, v{L}, v6")
        a(f"v_add_f32 v{L}, v{L}, v7")
    a("s_nop 1")
    a(f"v_mfma_f32_32x32x16_bf16 {vr(O,16)}, {vr(V,4)}, {vr(PX,4)}, {vr(O,16)}")
    a(f"v_mfma_f32_32x32x16_bf16 {vr(O,16)}, {vr(V+4,4)}, {vr(PX+4,4)}, {vr(O,16)}")
    a("s_nop 15"); a("s_nop 3")
    a("s_add_u32 s36, s36, 4096")
    a("s_add_u32 s47, s47, 1")
    a("s_cmp_lt_u32 s47, 64")
    a("s_cbranch_scc1 L_at_slow_loop")
    a(f"v_mov_b32 v5, v{L}")
    a(f"v_mov_b32 v4, v{L}")
    a("s_nop 1")
    a("v_permlane32_swap_b32 v4, v5")
    a("s_nop 1")
    a(f"v_add_f32 v{L}, v4, v5")
    a("s_branch L_at_fin")
    a.label("L_end")
    a("s_endpgm")
    return a.text()

HEADER = """; Fused multi-head attention: QKV projection -> softmax attention -> output projection, one persistent launch.
; @launch grid=(256,1,1) block=(512,1,1) lds=163840
"""
def main(out):
    vg = 256 if (STAMP or DBGT) else 244
    sg = 96 if (STAMP or DBGT) else 64
    txt = HEADER + '.amdgcn_target "amdgcn-amd-amdhsa--gfx950"\n.text\n' + gen()
    txt += f""".section .rodata,"a"
.p2align 6
.amdhsa_kernel {KNAME}
  .amdhsa_next_free_vgpr {vg}
  .amdhsa_next_free_sgpr {sg}
  .amdhsa_accum_offset {(vg+3)//4*4}
  .amdhsa_group_segment_fixed_size 0
  .amdhsa_kernarg_size 48
  .amdhsa_user_sgpr_count 2
  .amdhsa_user_sgpr_kernarg_segment_ptr 1
  .amdhsa_system_sgpr_workgroup_id_x 1
.end_amdhsa_kernel
"""
    open(out, "w").write(txt)
if __name__ == "__main__":
    main(sys.argv[1] if len(sys.argv) > 1 else "cdna_kernels/%s.s" % NAME)
```

```python
import sys, os, struct
NAME = "standalone__softmax_full_mha__prompt"
KNAME = NAME + "_kernel"
E = lambda k, d=0: int(os.environ.get(k, str(d)))
STAMP = E("STAMP")
KVSC = "" if E("PLAINKV", 0) else " sc1"
OLSC = "" if E("PLAINO", 0) else " sc1"
STAMP_OFF = 32 << 20

class A:
    def __init__(self): self.l = []
    def __call__(self, s): self.l.append("    " + s)
    def label(self, s): self.l.append(s + ":")
    def raw(self, s): self.l.append(s)
    def text(self): return "\n".join(self.l) + "\n"
def vr(b, n=1): return f"v{b}" if n == 1 else f"v[{b}:{b+n-1}]"
def f32bits(x): return struct.unpack('<I', struct.pack('<f', x))[0]

class Lgkm:
    def __init__(self, a): self.a = a; self.q = []
    def issue(self, tag): self.q.append(tag)
    def need(self, tags):
        idx = -1
        for i, t in enumerate(self.q):
            if t in tags: idx = i
        if idx < 0: return
        n = len(self.q) - 1 - idx
        assert n <= 15
        self.a(f"s_waitcnt lgkmcnt({n})")
        self.q = self.q[idx+1:]
    def all(self):
        if self.q:
            self.a("s_waitcnt lgkmcnt(0)")
            self.q = []

KVF_OFF = 0
OF_OFF  = 8 << 20
FSH = E("FSH", 7)
D2 = FSH - 2
G_OFF = (12 << 20) + (1024 << FSH)
FLG_OFF = 12 << 20
WS_USED = 13 << 20
QSCALE = 0.17677669529663687 * 1.4426950408889634
G1_NSLOT = 4; G1_SLOT = 40960
AT_SLOT = 32768
QX_OFF = 131072
AT_R = 4
WO_LDS = 0
CNT_OFF = 147456 + 64
SCR_OFF = 147456 + 1024
XCH_OFF = 131072
EP_OFF = 147456
POLL_MAX = 40000

def stamp(a, k):
    if STAMP:
        a(f"s_memtime s[{60+2*k}:{61+2*k}]"); a("s_waitcnt lgkmcnt(0)")
def stamp_rt(a, k):
    if STAMP:
        a(f"s_memrealtime s[{60+2*k}:{61+2*k}]"); a("s_waitcnt lgkmcnt(0)")
def stamp_store(a, n):
    if STAMP:
        a(f"s_lshl_b32 s58, s2, 3"); a(f"s_add_u32 s58, s58, s14"); a(f"s_lshl_b32 s58, s58, 7")
        a(f"s_add_u32 s58, s58, {STAMP_OFF}")
        a(f"s_add_u32 s56, s8, s58"); a(f"s_addc_u32 s57, s9, 0")
        a("v_mov_b32 v254, 0")
        for k in range(n):
            a(f"v_mov_b32 v255, s{60+2*k}")
            a(f"global_store_dword v254, v255, s[56:57] offset:{4*k}")
        a("s_waitcnt vmcnt(0)")

DBGT = E("DBGT")
DSLOT = {1:0, 13:1, 3:2, 5:3, 7:4, 9:5, 11:6}
def dbgt(a, slot, neg=False):
    if DBGT and neg:
        i = DSLOT[slot]
        a(f"s_memrealtime s[{60+2*i}:{61+2*i}]")
        a("s_waitcnt lgkmcnt(0)")
        if slot == 11:
            a(f"s_and_b32 s92, s2, 0x7f")
            a("s_cmp_eq_u32 s92, 0")
            a("s_cbranch_scc0 L_dbg_skip")
            a("s_cmp_eq_u32 s14, 4")
            a("s_cbranch_scc0 L_dbg_skip")
            a("s_lshr_b32 s92, s2, 7")
            a("s_mul_i32 s92, s92, 28")
            a("v_mov_b32 v251, s92")
            for k in range(7):
                a(f"v_mov_b32 v250, s{60+2*k}")
                a(f"global_store_dword v251, v250, s[90:91] offset:{4+4*k}")
            a.label("L_dbg_skip")

def srd(a, d, plo, off, nrec):
    if off is None:
        a(f"s_mov_b32 s{d}, s{plo}"); a(f"s_mov_b32 s{d+1}, s{plo+1}")
    else:
        a(f"s_add_u32 s{d}, s{plo}, {off}"); a(f"s_addc_u32 s{d+1}, s{plo+1}, 0")
    a(f"s_mov_b32 s{d+2}, {nrec}"); a(f"s_mov_b32 s{d+3}, 0x20000")

def poll(a, name, voff, mask=None):
    a(f"s_mov_b32 s47, 0")
    a.label(f"L_poll_{name}")
    a(f"buffer_load_dword v5, v{voff}, s[24:27], 0 offen sc1")
    a("s_waitcnt vmcnt(0)")
    a("v_cmp_ne_u32 vcc, s46, v5")
    a("s_add_u32 s47, s47, 1")
    if mask is not None: a(f"s_and_b64 vcc, vcc, s[{mask}:{mask+1}]")
    a("s_cmp_eq_u64 vcc, 0")
    a(f"s_cbranch_scc1 L_poll_{name}_done")
    a(f"s_cmp_ge_u32 s47, {POLL_MAX}")
    a(f"s_cbranch_scc1 L_poll_{name}_done")
    a("s_sleep 1")
    a(f"s_branch L_poll_{name}")
    a.label(f"L_poll_{name}_done")

def gen():
    a = A()
    a.raw(f".globl {KNAME}\n.p2align 8\n.type {KNAME},@function\n{KNAME}:")
    a("s_cmp_ge_u32 s2, 256")
    a("s_cbranch_scc1 L_end")
    a("s_load_dwordx4 s[4:7], s[0:1], 0")
    a("s_load_dwordx2 s[8:9], s[0:1], 40")
    a("s_load_dwordx4 s[40:43], s[0:1], 16")
    a("s_load_dwordx2 s[44:45], s[0:1], 32")
    a("s_and_b32 s12, s2, 7")
    a("s_lshr_b32 s11, s2, 3")
    a("s_mov_b32 s13, 0")
    if E("MAP", 2) == 0:
        a("s_lshr_b32 s10, s12, 1")
        a("s_lshl_b32 s10, s10, 2")
        a("s_and_b32 s16, s11, 3")
        a("s_add_u32 s10, s10, s16")
        a("s_lshr_b32 s11, s11, 2")
        a("s_and_b32 s12, s12, 1")
        a("s_lshl_b32 s12, s12, 3")
        a("s_add_u32 s11, s11, s12")
    elif E("MAP", 2) == 2:
        a("s_lshl_b32 s10, s12, 1")
        a("s_and_b32 s16, s11, 1")
        a("s_add_u32 s10, s10, s16")
        a("s_lshr_b32 s11, s11, 1")
    else:
        a("s_and_b32 s10, s12, 1")
        a("s_lshl_b32 s10, s10, 3")
        a("s_and_b32 s16, s11, 7")
        a("s_add_u32 s10, s10, s16")
        a("s_lshr_b32 s11, s11, 3")
        a("s_lshr_b32 s12, s12, 1")
        a("s_lshl_b32 s12, s12, 2")
        a("s_add_u32 s11, s11, s12")
    a("v_lshrrev_b32 v1, 6, v0")
    a("v_and_b32 v2, 63, v0")
    a("v_lshlrev_b32 v3, 4, v2")
    a("v_readfirstlane_b32 s14, v1")
    a("s_waitcnt lgkmcnt(0)")
    stamp_rt(a, 0); stamp(a, 1)
    if DBGT:
        a("s_mov_b32 s90, s44"); a("s_mov_b32 s91, s45")
    dbgt(a, 1, True); dbgt(a, 2)
    srd(a, 24, 8, None, WS_USED)
    ONES = 224; IDX = 228; VLO = 229; VHI = 230; VONE = 231; VCA = 232; VCR = 233; VCV = 234; VD0 = 235; VB = VLO
    def at_consts():
        a("s_lshr_b32 s50, s14, 2")
        a("s_and_b32 s51, s14, 3")
        a("s_lshl_b32 s52, s50, 12")
        a(f"v_add_u32 v{VLO}, s52, v3")
        a(f"v_add_u32 v{VHI}, 65536, v{VLO}")
        a("v_and_b32 v4, 6, v2")
        a("v_mov_b32 v5, 0x3f803f80")
        a("v_cmp_eq_u32 vcc, 0, v4")
        a("s_lshl_b32 s52, s51, 12")
        a(f"v_mov_b32 v{VONE}, 1")
        a(f"v_cndmask_b32 v{ONES}, 0, v5, vcc")
        a(f"v_cndmask_b32 v{ONES+1}, 0, v5, vcc")
        a("v_cmp_eq_u32 vcc, 4, v4")
        for q in range(2): a(f"v_add_u32 v{VD0+q}, s52, v3")
        a(f"v_cndmask_b32 v{ONES+2}, 0, v5, vcc")
        a(f"v_cndmask_b32 v{ONES+3}, 0, v5, vcc")
        a("v_and_b32 v4, 1, v2")
        a("v_mov_b32 v5, 0x44444444")
        a("v_mov_b32 v7, 0xeeeeeeee")
        a("v_cmp_eq_u32 vcc, 0, v4")
        for q in range(2, 4): a(f"v_add_u32 v{VD0+q}, s52, v3")
        a(f"v_cndmask_b32 v{IDX}, v7, v5, vcc")
        a("s_lshl_b32 s52, s50, 2")
        a(f"s_add_u32 s52, s52, {CNT_OFF}")
        a(f"v_mov_b32 v{VCR}, s52")
        a("s_lshl_b32 s52, s14, 8")
        a(f"s_add_u32 s52, s52, {SCR_OFF}")
        a("v_lshlrev_b32 v4, 2, v2")
        a(f"v_add_u32 v{VCA}, s52, v4")
        a("v_cmp_eq_u32 vcc, 0, v2")
        a(f"s_lshl_b32 s52, s10, {8+D2}")
        a(f"s_add_u32 s52, s52, {FLG_OFF}")
        a(f"v_cndmask_b32 v{VCA}, v{VCA}, v{VCR}, vcc")
        a(f"v_lshlrev_b32 v239, {FSH}, v2")
        a("v_add_u32 v239, s52, v239")
    a("s_cmp_lt_u32 s14, 4")
    a("s_cbranch_scc1 L_g1_compute")
    a("s_sub_u32 s15, s14, 4")
    a("s_lshl_b32 s16, s11, 18")
    a("s_sub_u32 s17, 0x400000, s16")
    a("s_add_u32 s28, s4, s16"); a("s_addc_u32 s29, s5, 0"); a("s_mov_b32 s30, s17"); a("s_mov_b32 s31, 0x20000")
    a("s_lshl_b32 s16, s10, 7")
    a("s_sub_u32 s17, 0x600000, s16")
    a("s_add_u32 s32, s6, s16"); a("s_addc_u32 s33, s7, 0"); a("s_mov_b32 s34, s17"); a("s_mov_b32 s35, 0x20000")
    a("v_lshrrev_b32 v4, 3, v2")
    a("v_lshlrev_b32 v5, 11, v4")
    a("v_and_b32 v6, 7, v2")
    a("v_lshrrev_b32 v7, 4, v2")
    a("v_xor_b32 v8, v6, v7")
    a("v_lshlrev_b32 v8, 4, v8")
    a("v_add_u32 v5, v5, v8")
    a("s_lshl_b32 s16, s15, 16")
    a("v_add_u32 v10, s16, v5")
    a("v_xor_b32 v11, 64, v10")
    a("v_mul_u32_u24 v5, 6144, v4")
    a("v_and_b32 v7, 1, v7")
    a("v_lshlrev_b32 v7, 2, v7")
    a("v_xor_b32 v8, v6, v7")
    a("v_lshlrev_b32 v8, 4, v8")
    a("v_add_u32 v5, v5, v8")
    a("s_mul_i32 s16, s15, 98304")
    a("v_add_u32 v12, s16, v5")
    a("s_lshl_b32 s18, s15, 12")
    a("s_lshl_b32 s19, s15, 11")
    a("s_add_u32 s19, s19, 16384")
    a("s_mov_b32 s20, s13")
    a("s_mov_b32 s36, 0")
    if E("X0PF", 0):
        a("s_and_b32 s36, s10, 1")
        a("s_lshl_b32 s36, s36, 6")
        a("v_add_u32 v13, s36, v2")
        a("v_lshlrev_b32 v13, 11, v13")
        a("s_lshl_b32 s36, s15, 7")
        a("buffer_load_dword v16, v13, s[28:31], s36 offen")
        a("s_mov_b32 s36, 0")
        a("s_waitcnt vmcnt(0)")
    first = [True]
    XPF = E("XPF", 0)
    NV = 11 if XPF else 10
    if XPF:
        a("v_and_b32 v13, 15, v2")
        a("s_and_b32 s36, s10, 1")
        a("s_lshl_b32 s36, s36, 2")
        a("s_add_u32 s36, s36, s15")
        a("s_lshl_b32 s36, s36, 4")
        a("v_add_u32 v13, s36, v13")
        a("v_lshlrev_b32 v13, 11, v13")
        a("s_mov_b32 s36, 0")
    if E("DIAG1"): stamp(a, 4)
    def issue_stage():
        a("s_lshl_b32 s21, s20, 7")
        a("s_mul_i32 s22, s20, 393216")
        a("s_add_u32 s37, s36, s18")
        a("s_add_u32 s39, s36, s19")
        for i in range(4):
            a(f"s_add_u32 m0, s37, {i*1024}")
            a(f"s_add_u32 s38, s21, {i*16384}")
            a(f"buffer_load_dwordx4 v{10+(i&1)}, s[28:31], s38 offen lds")
            if E("DIAG1") and first[0] and i in (0, 3): stamp(a, 5 if i == 0 else 6)
        for t in range(3):
            for kb in range(2):
                a(f"s_add_u32 m0, s39, {t*8192+kb*1024}")
                a(f"s_add_u32 s38, s22, {t*2048+kb*49152}")
                a(f"buffer_load_dwordx4 v12, s[32:35], s38 offen lds")
                if E("DIAG1") and first[0] and kb == 0 and t == 0: stamp(a, 7)
        first[0] = False
        if XPF:
            a(f"s_add_u32 s38, s20, {XPF}")
            a("s_lshl_b32 s37, s38, 7")
            a("s_cmp_lt_u32 s38, 16")
            a("s_cselect_b32 s38, s37, 0x7ff00000")
            a("buffer_load_dword v16, v13, s[28:31], s38 offen")
        a("s_add_u32 s20, s20, 1")
        a("s_and_b32 s20, s20, 15")
        a(f"s_add_u32 s36, s36, {G1_SLOT}")
        a(f"s_cmp_eq_u32 s36, {G1_SLOT*G1_NSLOT}")
        a("s_cselect_b32 s36, 0, s36")
    issue_stage()
    stamp(a, 2)
    issue_stage()
    a(f"s_waitcnt vmcnt({NV})")
    stamp(a, 3)
    a("s_barrier")
    if E("DIAG1"):
        a("s_waitcnt vmcnt(0)"); stamp(a, 8); stamp_rt(a, 13); stamp_store(a, 16); a("s_endpgm")
    dbgt(a, 13, True); dbgt(a, 14)
    LA = E("LA", 3)
    if LA == 3:
        issue_stage()
        a("s_mov_b32 s23, 0")
        a.label("L_g1_ldloop")
        a(f"s_waitcnt vmcnt({NV})")
        a("s_barrier")
        issue_stage()
        a("s_add_u32 s23, s23, 1")
        a("s_cmp_lt_u32 s23, 13")
        a("s_cbranch_scc1 L_g1_ldloop")
        for k in range(3):
            a(f"s_waitcnt vmcnt({NV if k == 0 else 0})")
            a("s_barrier")
    else:
        issue_stage(); issue_stage()
        for k in range(3):
            a(f"s_waitcnt vmcnt({2*NV})")
            a("s_barrier")
            issue_stage()
        a("s_mov_b32 s23, 3")
        a.label("L_g1_ldloop")
        a(f"s_waitcnt vmcnt({NV*(G1_NSLOT-2)})")
        a("s_barrier")
        issue_stage()
        a("s_add_u32 s23, s23, 1")
        a(f"s_cmp_lt_u32 s23, {16-G1_NSLOT}")
        a("s_cbranch_scc1 L_g1_ldloop")
        for k in range(G1_NSLOT):
            a(f"s_waitcnt vmcnt({NV*max(0, G1_NSLOT-2-k)})")
            a("s_barrier")
    if E("DIAG5"): a("s_endpgm")
    at_consts()
    a("s_branch L_g1_done")
    a.label("L_g1_compute")
    ACC = 128; SETS = [64, 84]; XA = 104; WA = 108
    QPF = E("QPF", 1)
    NSH = {2: 16, 0: 8, 1: 4}[E("MAP", 2)]
    def qpf(tag):
        a("s_cmp_eq_u32 s14, 3")
        a(f"s_cbranch_scc1 L_qpf_x{tag}")
        a("s_cmp_eq_u32 s14, 0")
        a(f"s_cbranch_scc0 L_qpf_done{tag}")
        a("global_load_dword v16, v14, s[6:7]")
        a("v_add_u32 v14, 1572864, v14")
        if NSH == 8:
            a("global_load_dword v16, v15, s[6:7]")
            a("v_add_u32 v15, 1572864, v15")
        a(f"s_branch L_qpf_done{tag}")
        a.label(f"L_qpf_x{tag}")
        a("global_load_dwordx4 v[16:19], v14, s[4:5]")
        a("v_add_u32 v13, 4096, v14")
        a("global_load_dwordx4 v[16:19], v15, s[4:5]")
        a("global_load_dwordx4 v[16:19], v13, s[4:5]")
        a("v_add_u32 v13, 4096, v15")
        a("v_add_u32 v14, 512, v14")
        a("global_load_dwordx4 v[16:19], v13, s[4:5]")
        a("v_add_u32 v15, 512, v15")
        a.label(f"L_qpf_done{tag}")
    if QPF:
        a("s_cmp_eq_u32 s14, 3")
        a("s_cbranch_scc1 L_qpf_setx")
        def wline(dst, lane0, nl):
            a(f"v_min_u32 v{dst}, {nl-1}, v2")
            a(f"s_and_b32 s16, s11, {NSH-1}")
            a(f"s_mul_i32 s16, s16, {768//NSH}")
            a(f"s_add_u32 s16, s16, {lane0}")
            a(f"v_add_u32 v{dst}, s16, v{dst}")
            a("s_mov_b32 s17, 0x5556")
            a(f"v_mul_u32_u24 v12, s17, v{dst}")
            a("v_lshrrev_b32 v12, 16, v12")
            a("v_mul_u32_u24 v13, 3, v12")
            a(f"v_sub_u32 v13, v{dst}, v13")
            a(f"v_mul_u32_u24 v{dst}, 6144, v12")
            a("v_lshlrev_b32 v13, 11, v13")
            a(f"v_add_u32 v{dst}, v{dst}, v13")
            a("s_lshl_b32 s16, s10, 7")
            a(f"v_add_u32 v{dst}, s16, v{dst}")
        if NSH == 16:
            wline(14, 0, 48); a("v_mov_b32 v15, v14")
        else:
            wline(14, 0, 64); wline(15, 64, 32)
        a("s_branch L_qpf_set")
        a.label("L_qpf_setx")
        a("v_lshrrev_b32 v14, 5, v2")
        a("v_lshlrev_b32 v14, 11, v14")
        a("v_and_b32 v15, 31, v2")
        a("v_lshlrev_b32 v15, 4, v15")
        a("v_add_u32 v14, v14, v15")
        a("s_lshl_b32 s16, s2, 14")
        a("v_add_u32 v14, s16, v14")
        a("v_add_u32 v15, 8192, v14")
        a.label("L_qpf_set")
        qpf("a")
    a("s_cmp_eq_u32 s14, 0")
    a("s_cbranch_scc0 L_nocas")
    a("v_mov_b32 v243, 0")
    a("s_cmp_eq_u32 s2, 0")
    a("s_cbranch_scc0 L_nocas")
    a("s_memrealtime s[16:17]")
    a("s_waitcnt lgkmcnt(0)")
    a("s_or_b32 s16, s16, 1")
    a("v_mov_b32 v240, s16")
    a("s_mov_b64 exec, 1")
    a("global_store_dword v243, v240, s[44:45] sc1")
    a("s_mov_b64 exec, -1")
    a.label("L_nocas")
    a("s_lshl_b32 s16, s2, 13")
    a("s_lshl_b32 s17, s14, 11")
    a("s_add_u32 s16, s16, s17")
    a("v_add_u32 v4, s16, v3")
    a("global_load_dwordx4 v[16:19], v4, s[40:41]")
    a("global_load_dwordx4 v[16:19], v4, s[40:41] offset:1024")
    a("s_getpc_b64 s[16:17]")
    a.label("L_pc")
    a("s_sub_u32 s16, s16, L_pc-" + KNAME)
    a("s_subb_u32 s17, s17, 0")
    a("v_lshlrev_b32 v4, 7, v2")
    a("s_lshl_b32 s18, s14, 13")
    a("v_add_u32 v4, s18, v4")
    a("v_cmp_gt_u32 vcc, L_end-" + KNAME + ", v4")
    a("s_and_saveexec_b64 s[18:19], vcc")
    a("s_cbranch_execz L_nocode")
    a("global_load_dword v16, v4, s[16:17]")
    a.label("L_nocode")
    a("s_mov_b64 exec, s[18:19]")
    a("s_lshr_b32 s15, s14, 1")
    a("s_and_b32 s16, s14, 1")
    a("v_and_b32 v4, 31, v2")
    a("s_lshl_b32 s17, s15, 6")
    a("v_add_u32 v4, s17, v4")
    a("v_lshlrev_b32 v4, 7, v4")
    a("v_lshrrev_b32 v5, 1, v2")
    a("v_and_b32 v5, 7, v5")
    a("v_lshrrev_b32 v6, 5, v2")
    a("v_xor_b32 v5, v5, v6")
    for ks in range(4):
        a(f"v_xor_b32 v7, {2*ks}, v5")
        a(f"v_lshlrev_b32 v7, 4, v7")
        a(f"v_add_u32 v{XA+ks}, v4, v7")
    a("v_and_b32 v7, 15, v2")
    a("v_lshrrev_b32 v7, 2, v7")
    a("v_lshlrev_b32 v8, 3, v6")
    a("v_add_u32 v8, v8, v7")
    a("v_lshlrev_b32 v8, 7, v8")
    a("v_lshrrev_b32 v9, 4, v2")
    a("v_and_b32 v9, 1, v9")
    a("v_lshlrev_b32 v9, 1, v9")
    a("v_and_b32 v10, 3, v2")
    a("v_lshrrev_b32 v11, 1, v10")
    a("v_add_u32 v9, v9, v11")
    a("s_lshl_b32 s17, s16, 2")
    a("v_add_u32 v9, s17, v9")
    a("v_lshrrev_b32 v11, 1, v7")
    a("v_lshlrev_b32 v11, 2, v11")
    a("v_xor_b32 v9, v9, v11")
    a("v_lshlrev_b32 v9, 4, v9")
    a("v_add_u32 v8, v8, v9")
    a("v_and_b32 v10, 1, v10")
    a("v_lshlrev_b32 v10, 3, v10")
    a("v_add_u32 v8, v8, v10")
    a(f"v_add_u32 v{WA}, 16384, v8")
    for r in range(96): a(f"v_mov_b32 v{ACC+r}, 0")
    if E("PREF", 0):
        a("s_lshl_b32 s19, s2, 14")
        a("s_lshl_b32 s17, s14, 12")
        a("s_add_u32 s19, s19, s17")
        a("v_add_u32 v4, s19, v3")
        for q in range(4): a(f"global_load_dwordx4 v[{16+4*q}:{19+4*q}], v4, s[4:5] offset:{q*1024}")
        a("s_mul_i32 s19, s2, 24576")
        a("s_mul_i32 s17, s14, 6144")
        a("s_add_u32 s19, s19, s17")
        a("v_add_u32 v4, s19, v3")
        for q in range(4): a(f"global_load_dwordx4 v[{32+4*q}:{35+4*q}], v4, s[6:7] offset:{q*1024}")
        a("v_add_u32 v4, 4096, v4")
        for q in range(2): a(f"global_load_dwordx4 v[{48+4*q}:{51+4*q}], v4, s[6:7] offset:{q*1024}")
    at_consts()
    a("s_lshl_b32 s17, s10, 1")
    a("s_add_u32 s17, s17, s16")
    a("s_lshl_b32 s19, s11, 2")
    a("s_lshl_b32 s20, s15, 1")
    a("s_add_u32 s19, s19, s20")
    a("s_lshl_b32 s20, s17, 6")
    a("s_add_u32 s20, s20, s19")
    a("s_lshl_b32 s48, s20, 12")
    a("s_lshl_b32 s20, s15, 14")
    a("s_lshl_b32 s21, s16, 12")
    a("s_add_u32 s20, s20, s21")
    a("v_add_u32 v57, s20, v3")
    a("s_lshl_b32 s20, s16, 2")
    a("s_lshl_b32 s21, s15, 1")
    a("s_add_u32 s20, s20, s21")
    a("s_lshl_b32 s20, s20, 11")
    a(f"s_add_u32 s20, s20, {QX_OFF}")
    a("v_add_u32 v58, s20, v3")
    a(f"s_mov_b32 s23, {f32bits(QSCALE)}")
    a("s_mov_b32 s18, 0")
    a(f"s_mov_b32 s21, {-(G1_NSLOT-1)*G1_SLOT & 0xffffffff}")
    a(f"s_mov_b32 s22, {G1_SLOT}")
    a("s_barrier")
    if E("DIAG1"):
        a("s_waitcnt vmcnt(0)"); a("s_endpgm")
    stamp(a, 2)
    a("v_mov_b32 v243, 0")
    a("global_load_dword v242, v243, s[44:45] sc1")
    if QPF: qpf("b")
    lg = Lgkm(a)
    def reads(setb, ks, tagp):
        x0, x1, w0, w1, w2 = setb, setb+4, setb+8, setb+12, setb+16
        return [(tagp+"x0", f"ds_read_b128 {vr(x0,4)}, v{XA+ks}"),
                (tagp+"w0", f"ds_read_b64_tr_b16 {vr(w0,2)}, v{WA} offset:{ks*2048}"),
                (tagp+"w0", f"ds_read_b64_tr_b16 {vr(w0+2,2)}, v{WA} offset:{ks*2048+512}"),
                (tagp+"x1", f"ds_read_b128 {vr(x1,4)}, v{XA+ks} offset:4096"),
                (tagp+"w1", f"ds_read_b64_tr_b16 {vr(w1,2)}, v{WA} offset:{8192+ks*2048}"),
                (tagp+"w1", f"ds_read_b64_tr_b16 {vr(w1+2,2)}, v{WA} offset:{8192+ks*2048+512}"),
                (tagp+"w2", f"ds_read_b64_tr_b16 {vr(w2,2)}, v{WA} offset:{16384+ks*2048}"),
                (tagp+"w2", f"ds_read_b64_tr_b16 {vr(w2+2,2)}, v{WA} offset:{16384+ks*2048+512}")]
    def mfma(setb, i, t):
        x = setb + 4*i; w = setb + 8 + 4*t; acc = ACC + 16*(i*3+t)
        if t < 2: return f"v_mfma_f32_32x32x16_bf16 {vr(acc,16)}, {vr(w,4)}, {vr(x,4)}, {vr(acc,16)}"
        return f"v_mfma_f32_32x32x16_bf16 {vr(acc,16)}, {vr(x,4)}, {vr(w,4)}, {vr(acc,16)}"
    for tag, ins in reads(SETS[0], 0, "A"):
        a(ins); lg.issue(tag)
    a.raw(".p2align 6")
    a.label("L_g1_loop")
    order = [(0,1),(0,2),(1,1),(1,2),(0,0),(1,0)]
    needs = [["x0","w1"],["w2"],["x1"],[],["w0"],[]]
    def reads2(setb, ks, tagp):
        R = reads(setb, ks, tagp)
        return [R[0], R[4], R[5], R[6], R[7], R[3], R[1], R[2]]
    a.l = a.l[:-10]; lg.q = []
    for tag, ins in reads2(SETS[0], 0, "A"):
        a(ins); lg.issue(tag)
    a.raw(".p2align 6")
    a.label("L_g1_loop")
    for ks in range(4):
        cur = SETS[ks & 1]; nxt = SETS[(ks+1) & 1]
        cp = "AB"[ks & 1]; np_ = "AB"[(ks+1) & 1]
        if ks == 3:
            if not (E("NOLGALL", 0) and E("LA", 3) == 3): lg.all()
            a("s_add_u32 s18, s18, 1")
            if QPF:
                a("s_and_b32 s19, s18, 11")
                a("s_cmp_eq_u32 s19, 2")
                a("s_cbranch_scc1 L_qpf_out")
                a.label("L_qpf_back")
            a("s_and_b32 s19, s18, %d" % (G1_NSLOT-1))
            a("s_cmp_eq_u32 s19, 0")
            a("s_cselect_b32 s20, s21, s22")
            for k in range(4): a(f"v_add_u32 v{XA+k}, s20, v{XA+k}")
            a(f"v_add_u32 v{WA}, s20, v{WA}")
            a("s_barrier")
            if E("DIAG5"):
                a("s_memtime s[92:93]"); a("s_waitcnt lgkmcnt(0)")
                a("s_mov_b32 m0, s18")
                a("s_movreld_b32 s64, s92")
        R = reads2(nxt, (ks+1) & 3, np_)
        slots = [[], R[0:2], R[2:4], R[4:6], R[6:8], []]
        for k in range(6):
            for tag, ins in slots[k]:
                a(ins); lg.issue(tag)
            lg.need([cp+t for t in needs[k]])
            a(mfma(cur, *order[k]))
    a("s_cmp_lt_u32 s18, 16")
    a("s_cbranch_scc1 L_g1_loop")
    if E("DIAG4"): a("s_endpgm")
    if E("DIAG5"):
        a("s_lshl_b32 s58, s2, 3"); a("s_add_u32 s58, s58, s14"); a("s_lshl_b32 s58, s58, 7")
        a(f"s_add_u32 s58, s58, {STAMP_OFF}")
        a("s_add_u32 s56, s8, s58"); a("s_addc_u32 s57, s9, 0")
        a("v_mov_b32 v254, 0")
        a("v_mov_b32 v255, s62"); a("global_store_dword v254, v255, s[56:57]")
        a("v_mov_b32 v255, s64"); a("global_store_dword v254, v255, s[56:57] offset:4")
        for k in range(1, 17):
            a(f"v_mov_b32 v255, s{64+k}"); a(f"global_store_dword v254, v255, s[56:57] offset:{4+4*k}")
        a("s_waitcnt vmcnt(0)"); a("s_endpgm")
    a("s_waitcnt lgkmcnt(0) vmcnt(0)")
    stamp(a, 3)
    a("s_nop 11")
    T = 64
    n = 0
    for i in range(2):
        for t in (1, 2):
            acc = ACC + 16*(i*3+t); base = T + 8*(n % 4); n += 1
            for r in range(8): a(f"v_cvt_pk_bf16_f32 v{base+r}, v{acc+2*r}, v{acc+2*r+1}")
            o = i*4096 + (t-1)*2048
            a(f"s_add_u32 s28, s48, {o}")
            KVST = {0: " sc1", 1: "", 2: " sc0 sc1", 3: " sc1 nt"}[E("KVST", 0)]
            a(f"buffer_store_dwordx4 {vr(base,4)}, v3, s[24:27], s28 offen{KVST}")
            a(f"buffer_store_dwordx4 {vr(base+4,4)}, v3, s[24:27], s28 offen offset:1024{KVST}")
            a(f"ds_write_b128 v57, {vr(base,4)} offset:{i*8192+(t-1)*2048}")
            a(f"ds_write_b128 v57, {vr(base+4,4)} offset:{i*8192+(t-1)*2048+1024}")
    for i in range(2):
        acc = ACC + 16*(i*3); base = 96 + 8*i
        for r in range(16): a(f"v_mul_f32 v{acc+r}, s23, v{acc+r}")
        for r in range(8): a(f"v_cvt_pk_bf16_f32 v{base+r}, v{acc+2*r}, v{acc+2*r+1}")
        a(f"ds_write_b128 v58, {vr(base,4)} offset:{i*2048}")
        a(f"ds_write_b128 v58, {vr(base+4,4)} offset:{i*2048+1024}")
    a("s_cmp_eq_u32 s14, 0")
    a("s_cbranch_scc0 L_noep")
    a("s_mov_b32 s19, 0")
    a.label("L_tag_spin")
    a("v_readfirstlane_b32 s20, v242")
    a("s_add_u32 s19, s19, 1")
    a("s_cmp_lg_u32 s20, 0")
    a("s_cbranch_scc1 L_tag_ok")
    a(f"s_cmp_ge_u32 s19, {POLL_MAX}")
    a("s_cbranch_scc1 L_tag_ok")
    a("s_sleep 1")
    a("global_load_dword v242, v243, s[44:45] sc1")
    a("s_waitcnt vmcnt(0)")
    a("s_branch L_tag_spin")
    a.label("L_tag_ok")
    a(f"v_mov_b32 v6, {EP_OFF}")
    a("s_mov_b64 exec, 1")
    a("ds_write_b32 v6, v242")
    a("v_mov_b32 v7, 0")
    a(f"ds_write_b64 v6, v[7:8] offset:64" if False else f"ds_write_b32 v6, v7 offset:64")
    a(f"ds_write_b32 v6, v7 offset:68")
    a("s_mov_b64 exec, -1")
    a.label("L_noep")
    a("s_waitcnt lgkmcnt(0)")
    a.label("L_g1_done")
    a("s_barrier")
    dbgt(a, 3, True); dbgt(a, 4)
    stamp(a, 4)
    Q, K, V = 8, 16, 24
    S = [32, 48]; P = [64, 72]; O = 80; L = 96; M = 107
    a("s_lshr_b32 s15, s14, 2")
    a("s_and_b32 s16, s14, 3")
    a("s_lshl_b32 s17, s10, 1")
    a("s_add_u32 s17, s17, s15")
    a("s_lshl_b32 s18, s11, 2")
    a("s_add_u32 s18, s18, s16")
    a("s_lshl_b32 s20, s14, 11")
    a(f"s_add_u32 s20, s20, {QX_OFF}")
    a("v_add_u32 v4, s20, v3")
    a(f"ds_read_b128 {vr(Q,4)}, v4")
    a(f"ds_read_b128 {vr(Q+4,4)}, v4 offset:1024")
    a(f"v_mov_b32 v6, {EP_OFF}")
    a("ds_read_b32 v6, v6")
    a(f"ds_read_b128 {vr(K,4)}, v{VLO}")
    a(f"ds_read_b128 {vr(K+4,4)}, v{VLO} offset:1024")
    for r in range(4): a(f"v_mov_b32 v{L+r}, 0")
    a("s_lshl_b32 s20, s17, 18")
    a("s_add_u32 s28, s8, s20"); a("s_addc_u32 s29, s9, 0"); a("s_mov_b32 s30, 262144"); a("s_mov_b32 s31, 0x20000")
    a("s_lshl_b32 s21, s16, 13")
    a("s_lshl_b32 s36, s15, 12")
    a("s_add_u32 s21, s21, s36")
    a("s_waitcnt lgkmcnt(0)")
    a("v_readfirstlane_b32 s46, v6")
    a(f"v_mfma_f32_32x32x16_bf16 {vr(S[0],16)}, {vr(K,4)}, {vr(Q,4)}, 0")
    a(f"v_mfma_f32_32x32x16_bf16 {vr(S[0],16)}, {vr(K+4,4)}, {vr(Q+4,4)}, {vr(S[0],16)}")
    lg = Lgkm(a)
    def ldsa(slot, t, f):
        off = slot*AT_SLOT + t*8192 + f*1024
        return f"v{VLO if off < 65536 else VHI} offset:{off & 0xffff}"
    a(f"ds_read_b128 {vr(K,4)}, {ldsa(0,1,0)}"); lg.issue("K")
    a(f"ds_read_b128 {vr(K+4,4)}, {ldsa(0,1,1)}"); lg.issue("K")
    a("s_nop 7")
    PRIO = E("PRIO", 1)
    def at_step(i, own, slot, tag=""):
        X = S[i & 1]; Y = S[(i+1) & 1]; PX = P[i & 1]; PY = P[(i+1) & 1]
        ex = lambda r: a(f"v_exp_f32 v{X+r}, v{X+r}")
        cv = lambda r: a(f"v_cvt_pk_bf16_f32 v{PX+r}, v{X+2*r}, v{X+2*r+1}")
        def kread():
            t = i + 2
            if own and t >= 4: return
            sl = slot if t < 4 else (slot+1) & 3
            a(f"ds_read_b128 {vr(K,4)}, {ldsa(sl, t % 4, 0)}"); lg.issue("K")
            a(f"ds_read_b128 {vr(K+4,4)}, {ldsa(sl, t % 4, 1)}"); lg.issue("K")
        def vread():
            a(f"ds_read_b128 {vr(V,4)}, {ldsa(slot, i, 2)}"); lg.issue("V")
            a(f"ds_read_b128 {vr(V+4,4)}, {ldsa(slot, i, 3)}"); lg.issue("V")
        def dma1(q):
            if own or E("DMAMODE", 1) == 0: return
            a(f"buffer_load_dwordx4 v{VD0+q}, s[28:31], s55 offen offset:{q*1024}{KVSC} lds")
        qk0 = f"v_mfma_f32_32x32x16_bf16 {vr(Y,16)}, {vr(K,4)}, {vr(Q,4)}, 0"
        qk1 = f"v_mfma_f32_32x32x16_bf16 {vr(Y,16)}, {vr(K+4,4)}, {vr(Q+4,4)}, {vr(Y,16)}"
        pv0 = f"v_mfma_f32_32x32x16_bf16 {vr(O,16)}, {vr(V,4)}, {vr(PY,4)}, {vr(O,16)}"
        pv1 = f"v_mfma_f32_32x32x16_bf16 {vr(O,16)}, {vr(V+4,4)}, {vr(PY+4,4)}, {vr(O,16)}"
        smf = f"v_smfmac_f32_16x16x64_bf16 {vr(L,4)}, {vr(ONES,4)}, {vr(PY,8)}, v{IDX}"
        if own and i == 1: pv0 = f"v_mfma_f32_32x32x16_bf16 {vr(O,16)}, {vr(V,4)}, {vr(PY,4)}, 0"
        nopv = own and i == 0
        if PRIO: a(f"s_setprio {3-i}")
        has_qk = not (own and i == 3)
        if own and i == E("FLAGSTEP", 2):
            a("s_cmp_lt_u32 s14, 4")
            a("s_cbranch_scc1 L_flag_out")
            a.label("L_flag_back")
        SCH = E("SCH", 1)
        if SCH == 0:
            if has_qk:
                lg.need(["K"]); a(qk0)
            ex(0); ex(1); ex(2); ex(3)
            if has_qk: a(qk1)
            if i == 2 and not own and not E("X_NOSYNC"):
                lg.need(["C"])
                a(f"v_readfirstlane_b32 s36, v{VCV}")
                ex(4)
                a("s_cmp_ge_u32 s36, s47")
                a(f"s_cbranch_scc0 L_cnt_spin{tag}")
                a.label(f"L_cnt_back{tag}")
                kread(); ex(5); cv(0); ex(6); cv(1)
            else:
                kread(); ex(4); ex(5); cv(0); ex(6); cv(1)
            lg.need(["V"])
            if i == 0 and not own and not E("X_NOSYNC"):
                a("s_waitcnt vmcnt(4)")
                a(f"ds_add_u32 v{VCA}, v{VONE}"); lg.issue("A")
            a(pv0); ex(7)
            if i == 2 and not own: a(f"s_add_u32 m0, s21, {((slot+3)&3)*AT_SLOT}")
            ex(8); cv(2)
            if i >= 2: dma1(2*(i-2))
            ex(9); cv(3)
            a(pv1)
            if i == 1 and not own and not E("X_NOSYNC"):
                a(f"ds_read_b32 v{VCV}, v{VCR}"); lg.issue("C")
            if i >= 2: dma1(2*(i-2)+1)
            ex(10); ex(11); cv(4); ex(12); cv(5)
            a(smf); vread(); ex(13); ex(14); cv(6); ex(15)
            if i == 3 and not own:
                a("s_add_u32 s55, s55, s56")
                cv(7)
                a("s_and_b32 s55, s55, s57")
                a("s_add_u32 s47, s47, 4")
            else:
                a("s_nop 0")
                cv(7)
        else:
            if E("INITORD", 0) and tag == "0" and i == 2 and not own:
                a("s_cmp_eq_u32 s47, 4")
                a("s_cbranch_scc0 L_io_nw2")
                if E("INITORD", 0) >= 2:
                    a("s_waitcnt vmcnt(0)")
                    if E("INITORD", 0) == 3:
                        a("s_and_b32 s36, s14, 3")
                        a("s_cmp_eq_u32 s36, 3")
                        a("s_cbranch_scc0 L_io_go")
                        a("v_cmp_ne_u32 vcc, s46, v5")
                        a("s_cmp_eq_u64 vcc, 0")
                        a("s_cbranch_scc1 L_io_go")
                        poll(a, "f2", 239)
                        a("s_mov_b32 s47, 4")
                        a.label("L_io_go")
                    if E("COMMON", 0):
                        a("s_cmp_le_u32 s11, 2")
                        a("s_cselect_b32 s36, 3, 2")
                    else:
                        a("s_add_u32 s36, s11, 3")
                        a("s_and_b32 s36, s36, 15")
                    a(f"s_add_u32 m0, s21, {3*AT_SLOT}")
                    a("s_lshl_b32 s36, s36, 14")
                    for q in range(4):
                        a(f"buffer_load_dwordx4 v{VD0+q}, s[28:31], s36 offen offset:{q*1024}{KVSC} lds")
                else:
                    a("s_waitcnt vmcnt(4)")
                a.label("L_io_nw2")
                a(f"ds_add_u32 v{VCA}, v113"); lg.issue("A2")
            if E("INITORD", 0) and tag == "0" and i == 3 and not own:
                a("v_mov_b32 v112, 1"); a("v_mov_b32 v113, 0")
            if has_qk:
                lg.need(["K"]); a(qk0)
            ex(0); ex(1); ex(2); ex(3)
            if has_qk: a(qk1)
            if i == 2 and not own and not E("X_NOSYNC"):
                lg.need(["C"])
                a(f"v_cmp_gt_u32 vcc, s47, v{VCV}")
                ex(4); ex(5)
                a(f"s_cbranch_vccnz L_cnt_spin{tag}")
                a.label(f"L_cnt_back{tag}")
                kread(); ex(6); ex(7)
            else:
                kread(); ex(4); ex(5); ex(6); ex(7)
            lg.need(["V"])
            if i == 0 and not own and not E("X_NOSYNC"):
                if E("INITORD", 0) and tag == "0":
                    a("s_cmp_eq_u32 s47, 4")
                    a("s_cbranch_scc1 L_io_nw0")
                    a("s_waitcnt vmcnt(4)")
                    a.label("L_io_nw0")
                    a(f"ds_add_u32 v{VCA}, v112"); lg.issue("A")
                else:
                    a("s_waitcnt vmcnt(4)")
                    a(f"ds_add_u32 v{VCA}, v{VONE}"); lg.issue("A")
            if not nopv: a(pv0)
            ex(8)
            if i == 2 and not own: a(f"s_add_u32 m0, s21, {((slot+3)&3)*AT_SLOT}")
            ex(9)
            if i >= 2: dma1(2*(i-2))
            ex(10); ex(11)
            if not nopv: a(pv1)
            if i == 1 and not own and not E("X_NOSYNC"):
                a(f"ds_read_b32 v{VCV}, v{VCR}"); lg.issue("C")
            if i >= 2: dma1(2*(i-2)+1)
            ex(12); ex(13); ex(14); ex(15)
            if not nopv: a(smf)
            vread()
            if nopv: a("s_nop 0")
            cv(0); cv(1); cv(2)
            if i == 3 and not own: a("s_add_u32 s55, s55, s56")
            cv(3); cv(4)
            if i == 3 and not own: a("s_and_b32 s55, s55, s57")
            if i == 3 and not own and E("COMMON", 0):
                a("s_cmp_eq_u32 s55, s60"); a("s_cselect_b32 s36, 16384, 0")
            cv(5); cv(6)
            if i == 3 and not own: a("s_add_u32 s47, s47, 4")
            if i == 3 and not own and E("COMMON", 0): a("s_add_u32 s55, s55, s36")
            cv(7)
    for i in range(4): at_step(i, True, 0)
    stamp(a, 5)
    a("s_cmp_eq_u32 s14, 7")
    a("s_cbranch_scc0 L_at_nopoll")
    if E("PART1", 1):
        if E("COMMON", 0):
            a("s_cmp_lt_u32 s11, 3")
            a("s_cselect_b32 s48, 16, 12")
            a("s_bfm_b32 s48, s48, 0")
            a("s_mov_b32 s49, 0")
            poll(a, "f", 239, 48)
            a("s_branch L_at_nopoll")
        a("s_add_u32 s36, s11, 1")
        a("s_lshl_b32 s36, s36, 2")
        a("s_and_b32 s36, s36, 63")
        a("s_sub_u32 s37, 64, s36")
        a("s_mov_b64 s[58:59], 0xfff")
        a("s_lshl_b64 s[48:49], s[58:59], s36")
        a("s_lshr_b64 s[58:59], s[58:59], s37")
        a("s_cmp_eq_u32 s36, 0")
        a("s_cselect_b64 s[58:59], 0, s[58:59]")
        a("s_or_b64 s[48:49], s[48:49], s[58:59]")
        if not E("COMMON", 0): poll(a, "f", 239, 48)
    else:
        poll(a, "f", 239)
    a.label("L_at_nopoll")
    a("s_barrier")
    stamp(a, 6)
    def kvstage(st):
        if E("COMMON", 0):
            a(f"s_cmp_le_u32 s11, {st-1}")
            a(f"s_cselect_b32 s36, {st}, {st-1}")
        else:
            a(f"s_add_u32 s36, s11, {st}")
            a("s_and_b32 s36, s36, 15")
        a(f"s_add_u32 m0, s21, {st*AT_SLOT}")
        a("s_lshl_b32 s36, s36, 14")
        for q in range(4):
            a(f"buffer_load_dwordx4 v{VD0+q}, s[28:31], s36 offen offset:{q*1024}{KVSC} lds")
    INITORD = E("INITORD", 0)
    if INITORD == 3:
        kvstage(1)
        a("s_waitcnt vmcnt(0)")
        a("v_mov_b32 v112, 0"); a("v_mov_b32 v113, 1")
    elif INITORD == 2:
        kvstage(1)
        a("s_and_b32 s36, s14, 3")
        a("s_cmp_eq_u32 s36, 3")
        a("s_cbranch_scc0 L_io_nolook")
        a("buffer_load_dword v5, v239, s[24:27], 0 offen sc1")
        a("s_waitcnt vmcnt(1)")
        a("s_branch L_io_looked")
        a.label("L_io_nolook")
        a("s_waitcnt vmcnt(0)")
        a.label("L_io_looked")
        a("v_mov_b32 v112, 0"); a("v_mov_b32 v113, 1")
    elif INITORD:
        kvstage(1)
        a("s_mov_b32 s58, 0")
        a("s_and_b32 s36, s14, 3")
        a("s_cmp_eq_u32 s36, 3")
        a("s_cbranch_scc0 L_io_nolook")
        a("buffer_load_dword v5, v239, s[24:27], 0 offen sc1")
        a("s_waitcnt vmcnt(0)")
        a("v_cmp_ne_u32 vcc, s46, v5")
        a("s_cmp_eq_u64 vcc, 0")
        a("s_cselect_b32 s58, 1, 0")
        a.label("L_io_nolook")
        a("s_waitcnt vmcnt(0)")
        kvstage(2)
        a("v_mov_b32 v112, 0"); a("v_mov_b32 v113, 1")
    else:
        kvstage(1); kvstage(2)
    if E("COMMON", 0):
        a("s_cmp_le_u32 s11, 3")
        a("s_cselect_b32 s55, 4, 3")
        a("s_lshl_b32 s60, s11, 14")
    else:
        a("s_add_u32 s55, s11, 4")
        a("s_and_b32 s55, s55, 15")
    a("s_lshl_b32 s55, s55, 14")
    a("s_mov_b32 s56, 16384"); a("s_mov_b32 s57, 0x3c000")
    a("s_mov_b32 s47, 4")
    if E("DIAG8"): stamp(a, 5)
    if not INITORD: a("s_waitcnt vmcnt(4)")
    if E("DIAG8"): stamp(a, 15)
    a("s_barrier")
    if INITORD >= 2: kvstage(2)
    if INITORD == 3:
        a("s_and_b32 s36, s14, 3")
        a("s_cmp_eq_u32 s36, 3")
        a("s_cbranch_scc0 L_io_nolook")
        a("buffer_load_dword v5, v239, s[24:27], 0 offen sc1")
        a.label("L_io_nolook")
    elif E("PART1", 1):
        a("s_and_b32 s36, s14, 3")
        a("s_cmp_eq_u32 s36, 3")
        a("s_cbranch_scc0 L_at_nopoll2")
        if INITORD == 2:
            a("s_waitcnt vmcnt(4)")
            a("v_cmp_ne_u32 vcc, s46, v5")
            a("s_cmp_eq_u64 vcc, 0")
            a("s_cbranch_scc1 L_at_nopoll2")
        elif INITORD:
            a("s_cmp_eq_u32 s58, 1")
            a("s_cbranch_scc1 L_at_nopoll2")
        poll(a, "f2", 239)
        a("s_mov_b32 s47, 4")
        a.label("L_at_nopoll2")
    if INITORD < 2: kvstage(3)
    stamp(a, 7)
    a(f"ds_read_b128 {vr(K,4)}, {ldsa(1,0,0)}")
    a(f"ds_read_b128 {vr(K+4,4)}, {ldsa(1,0,1)}")
    a("s_waitcnt lgkmcnt(0)")
    a(f"v_mfma_f32_32x32x16_bf16 {vr(S[0],16)}, {vr(K,4)}, {vr(Q,4)}, 0")
    a(f"v_mfma_f32_32x32x16_bf16 {vr(S[0],16)}, {vr(K+4,4)}, {vr(Q+4,4)}, {vr(S[0],16)}")
    a(f"ds_read_b128 {vr(K,4)}, {ldsa(1,1,0)}")
    a(f"ds_read_b128 {vr(K+4,4)}, {ldsa(1,1,1)}")
    a("s_waitcnt lgkmcnt(0)")
    a("s_nop 7")
    stamp(a, 14)
    dbgt(a, 5, True); dbgt(a, 6)
    lg.q = ["K", "K", "V", "V"]
    a.raw(".p2align 6")
    a.label("L_at_loop")
    for c in range(4):
        slot = (c+1) & 3
        for i in range(4): at_step(i, False, slot, str(c))
        assert lg.q == ["K", "K", "V", "V"], lg.q
        if c == 2:
            a("s_cmp_eq_u32 s47, 64")
            a("s_cbranch_scc1 L_at_tail")
    a("s_cmp_eq_u32 s47, 52")
    a("s_cbranch_scc0 L_at_loop")
    if not E("DIAG8"): stamp(a, 15)
    a("s_lshl_b32 s39, s11, 7")
    a("s_sub_u32 s36, 0x200000, s39")
    a("s_add_u32 s28, s40, s39"); a("s_addc_u32 s29, s41, 0"); a("s_mov_b32 s30, s36"); a("s_mov_b32 s31, 0x20000")
    a("s_mov_b32 s55, 0"); a("s_mov_b32 s56, 524288"); a("s_mov_b32 s57, -1")
    if E("COMMON", 0): a("s_mov_b32 s60, -1")
    a("v_lshrrev_b32 v4, 3, v2")
    a("v_lshlrev_b32 v4, 11, v4")
    a("v_and_b32 v5, 7, v2")
    a("v_lshrrev_b32 v6, 4, v2")
    a("v_and_b32 v6, 1, v6")
    a("v_lshlrev_b32 v6, 2, v6")
    a("v_xor_b32 v5, v5, v6")
    a("v_lshlrev_b32 v5, 4, v5")
    a("v_add_u32 v4, v4, v5")
    a("s_lshl_b32 s36, s21, 4")
    a("v_add_u32 v4, s36, v4")
    for q in range(4): a(f"v_add_u32 v{VD0+q}, {q*(16384-1024)}, v4")
    a("s_branch L_at_loop")
    for c in range(4 if not E("X_NOSYNC") else 0):
        a.label(f"L_cnt_spin{c}")
        a("s_mov_b32 s39, 0")
        a.label(f"L_cnt_spin2{c}")
        a(f"ds_read_b32 v{VCV}, v{VCR}")
        a("s_waitcnt lgkmcnt(0)")
        a(f"v_readfirstlane_b32 s36, v{VCV}")
        a("s_add_u32 s39, s39, 1")
        a(f"s_cmp_ge_u32 s39, {POLL_MAX*16}")
        a(f"s_cbranch_scc1 L_cnt_back{c}")
        a("s_cmp_ge_u32 s36, s47")
        a(f"s_cbranch_scc0 L_cnt_spin2{c}")
        a(f"s_branch L_cnt_back{c}")
    a.label("L_at_tail")
    a("s_setprio 0")
    PL = P[1]
    a("s_waitcnt lgkmcnt(0)")
    a(f"v_mfma_f32_32x32x16_bf16 {vr(O,16)}, {vr(V,4)}, {vr(PL,4)}, {vr(O,16)}")
    a(f"v_mfma_f32_32x32x16_bf16 {vr(O,16)}, {vr(V+4,4)}, {vr(PL+4,4)}, {vr(O,16)}")
    a(f"v_smfmac_f32_16x16x64_bf16 {vr(L,4)}, {vr(ONES,4)}, {vr(PL,8)}, v{IDX}")
    stamp(a, 8)
    dbgt(a, 7, True); dbgt(a, 8)
    a("s_nop 8")
    a("s_nop 7")
    a(f"v_add_f32 v{L}, v{L}, v{L+1}")
    a(f"v_mov_b32 v4, {f32bits(2.0**-40)}")
    a(f"v_mov_b32 v5, {f32bits(2.0**40)}")
    a(f"v_cmp_nge_f32 vcc, v{L}, v4")
    a(f"v_cmp_nle_f32 s[44:45], v{L}, v5")
    a("s_or_b64 s[44:45], s[44:45], vcc")
    a(f"v_add_f32 v6, abs(v{O}), abs(v{O+1})")
    a(f"v_add_f32 v7, abs(v{O+2}), abs(v{O+3})")
    for r in range(4, 16, 2):
        a(f"v_add_f32 v6, v6, abs(v{O+r})")
        a(f"v_add_f32 v7, v7, abs(v{O+r+1})")
    a(f"v_mov_b32 v5, {f32bits(2.0**100)}")
    a("v_add_f32 v6, v6, v7")
    a("v_cmp_nlt_f32 vcc, v6, v5")
    a("s_or_b64 s[44:45], s[44:45], vcc")
    a("s_cmp_lg_u64 s[44:45], 0")
    a("s_cbranch_scc1 L_at_slow")
    a.label("L_at_fin")
    a(f"v_rcp_f32 v4, v{L}")
    a("s_nop 0")
    for r in range(16): a(f"v_mul_f32 v{O+r}, v{O+r}, v4")
    for r in range(8): a(f"v_cvt_pk_bf16_f32 v{P[0]+r}, v{O+2*r}, v{O+2*r+1}")
    EP2 = E("EP2", 0)
    if EP2:
        a(f"s_lshl_b32 s36, s10, {9+D2}")
        a(f"s_lshl_b32 s37, s16, {7+D2}")
        a("s_add_u32 s36, s36, s37")
        a(f"s_lshl_b32 s37, s15, {6+D2}")
        a("s_add_u32 s36, s36, s37")
        a(f"s_add_u32 s36, s36, {G_OFF}")
        a("v_and_b32 v198, 15, v2")
        a(f"v_lshlrev_b32 v198, {FSH}, v198")
        a("v_add_u32 v198, s36, v198")
    a("s_lshl_b32 s19, s18, 6")
    a("s_lshl_b32 s36, s17, 1")
    a("s_add_u32 s19, s19, s36")
    a("s_lshl_b32 s19, s19, 10")
    a(f"s_add_u32 s19, s19, {OF_OFF}")
    a(f"buffer_store_dwordx4 {vr(P[0],4)}, v3, s[24:27], s19 offen sc1")
    a(f"buffer_store_dwordx4 {vr(P[0]+4,4)}, v3, s[24:27], s19 offen offset:1024 sc1")
    if EP2: a("buffer_load_dword v199, v198, s[24:27], 0 offen sc1")
    srd(a, 32, 42, None, 0x400000)
    a(f"s_lshl_b32 s36, s11, {9+D2}")
    a(f"s_lshl_b32 s37, s16, {7+D2}")
    a("s_add_u32 s36, s36, s37")
    a(f"s_lshl_b32 s37, s10, {3+D2}")
    a("s_add_u32 s36, s36, s37")
    a(f"s_lshl_b32 s37, s15, {2+D2}")
    a("s_add_u32 s36, s36, s37")
    a(f"s_add_u32 s36, s36, {G_OFF}")
    a("v_mov_b32 v5, s36")
    a("v_mov_b32 v6, s46")
    a("s_waitcnt vmcnt(1)" if EP2 else "s_waitcnt vmcnt(0)")
    a("s_mov_b64 exec, 1")
    a("buffer_store_dword v6, v5, s[24:27], 0 offen sc1")
    a("s_mov_b64 exec, -1")
    a("s_barrier")
    a(f"s_add_u32 m0, s21, {3*AT_SLOT}")
    a("s_lshl_b32 s36, s14, 12")
    a(f"s_add_u32 s36, s36, {XCH_OFF}")
    for q in range(4):
        a(f"buffer_load_dwordx4 v{VD0+q}, s[28:31], s55 offen offset:{q*1024} lds")
    a("v_add_u32 v196, s36, v3")
    for r in range(4): a(f"v_mov_b32 v{200+r}, -1")
    a("ds_write_b128 v196, v[200:203] offset:3072")
    a("s_xor_b32 s36, s14, 4")
    a("s_lshl_b32 s36, s36, 12")
    a(f"s_add_u32 s36, s36, {XCH_OFF}")
    a("v_add_u32 v197, s36, v3")
    stamp(a, 9)
    a("v_lshrrev_b32 v5, 5, v2")
    a("v_and_b32 v6, 15, v2")
    a("v_lshrrev_b32 v6, 2, v6")
    a("v_lshlrev_b32 v7, 2, v5")
    a("v_add_u32 v7, v7, v6")
    a("v_lshlrev_b32 v7, 7, v7")
    a("v_lshrrev_b32 v8, 4, v2")
    a("v_and_b32 v8, 1, v8")
    a("v_lshlrev_b32 v8, 1, v8")
    a("v_and_b32 v9, 3, v2")
    a("v_lshrrev_b32 v10, 1, v9")
    a("v_add_u32 v8, v8, v10")
    a("v_lshrrev_b32 v10, 1, v6")
    a("v_lshlrev_b32 v10, 2, v10")
    a("v_xor_b32 v8, v8, v10")
    a("v_lshlrev_b32 v8, 4, v8")
    a("v_add_u32 v7, v7, v8")
    a("v_and_b32 v9, 1, v9")
    a("v_lshlrev_b32 v9, 3, v9")
    a("v_add_u32 v7, v7, v9")
    a("s_lshl_b32 s36, s15, 16")
    a(f"s_add_u32 s36, s36, {WO_LDS}")
    a("v_add_u32 v12, s36, v7")
    a("v_xor_b32 v13, 64, v12")
    ACC = 16; ACCB = 204
    for r in range(32): a(f"v_mov_b32 v{ACC+r}, 0")
    for r in range(32): a(f"v_mov_b32 v{ACCB+r}, 0")
    a(f"s_lshl_b32 s36, s10, {9+D2}")
    a(f"s_lshl_b32 s37, s16, {7+D2}")
    a("s_add_u32 s36, s36, s37")
    a(f"s_lshl_b32 s37, s15, {6+D2}")
    a("s_add_u32 s36, s36, s37")
    a(f"s_add_u32 s36, s36, {G_OFF}")
    a("v_and_b32 v4, 15, v2")
    a(f"v_lshlrev_b32 v4, {FSH}, v4")
    a("v_add_u32 v4, s36, v4")
    OFR = 64
    a("s_lshl_b32 s36, s10, 2")
    a("s_add_u32 s36, s36, s16")
    a("s_lshl_b32 s36, s36, 6")
    a("s_lshl_b32 s37, s15, 5")
    a("s_add_u32 s36, s36, s37")
    a("s_lshl_b32 s36, s36, 10")
    a(f"s_add_u32 s36, s36, {OF_OFF}")
    B0M = E("B0MODE", 0)
    if B0M == 0: a("s_and_b32 s50, s11, 7")
    elif B0M == 1: a("s_mov_b32 s50, 0")
    elif B0M == 2:
        a("s_and_b32 s50, s11, 1"); a("s_lshl_b32 s50, s50, 2")
    elif B0M == 3:
        a("s_and_b32 s50, s11, 3"); a("s_lshl_b32 s50, s50, 1")
    a("s_lshl_b32 s51, s50, 1")
    a("s_sub_u32 s52, 16, s51")
    a("s_mov_b32 s48, 0")
    a("s_mov_b32 s54, 0")
    a("s_mov_b32 s47, 0")
    a("s_mov_b32 s49, 0")
    if E("EARLYPOLL", 0):
        a("buffer_load_dword v5, v4, s[24:27], 0 offen sc1")
        a("s_waitcnt vmcnt(1)")
        a("s_barrier")
    elif not EP2:
        a("s_waitcnt vmcnt(0) lgkmcnt(0)")
        a("s_barrier")
        a("buffer_load_dword v5, v4, s[24:27], 0 offen sc1")
    WF = [48, 56]
    def og_loads(i):
        a(f"s_add_u32 s53, s50, {i}")
        a("s_and_b32 s53, s53, 7")
        a("s_lshl_b32 s53, s53, 12")
        a("s_add_u32 s53, s53, s36")
        for q in range(4):
            a(f"buffer_load_dwordx4 {vr(OFR+16*i+4*q,4)}, v3, s[24:27], s53 offen offset:{q*1024}{OLSC}")
    if EP2:
        assert E("CAD", 1) and not E("EARLYPOLL", 0)
        a("s_waitcnt vmcnt(5)")
        a("v_cmp_eq_u32 vcc, s46, v199")
        a("s_lshr_b32 s49, vcc_lo, 1")
        a("s_and_b32 s49, s49, vcc_lo")
        a("s_and_b32 s49, s49, 0x5555")
        a("s_lshr_b32 s53, s49, s51")
        a("s_lshl_b32 s49, s49, s52")
        a("s_or_b32 s49, s49, s53")
        a("s_and_b32 s49, s49, 0x5555")
        a("s_lshr_b32 s44, s49, 2")
        a("s_and_b32 s44, s44, s49")
        a("s_and_b32 s44, s44, 0x1111")
        a("s_lshl_b32 s59, s44, 2")
        a("s_or_b32 s59, s59, s44")
        for p in range(4):
            a(f"s_bitcmp1_b32 s44, {4*p}")
            a(f"s_cbranch_scc0 L_ep_nl{p}")
            og_loads(2*p); og_loads(2*p+1)
            a.label(f"L_ep_nl{p}")
        a("s_bcnt1_i32_b32 s53, s44")
        for n in range(4, 0, -1):
            a(f"s_cmp_eq_u32 s53, {n}")
            a(f"s_cbranch_scc1 L_ep_w{n}")
        a("s_waitcnt vmcnt(0) lgkmcnt(0)")
        a("s_branch L_ep_wd")
        for n in range(1, 5):
            a.label(f"L_ep_w{n}")
            a(f"s_waitcnt vmcnt({8*n}) lgkmcnt(0)")
            if n < 4: a("s_branch L_ep_wd")
        a.label("L_ep_wd")
        a("s_barrier")
        a("s_mov_b32 s58, s59")
        a("s_mov_b32 s49, 0")
        a("s_cmp_eq_u32 s59, 0x5555")
        a("s_cselect_b32 s57, 1, 0")
        a("s_cbranch_scc1 L_og_next")
        a("buffer_load_dword v5, v4, s[24:27], 0 offen sc1")
        a("s_branch L_og_next")
    def og_mfma(i):
        a(f"s_add_u32 s53, s50, {i}")
        a("s_and_b32 s53, s53, 7")
        a("s_lshl_b32 s53, s53, 13")
        a("v_add_u32 v14, s53, v12")
        a("v_add_u32 v15, s53, v13")
        def wreads(setb, q):
            for ct in range(2):
                for jj in range(2):
                    a(f"ds_read_b64_tr_b16 {vr(setb+4*ct+2*jj,2)}, v{14+ct} offset:{q*2048+jj*1024}")
        def mm(setb, q):
            ac = ACC if i < 4 else ACCB
            for ct in range(2):
                a(f"v_mfma_f32_32x32x16_bf16 {vr(ac+16*ct,16)}, {vr(setb+4*ct,4)}, {vr(OFR+16*i+4*q,4)}, {vr(ac+16*ct,16)}")
        return wreads, mm
    if E("CAD", 1):
        if not EP2:
            a("s_mov_b32 s58, 0"); a("s_mov_b32 s59, 0"); a("s_mov_b32 s57, 0")
        a.label("L_og_round")
        a("s_bcnt1_i32_b32 s53, s49")
        for n in range(8, 0, -1):
            a(f"s_cmp_ge_u32 s53, {n}")
            a(f"s_cbranch_scc1 L_og_w{n}")
        a("s_waitcnt vmcnt(0)")
        a("s_branch L_og_wd")
        for n in range(1, 9):
            a.label(f"L_og_w{n}")
            a(f"s_waitcnt vmcnt({4*n})")
            if n < 8: a("s_branch L_og_wd")
        a.label("L_og_wd")
        a("s_mov_b32 s48, s58")
        a("v_cmp_eq_u32 vcc, s46, v5")
        a("s_add_u32 s47, s47, 1")
        a("s_lshr_b32 s49, vcc_lo, 1")
        a("s_and_b32 s49, s49, vcc_lo")
        a("s_and_b32 s49, s49, 0x5555")
        a("s_lshr_b32 s53, s49, s51")
        a("s_lshl_b32 s49, s49, s52")
        a("s_or_b32 s49, s49, s53")
        a("s_and_b32 s49, s49, 0x5555")
        a(f"s_cmp_ge_u32 s47, {POLL_MAX}")
        a("s_cselect_b32 s49, 0x5555, s49")
        a("s_andn2_b32 s49, s49, s59")
        stamp(a, 10)
        a("s_cmp_eq_u32 s49, 0x5555")
        a("s_cbranch_scc1 L_og_fast")
        a("s_mov_b32 s58, s59")
        a("s_or_b32 s59, s59, s49")
        a("s_cmp_eq_u32 s59, 0x5555")
        a("s_cselect_b32 s57, 1, 0")
        a("s_cbranch_scc1 L_og_nopoll")
        a("s_cmp_eq_u32 s49, 0")
        a("s_cbranch_scc0 L_og_poll")
        a("s_sleep 2")
        a.label("L_og_poll")
        a("buffer_load_dword v5, v4, s[24:27], 0 offen sc1")
        a.label("L_og_nopoll")
        for i in range(8):
            a(f"s_bitcmp1_b32 s49, {2*i}")
            a(f"s_cbranch_scc0 L_og_nl{i}")
            og_loads(i)
            a.label(f"L_og_nl{i}")
        a.label("L_og_pass")
        for i in range(8):
            if i == 4: a.label("L_og_chainB")
            a(f"s_bitcmp1_b32 s54, {2*i}")
            a(f"s_cbranch_scc1 L_og_nm{i}")
            a(f"s_bitcmp1_b32 s48, {2*i}")
            a(f"s_cbranch_scc0 {'L_og_chainB' if i < 4 else 'L_og_next'}")
            a(f"s_bitset1_b32 s54, {2*i}")
            wreads, mm = og_mfma(i)
            wreads(WF[0], 0); wreads(WF[1], 1)
            a("s_waitcnt lgkmcnt(4)"); mm(WF[0], 0)
            wreads(WF[0], 2)
            a("s_waitcnt lgkmcnt(4)"); mm(WF[1], 1)
            wreads(WF[1], 3)
            a("s_waitcnt lgkmcnt(4)"); mm(WF[0], 2)
            a("s_waitcnt lgkmcnt(0)"); mm(WF[1], 3)
            a.label(f"L_og_nm{i}")
        a("s_cmp_eq_u32 s54, 0x5555")
        a("s_cbranch_scc1 L_og_done")
        a.label("L_og_next")
        if EP2:
            a("s_cmp_eq_u32 s44, 0")
            a("s_cbranch_scc1 L_ep_none")
            a("s_ff1_i32_b32 s53, s44")
            a("s_bitset0_b32 s44, s53")
            a("s_lshl_b32 s45, 5, s53")
            a("s_or_b32 s48, s48, s45")
            a("s_bcnt1_i32_b32 s53, s44")
            for n in range(3, 0, -1):
                a(f"s_cmp_eq_u32 s53, {n}")
                a(f"s_cbranch_scc1 L_ep_v{n}")
            a("s_waitcnt vmcnt(0)")
            a("s_branch L_og_pass")
            for n in range(1, 4):
                a.label(f"L_ep_v{n}")
                a(f"s_waitcnt vmcnt({8*n})")
                a("s_branch L_og_pass")
            a.label("L_ep_none")
        a("s_cmp_eq_u32 s57, 0")
        a("s_cbranch_scc1 L_og_round")
        a("s_waitcnt vmcnt(0)")
        a("s_mov_b32 s48, 0x5555")
        a("s_branch L_og_pass")
    else:
        a.label("L_og_round")
        a("s_waitcnt vmcnt(0)")
        a("s_or_b32 s48, s48, s49")
        a("v_cmp_eq_u32 vcc, s46, v5")
        a("s_add_u32 s47, s47, 1")
        a("s_lshr_b32 s49, vcc_lo, 1")
        a("s_and_b32 s49, s49, vcc_lo")
        a("s_and_b32 s49, s49, 0x5555")
        a("s_lshr_b32 s53, s49, s51")
        a("s_lshl_b32 s49, s49, s52")
        a("s_or_b32 s49, s49, s53")
        a("s_and_b32 s49, s49, 0x5555")
        a(f"s_cmp_ge_u32 s47, {POLL_MAX}")
        a("s_cselect_b32 s49, 0x5555, s49")
        a("s_andn2_b32 s49, s49, s48")
        if E("DIAG3"):
            a("s_cmp_eq_u32 s47, 1")
            a("s_cbranch_scc0 L_d3a")
            stamp(a, 2)
            a("s_mov_b32 s70, s49")
            a.label("L_d3a")
            a("s_cmp_eq_u32 s47, 2")
            a("s_cbranch_scc0 L_d3b")
            stamp(a, 3)
            a("s_mov_b32 s72, s49")
            a.label("L_d3b")
            a("s_mov_b32 s74, s47")
        stamp(a, 10)
        a("s_cmp_eq_u32 s49, 0x5555")
        a("s_cbranch_scc1 L_og_fast")
        for i in range(8):
            a(f"s_bitcmp1_b32 s49, {2*i}")
            a(f"s_cbranch_scc0 L_og_nl{i}")
            og_loads(i)
            a.label(f"L_og_nl{i}")
        a("s_or_b32 s53, s48, s49")
        a("s_cmp_eq_u32 s53, 0x5555")
        a("s_cbranch_scc1 L_og_nopoll")
        a("s_cmp_eq_u32 s49, 0")
        a("s_cbranch_scc0 L_og_poll")
        a("s_sleep 4")
        a.label("L_og_poll")
        a("buffer_load_dword v5, v4, s[24:27], 0 offen sc1")
        a.label("L_og_nopoll")
        for i in range(8):
            a(f"s_bitcmp1_b32 s54, {2*i}")
            a(f"s_cbranch_scc1 L_og_nm{i}")
            a(f"s_bitcmp1_b32 s48, {2*i}")
            a(f"s_cbranch_scc0 L_og_round")
            a(f"s_bitset1_b32 s54, {2*i}")
            wreads, mm = og_mfma(i)
            wreads(WF[0], 0); wreads(WF[1], 1)
            a("s_waitcnt lgkmcnt(4)"); mm(WF[0], 0)
            wreads(WF[0], 2)
            a("s_waitcnt lgkmcnt(4)"); mm(WF[1], 1)
            wreads(WF[1], 3)
            a("s_waitcnt lgkmcnt(4)"); mm(WF[0], 2)
            a("s_waitcnt lgkmcnt(0)"); mm(WF[1], 3)
            a.label(f"L_og_nm{i}")
    a("s_branch L_og_done")
    a.label("L_og_fast")
    for i in range(8): og_loads(i)
    for i in range(8):
        wreads, mm = og_mfma(i)
        wreads(WF[0], 0); wreads(WF[1], 1)
        a(f"s_waitcnt vmcnt({28-4*i+2}) lgkmcnt(4)"); mm(WF[0], 0)
        wreads(WF[0], 2)
        a("s_waitcnt lgkmcnt(4)"); mm(WF[1], 1)
        wreads(WF[1], 3)
        a(f"s_waitcnt vmcnt({28-4*i}) lgkmcnt(4)"); mm(WF[0], 2)
        a("s_waitcnt lgkmcnt(0)"); mm(WF[1], 3)
    a.label("L_og_done")
    stamp(a, 11)
    a("s_nop 11")
    a("s_nop 1")
    for r in range(32): a(f"v_add_f32 v{ACC+r}, v{ACC+r}, v{ACCB+r}")
    a("s_cmp_eq_u32 s15, 0")
    a("s_cbranch_scc1 L_op_kh0")
    for q in range(4): a(f"ds_write_b128 v196, {vr(ACC+4*q,4)} offset:{q*1024}")
    for r in range(16): a(f"v_mov_b32 v{48+r}, v{ACC+16+r}")
    a("s_branch L_op_x")
    a.label("L_op_kh0")
    for q in range(4): a(f"ds_write_b128 v196, {vr(ACC+16+4*q,4)} offset:{q*1024}")
    for r in range(16): a(f"v_mov_b32 v{48+r}, v{ACC+r}")
    a.label("L_op_x")
    a("s_mov_b32 s47, 0")
    a.label("L_op_spin")
    a(f"ds_read_b128 {vr(76,4)}, v197 offset:3072")
    a("s_add_u32 s47, s47, 1")
    a("s_waitcnt lgkmcnt(0)")
    a("v_cmp_eq_u32 vcc, -1, v76")
    a(f"s_cmp_ge_u32 s47, {POLL_MAX*16}")
    a("s_cbranch_scc1 L_op_go")
    a("s_cmp_eq_u64 vcc, 0")
    a("s_cbranch_scc0 L_op_spin")
    a.label("L_op_go")
    for q in range(3): a(f"ds_read_b128 {vr(64+4*q,4)}, v197 offset:{q*1024}")
    a("s_waitcnt lgkmcnt(0)")
    for r in range(16): a(f"v_add_f32 v{48+r}, v{48+r}, v{64+r}")
    for r in range(8): a(f"v_cvt_pk_bf16_f32 v{64+r}, v{48+2*r}, v{48+2*r+1}")
    a("v_and_b32 v5, 31, v2")
    a("v_lshlrev_b32 v5, 11, v5")
    a("v_lshrrev_b32 v6, 5, v2")
    a("v_lshlrev_b32 v6, 4, v6")
    a("v_add_u32 v5, v5, v6")
    for g in (0, 2):
        a(f"v_permlane32_swap_b32 v{64+2*g}, v{64+2*g+2}")
        a(f"v_permlane32_swap_b32 v{64+2*g+1}, v{64+2*g+3}")
    a("s_lshl_b32 s36, s10, 2")
    a("s_add_u32 s36, s36, s16")
    a("s_lshl_b32 s36, s36, 16")
    a("s_lshl_b32 s37, s11, 7")
    a("s_add_u32 s36, s36, s37")
    a("s_lshl_b32 s37, s15, 6")
    a("s_add_u32 s36, s36, s37")
    OSC = {0: "", 1: " sc1", 2: " nt", 3: " sc0 sc1"}[E("OUTSC", 0)]
    a(f"buffer_store_dwordx4 {vr(64,4)}, v5, s[32:35], s36 offen{OSC}")
    a(f"buffer_store_dwordx4 {vr(68,4)}, v5, s[32:35], s36 offen offset:32{OSC}")
    if STAMP:
        a("s_waitcnt vmcnt(0)")
        stamp(a, 12); stamp_rt(a, 13); stamp_store(a, 16)
    if DBGT:
        a("s_waitcnt vmcnt(0)")
        dbgt(a, 11, True); dbgt(a, 12)
    a("s_endpgm")
    if QPF:
        a.label("L_qpf_out")
        qpf("c")
        a("s_branch L_qpf_back")
    a.label("L_flag_out")
    a("s_waitcnt vmcnt(0)")
    a(f"s_lshl_b32 s36, s10, {8+D2}")
    a(f"s_lshl_b32 s39, s11, {4+D2}")
    a("s_add_u32 s36, s36, s39")
    a(f"s_lshl_b32 s39, s14, {2+D2}")
    a("s_add_u32 s36, s36, s39")
    a(f"s_add_u32 s36, s36, {FLG_OFF}")
    a("v_mov_b32 v4, s36")
    a("v_mov_b32 v5, s46")
    a("s_mov_b64 exec, 1")
    a("buffer_store_dword v5, v4, s[24:27], 0 offen sc1")
    a("s_mov_b64 exec, -1")
    a("s_branch L_flag_back")
    a.label("L_at_slow")
    X = S[0]; PX = P[0]
    a(f"v_mov_b32 v{M}, 0xff800000")
    a(f"v_mov_b32 v{L}, 0")
    for r in range(16): a(f"v_mov_b32 v{O+r}, 0")
    a("s_lshl_b32 s36, s17, 18")
    a("s_mov_b32 s47, 0")
    a.label("L_at_slow_loop")
    a(f"buffer_load_dwordx4 {vr(K,4)}, v3, s[24:27], s36 offen sc1")
    a(f"buffer_load_dwordx4 {vr(K+4,4)}, v3, s[24:27], s36 offen offset:1024 sc1")
    a(f"buffer_load_dwordx4 {vr(V,4)}, v3, s[24:27], s36 offen offset:2048 sc1")
    a(f"buffer_load_dwordx4 {vr(V+4,4)}, v3, s[24:27], s36 offen offset:3072 sc1")
    a("s_waitcnt vmcnt(0)")
    a(f"v_mfma_f32_32x32x16_bf16 {vr(X,16)}, {vr(K,4)}, {vr(Q,4)}, 0")
    a(f"v_mfma_f32_32x32x16_bf16 {vr(X,16)}, {vr(K+4,4)}, {vr(Q+4,4)}, {vr(X,16)}")
    a("s_nop 15"); a("s_nop 3")
    a(f"v_max_f32 v4, v{X}, v{X+1}")
    for r in range(2, 16): a(f"v_max_f32 v4, v4, v{X+r}")
    a("v_mov_b32 v5, v4")
    a("s_nop 1")
    a("v_permlane32_swap_b32 v4, v5")
    a("s_nop 1")
    a("v_max_f32 v4, v4, v5")
    a(f"v_max_f32 v4, v4, v{M}")
    a(f"v_sub_f32 v5, v{M}, v4")
    a("v_exp_f32 v5, v5")
    a(f"v_mov_b32 v{M}, v4")
    for r in range(16): a(f"v_sub_f32 v{X+r}, v{X+r}, v4")
    for r in range(16): a(f"v_exp_f32 v{X+r}, v{X+r}")
    a("s_nop 0")
    for r in range(8): a(f"v_cvt_pk_bf16_f32 v{PX+r}, v{X+2*r}, v{X+2*r+1}")
    a(f"v_mul_f32 v{L}, v{L}, v5")
    for r in range(16): a(f"v_mul_f32 v{O+r}, v{O+r}, v5")
    for r in range(8):
        a(f"v_lshlrev_b32 v6, 16, v{PX+r}")
        a(f"v_and_b32 v7, 0xffff0000, v{PX+r}")
        a(f"v_add_f32 v{L}, v{L}, v6")
        a(f"v_add_f32 v{L}, v{L}, v7")
    a("s_nop 1")
    a(f"v_mfma_f32_32x32x16_bf16 {vr(O,16)}, {vr(V,4)}, {vr(PX,4)}, {vr(O,16)}")
    a(f"v_mfma_f32_32x32x16_bf16 {vr(O,16)}, {vr(V+4,4)}, {vr(PX+4,4)}, {vr(O,16)}")
    a("s_nop 15"); a("s_nop 3")
    a("s_add_u32 s36, s36, 4096")
    a("s_add_u32 s47, s47, 1")
    a("s_cmp_lt_u32 s47, 64")
    a("s_cbranch_scc1 L_at_slow_loop")
    a(f"v_mov_b32 v5, v{L}")
    a(f"v_mov_b32 v4, v{L}")
    a("s_nop 1")
    a("v_permlane32_swap_b32 v4, v5")
    a("s_nop 1")
    a(f"v_add_f32 v{L}, v4, v5")
    a("s_branch L_at_fin")
    a.label("L_end")
    a("s_endpgm")
    return a.text()

HEADER = """; Fused multi-head attention: QKV projection -> softmax attention -> output projection, one persistent launch.
; @launch grid=(256,1,1) block=(512,1,1) lds=163840
"""
def main(out):
    vg = 256 if (STAMP or DBGT) else 244
    sg = 96 if (STAMP or DBGT) else 64
    txt = HEADER + '.amdgcn_target "amdgcn-amd-amdhsa--gfx950"\n.text\n' + gen()
    txt += f""".section .rodata,"a"
.p2align 6
.amdhsa_kernel {KNAME}
  .amdhsa_next_free_vgpr {vg}
  .amdhsa_next_free_sgpr {sg}
  .amdhsa_accum_offset {(vg+3)//4*4}
  .amdhsa_group_segment_fixed_size 0
  .amdhsa_kernarg_size 48
  .amdhsa_user_sgpr_count 2
  .amdhsa_user_sgpr_kernarg_segment_ptr 1
  .amdhsa_system_sgpr_workgroup_id_x 1
.end_amdhsa_kernel
"""
    open(out, "w").write(txt)
if __name__ == "__main__":
    main(sys.argv[1] if len(sys.argv) > 1 else "cdna_kernels/%s.s" % NAME)
```

```python
import sys, os, struct
NAME = "standalone__softmax_full_mha__prompt"
KNAME = NAME + "_kernel"
E = lambda k, d=0: int(os.environ.get(k, str(d)))
STAMP = E("STAMP")
KVSC = "" if E("PLAINKV", 0) else " sc1"
OLSC = "" if E("PLAINO", 0) else " sc1"
STAMP_OFF = 32 << 20

class A:
    def __init__(self): self.l = []
    def __call__(self, s): self.l.append("    " + s)
    def label(self, s): self.l.append(s + ":")
    def raw(self, s): self.l.append(s)
    def text(self): return "\n".join(self.l) + "\n"
def vr(b, n=1): return f"v{b}" if n == 1 else f"v[{b}:{b+n-1}]"
def f32bits(x): return struct.unpack('<I', struct.pack('<f', x))[0]

class Lgkm:
    def __init__(self, a): self.a = a; self.q = []
    def issue(self, tag): self.q.append(tag)
    def need(self, tags):
        idx = -1
        for i, t in enumerate(self.q):
            if t in tags: idx = i
        if idx < 0: return
        n = len(self.q) - 1 - idx
        assert n <= 15
        self.a(f"s_waitcnt lgkmcnt({n})")
        self.q = self.q[idx+1:]
    def all(self):
        if self.q:
            self.a("s_waitcnt lgkmcnt(0)")
            self.q = []

KVF_OFF = 0
OF_OFF  = 8 << 20
FSH = E("FSH", 7)
D2 = FSH - 2
G_OFF = (12 << 20) + (1024 << FSH)
FLG_OFF = 12 << 20
WS_USED = 13 << 20
QSCALE = 0.17677669529663687 * 1.4426950408889634
G1_NSLOT = 4; G1_SLOT = 40960
AT_SLOT = 32768
QX_OFF = 131072
AT_R = 4
WO_LDS = 0
CNT_OFF = 147456 + 64
SCR_OFF = 147456 + 1024
XCH_OFF = 131072
EP_OFF = 147456
POLL_MAX = 40000

def stamp(a, k):
    if STAMP:
        a(f"s_memtime s[{60+2*k}:{61+2*k}]"); a("s_waitcnt lgkmcnt(0)")
def stamp_rt(a, k):
    if STAMP:
        a(f"s_memrealtime s[{60+2*k}:{61+2*k}]"); a("s_waitcnt lgkmcnt(0)")
def stamp_store(a, n):
    if STAMP:
        a(f"s_lshl_b32 s58, s2, 3"); a(f"s_add_u32 s58, s58, s14"); a(f"s_lshl_b32 s58, s58, 7")
        a(f"s_add_u32 s58, s58, {STAMP_OFF}")
        a(f"s_add_u32 s56, s8, s58"); a(f"s_addc_u32 s57, s9, 0")
        a("v_mov_b32 v254, 0")
        for k in range(n):
            a(f"v_mov_b32 v255, s{60+2*k}")
            a(f"global_store_dword v254, v255, s[56:57] offset:{4*k}")
        a("s_waitcnt vmcnt(0)")

DBGT = E("DBGT")
DSLOT = {1:0, 13:1, 3:2, 5:3, 7:4, 9:5, 11:6}
def dbgt(a, slot, neg=False):
    if DBGT and neg:
        i = DSLOT[slot]
        a(f"s_memrealtime s[{60+2*i}:{61+2*i}]")
        a("s_waitcnt lgkmcnt(0)")
        if slot == 11:
            a(f"s_and_b32 s92, s2, 0x7f")
            a("s_cmp_eq_u32 s92, 0")
            a("s_cbranch_scc0 L_dbg_skip")
            a("s_cmp_eq_u32 s14, 4")
            a("s_cbranch_scc0 L_dbg_skip")
            a("s_lshr_b32 s92, s2, 7")
            a("s_mul_i32 s92, s92, 28")
            a("v_mov_b32 v251, s92")
            for k in range(7):
                a(f"v_mov_b32 v250, s{60+2*k}")
                a(f"global_store_dword v251, v250, s[90:91] offset:{4+4*k}")
            a.label("L_dbg_skip")

def srd(a, d, plo, off, nrec):
    if off is None:
        a(f"s_mov_b32 s{d}, s{plo}"); a(f"s_mov_b32 s{d+1}, s{plo+1}")
    else:
        a(f"s_add_u32 s{d}, s{plo}, {off}"); a(f"s_addc_u32 s{d+1}, s{plo+1}, 0")
    a(f"s_mov_b32 s{d+2}, {nrec}"); a(f"s_mov_b32 s{d+3}, 0x20000")

def poll(a, name, voff, mask=None):
    a(f"s_mov_b32 s47, 0")
    a.label(f"L_poll_{name}")
    a(f"buffer_load_dword v5, v{voff}, s[24:27], 0 offen sc1")
    a("s_waitcnt vmcnt(0)")
    a("v_cmp_ne_u32 vcc, s46, v5")
    a("s_add_u32 s47, s47, 1")
    if mask is not None: a(f"s_and_b64 vcc, vcc, s[{mask}:{mask+1}]")
    a("s_cmp_eq_u64 vcc, 0")
    a(f"s_cbranch_scc1 L_poll_{name}_done")
    a(f"s_cmp_ge_u32 s47, {POLL_MAX}")
    a(f"s_cbranch_scc1 L_poll_{name}_done")
    a("s_sleep 1")
    a(f"s_branch L_poll_{name}")
    a.label(f"L_poll_{name}_done")

def gen():
    a = A()
    a.raw(f".globl {KNAME}\n.p2align 8\n.type {KNAME},@function\n{KNAME}:")
    a("s_cmp_ge_u32 s2, 256")
    a("s_cbranch_scc1 L_end")
    a("s_load_dwordx4 s[4:7], s[0:1], 0")
    a("s_load_dwordx2 s[8:9], s[0:1], 40")
    a("s_load_dwordx4 s[40:43], s[0:1], 16")
    a("s_load_dwordx2 s[44:45], s[0:1], 32")
    a("s_and_b32 s12, s2, 7")
    a("s_lshr_b32 s11, s2, 3")
    a("s_mov_b32 s13, 0")
    if E("MAP", 2) == 0:
        a("s_lshr_b32 s10, s12, 1")
        a("s_lshl_b32 s10, s10, 2")
        a("s_and_b32 s16, s11, 3")
        a("s_add_u32 s10, s10, s16")
        a("s_lshr_b32 s11, s11, 2")
        a("s_and_b32 s12, s12, 1")
        a("s_lshl_b32 s12, s12, 3")
        a("s_add_u32 s11, s11, s12")
    elif E("MAP", 2) == 2:
        a("s_lshl_b32 s10, s12, 1")
        a("s_and_b32 s16, s11, 1")
        a("s_add_u32 s10, s10, s16")
        a("s_lshr_b32 s11, s11, 1")
    else:
        a("s_and_b32 s10, s12, 1")
        a("s_lshl_b32 s10, s10, 3")
        a("s_and_b32 s16, s11, 7")
        a("s_add_u32 s10, s10, s16")
        a("s_lshr_b32 s11, s11, 3")
        a("s_lshr_b32 s12, s12, 1")
        a("s_lshl_b32 s12, s12, 2")
        a("s_add_u32 s11, s11, s12")
    a("v_lshrrev_b32 v1, 6, v0")
    a("v_and_b32 v2, 63, v0")
    a("v_lshlrev_b32 v3, 4, v2")
    a("v_readfirstlane_b32 s14, v1")
    a("s_waitcnt lgkmcnt(0)")
    stamp_rt(a, 0); stamp(a, 1)
    if DBGT:
        a("s_mov_b32 s90, s44"); a("s_mov_b32 s91, s45")
    dbgt(a, 1, True); dbgt(a, 2)
    srd(a, 24, 8, None, WS_USED)
    ONES = 224; IDX = 228; VLO = 229; VHI = 230; VONE = 231; VCA = 232; VCR = 233; VCV = 234; VD0 = 235; VB = VLO
    def at_consts():
        a("s_lshr_b32 s50, s14, 2")
        a("s_and_b32 s51, s14, 3")
        a("s_lshl_b32 s52, s50, 12")
        a(f"v_add_u32 v{VLO}, s52, v3")
        a(f"v_add_u32 v{VHI}, 65536, v{VLO}")
        a("v_and_b32 v4, 6, v2")
        a("v_mov_b32 v5, 0x3f803f80")
        a("v_cmp_eq_u32 vcc, 0, v4")
        a("s_lshl_b32 s52, s51, 12")
        a(f"v_mov_b32 v{VONE}, 1")
        a(f"v_cndmask_b32 v{ONES}, 0, v5, vcc")
        a(f"v_cndmask_b32 v{ONES+1}, 0, v5, vcc")
        a("v_cmp_eq_u32 vcc, 4, v4")
        for q in range(2): a(f"v_add_u32 v{VD0+q}, s52, v3")
        a(f"v_cndmask_b32 v{ONES+2}, 0, v5, vcc")
        a(f"v_cndmask_b32 v{ONES+3}, 0, v5, vcc")
        a("v_and_b32 v4, 1, v2")
        a("v_mov_b32 v5, 0x44444444")
        a("v_mov_b32 v7, 0xeeeeeeee")
        a("v_cmp_eq_u32 vcc, 0, v4")
        for q in range(2, 4): a(f"v_add_u32 v{VD0+q}, s52, v3")
        a(f"v_cndmask_b32 v{IDX}, v7, v5, vcc")
        a("s_lshl_b32 s52, s50, 2")
        a(f"s_add_u32 s52, s52, {CNT_OFF}")
        a(f"v_mov_b32 v{VCR}, s52")
        a("s_lshl_b32 s52, s14, 8")
        a(f"s_add_u32 s52, s52, {SCR_OFF}")
        a("v_lshlrev_b32 v4, 2, v2")
        a(f"v_add_u32 v{VCA}, s52, v4")
        a("v_cmp_eq_u32 vcc, 0, v2")
        a(f"s_lshl_b32 s52, s10, {8+D2}")
        a(f"s_add_u32 s52, s52, {FLG_OFF}")
        a(f"v_cndmask_b32 v{VCA}, v{VCA}, v{VCR}, vcc")
        a(f"v_lshlrev_b32 v239, {FSH}, v2")
        a("v_add_u32 v239, s52, v239")
    a("s_cmp_lt_u32 s14, 4")
    a("s_cbranch_scc1 L_g1_compute")
    a("s_sub_u32 s15, s14, 4")
    a("s_lshl_b32 s16, s11, 18")
    a("s_sub_u32 s17, 0x400000, s16")
    a("s_add_u32 s28, s4, s16"); a("s_addc_u32 s29, s5, 0"); a("s_mov_b32 s30, s17"); a("s_mov_b32 s31, 0x20000")
    a("s_lshl_b32 s16, s10, 7")
    a("s_sub_u32 s17, 0x600000, s16")
    a("s_add_u32 s32, s6, s16"); a("s_addc_u32 s33, s7, 0"); a("s_mov_b32 s34, s17"); a("s_mov_b32 s35, 0x20000")
    a("v_lshrrev_b32 v4, 3, v2")
    a("v_lshlrev_b32 v5, 11, v4")
    a("v_and_b32 v6, 7, v2")
    a("v_lshrrev_b32 v7, 4, v2")
    a("v_xor_b32 v8, v6, v7")
    a("v_lshlrev_b32 v8, 4, v8")
    a("v_add_u32 v5, v5, v8")
    a("s_lshl_b32 s16, s15, 16")
    a("v_add_u32 v10, s16, v5")
    a("v_xor_b32 v11, 64, v10")
    a("v_mul_u32_u24 v5, 6144, v4")
    a("v_and_b32 v7, 1, v7")
    a("v_lshlrev_b32 v7, 2, v7")
    a("v_xor_b32 v8, v6, v7")
    a("v_lshlrev_b32 v8, 4, v8")
    a("v_add_u32 v5, v5, v8")
    a("s_mul_i32 s16, s15, 98304")
    a("v_add_u32 v12, s16, v5")
    a("s_lshl_b32 s18, s15, 12")
    a("s_lshl_b32 s19, s15, 11")
    a("s_add_u32 s19, s19, 16384")
    a("s_mov_b32 s20, s13")
    a("s_mov_b32 s36, 0")
    if E("X0PF", 0):
        a("s_and_b32 s36, s10, 1")
        a("s_lshl_b32 s36, s36, 6")
        a("v_add_u32 v13, s36, v2")
        a("v_lshlrev_b32 v13, 11, v13")
        a("s_lshl_b32 s36, s15, 7")
        a("buffer_load_dword v16, v13, s[28:31], s36 offen")
        a("s_mov_b32 s36, 0")
        a("s_waitcnt vmcnt(0)")
    first = [True]
    XPF = E("XPF", 0)
    NV = 11 if XPF else 10
    if XPF:
        a("v_and_b32 v13, 15, v2")
        a("s_and_b32 s36, s10, 1")
        a("s_lshl_b32 s36, s36, 2")
        a("s_add_u32 s36, s36, s15")
        a("s_lshl_b32 s36, s36, 4")
        a("v_add_u32 v13, s36, v13")
        a("v_lshlrev_b32 v13, 11, v13")
        a("s_mov_b32 s36, 0")
    if E("DIAG1"): stamp(a, 4)
    def issue_stage():
        a("s_lshl_b32 s21, s20, 7")
        a("s_mul_i32 s22, s20, 393216")
        a("s_add_u32 s37, s36, s18")
        a("s_add_u32 s39, s36, s19")
        for i in range(4):
            a(f"s_add_u32 m0, s37, {i*1024}")
            a(f"s_add_u32 s38, s21, {i*16384}")
            a(f"buffer_load_dwordx4 v{10+(i&1)}, s[28:31], s38 offen lds")
            if E("DIAG1") and first[0] and i in (0, 3): stamp(a, 5 if i == 0 else 6)
        for t in range(3):
            for kb in range(2):
                a(f"s_add_u32 m0, s39, {t*8192+kb*1024}")
                a(f"s_add_u32 s38, s22, {t*2048+kb*49152}")
                a(f"buffer_load_dwordx4 v12, s[32:35], s38 offen lds")
                if E("DIAG1") and first[0] and kb == 0 and t == 0: stamp(a, 7)
        first[0] = False
        if XPF:
            a(f"s_add_u32 s38, s20, {XPF}")
            a("s_lshl_b32 s37, s38, 7")
            a("s_cmp_lt_u32 s38, 16")
            a("s_cselect_b32 s38, s37, 0x7ff00000")
            a("buffer_load_dword v16, v13, s[28:31], s38 offen")
        a("s_add_u32 s20, s20, 1")
        a("s_and_b32 s20, s20, 15")
        a(f"s_add_u32 s36, s36, {G1_SLOT}")
        a(f"s_cmp_eq_u32 s36, {G1_SLOT*G1_NSLOT}")
        a("s_cselect_b32 s36, 0, s36")
    issue_stage()
    stamp(a, 2)
    issue_stage()
    a(f"s_waitcnt vmcnt({NV})")
    stamp(a, 3)
    a("s_barrier")
    if E("DIAG1"):
        a("s_waitcnt vmcnt(0)"); stamp(a, 8); stamp_rt(a, 13); stamp_store(a, 16); a("s_endpgm")
    dbgt(a, 13, True); dbgt(a, 14)
    LA = E("LA", 3)
    if LA == 3:
        issue_stage()
        a("s_mov_b32 s23, 0")
        a.label("L_g1_ldloop")
        a(f"s_waitcnt vmcnt({NV})")
        a("s_barrier")
        issue_stage()
        a("s_add_u32 s23, s23, 1")
        a("s_cmp_lt_u32 s23, 13")
        a("s_cbranch_scc1 L_g1_ldloop")
        for k in range(3):
            a(f"s_waitcnt vmcnt({NV if k == 0 else 0})")
            a("s_barrier")
    else:
        issue_stage(); issue_stage()
        for k in range(3):
            a(f"s_waitcnt vmcnt({2*NV})")
            a("s_barrier")
            issue_stage()
        a("s_mov_b32 s23, 3")
        a.label("L_g1_ldloop")
        a(f"s_waitcnt vmcnt({NV*(G1_NSLOT-2)})")
        a("s_barrier")
        issue_stage()
        a("s_add_u32 s23, s23, 1")
        a(f"s_cmp_lt_u32 s23, {16-G1_NSLOT}")
        a("s_cbranch_scc1 L_g1_ldloop")
        for k in range(G1_NSLOT):
            a(f"s_waitcnt vmcnt({NV*max(0, G1_NSLOT-2-k)})")
            a("s_barrier")
    if E("DIAG5"): a("s_endpgm")
    at_consts()
    a("s_branch L_g1_done")
    a.label("L_g1_compute")
    ACC = 128; SETS = [64, 84]; XA = 104; WA = 108
    QPF = E("QPF", 1)
    NSH = {2: 16, 0: 8, 1: 4}[E("MAP", 2)]
    def qpf(tag):
        a("s_cmp_eq_u32 s14, 3")
        a(f"s_cbranch_scc1 L_qpf_x{tag}")
        a("s_cmp_eq_u32 s14, 0")
        a(f"s_cbranch_scc0 L_qpf_done{tag}")
        a("global_load_dword v16, v14, s[6:7]")
        a("v_add_u32 v14, 1572864, v14")
        if NSH == 8:
            a("global_load_dword v16, v15, s[6:7]")
            a("v_add_u32 v15, 1572864, v15")
        a(f"s_branch L_qpf_done{tag}")
        a.label(f"L_qpf_x{tag}")
        a("global_load_dwordx4 v[16:19], v14, s[4:5]")
        a("v_add_u32 v13, 4096, v14")
        a("global_load_dwordx4 v[16:19], v15, s[4:5]")
        a("global_load_dwordx4 v[16:19], v13, s[4:5]")
        a("v_add_u32 v13, 4096, v15")
        a("v_add_u32 v14, 512, v14")
        a("global_load_dwordx4 v[16:19], v13, s[4:5]")
        a("v_add_u32 v15, 512, v15")
        a.label(f"L_qpf_done{tag}")
    if QPF:
        a("s_cmp_eq_u32 s14, 3")
        a("s_cbranch_scc1 L_qpf_setx")
        def wline(dst, lane0, nl):
            a(f"v_min_u32 v{dst}, {nl-1}, v2")
            a(f"s_and_b32 s16, s11, {NSH-1}")
            a(f"s_mul_i32 s16, s16, {768//NSH}")
            a(f"s_add_u32 s16, s16, {lane0}")
            a(f"v_add_u32 v{dst}, s16, v{dst}")
            a("s_mov_b32 s17, 0x5556")
            a(f"v_mul_u32_u24 v12, s17, v{dst}")
            a("v_lshrrev_b32 v12, 16, v12")
            a("v_mul_u32_u24 v13, 3, v12")
            a(f"v_sub_u32 v13, v{dst}, v13")
            a(f"v_mul_u32_u24 v{dst}, 6144, v12")
            a("v_lshlrev_b32 v13, 11, v13")
            a(f"v_add_u32 v{dst}, v{dst}, v13")
            a("s_lshl_b32 s16, s10, 7")
            a(f"v_add_u32 v{dst}, s16, v{dst}")
        if NSH == 16:
            wline(14, 0, 48); a("v_mov_b32 v15, v14")
        else:
            wline(14, 0, 64); wline(15, 64, 32)
        a("s_branch L_qpf_set")
        a.label("L_qpf_setx")
        a("v_lshrrev_b32 v14, 5, v2")
        a("v_lshlrev_b32 v14, 11, v14")
        a("v_and_b32 v15, 31, v2")
        a("v_lshlrev_b32 v15, 4, v15")
        a("v_add_u32 v14, v14, v15")
        a("s_lshl_b32 s16, s2, 14")
        a("v_add_u32 v14, s16, v14")
        a("v_add_u32 v15, 8192, v14")
        a.label("L_qpf_set")
        qpf("a")
    a("s_cmp_eq_u32 s14, 0")
    a("s_cbranch_scc0 L_nocas")
    a("v_mov_b32 v243, 0")
    a("s_cmp_eq_u32 s2, 0")
    a("s_cbranch_scc0 L_nocas")
    a("s_memrealtime s[16:17]")
    a("s_waitcnt lgkmcnt(0)")
    a("s_or_b32 s16, s16, 1")
    a("v_mov_b32 v240, s16")
    a("s_mov_b64 exec, 1")
    a("global_store_dword v243, v240, s[44:45] sc1")
    a("s_mov_b64 exec, -1")
    a.label("L_nocas")
    a("s_lshl_b32 s16, s2, 13")
    a("s_lshl_b32 s17, s14, 11")
    a("s_add_u32 s16, s16, s17")
    a("v_add_u32 v4, s16, v3")
    a("global_load_dwordx4 v[16:19], v4, s[40:41]")
    a("global_load_dwordx4 v[16:19], v4, s[40:41] offset:1024")
    a("s_getpc_b64 s[16:17]")
    a.label("L_pc")
    a("s_sub_u32 s16, s16, L_pc-" + KNAME)
    a("s_subb_u32 s17, s17, 0")
    a("v_lshlrev_b32 v4, 7, v2")
    a("s_lshl_b32 s18, s14, 13")
    a("v_add_u32 v4, s18, v4")
    a("v_cmp_gt_u32 vcc, L_end-" + KNAME + ", v4")
    a("s_and_saveexec_b64 s[18:19], vcc")
    a("s_cbranch_execz L_nocode")
    a("global_load_dword v16, v4, s[16:17]")
    a.label("L_nocode")
    a("s_mov_b64 exec, s[18:19]")
    a("s_lshr_b32 s15, s14, 1")
    a("s_and_b32 s16, s14, 1")
    a("v_and_b32 v4, 31, v2")
    a("s_lshl_b32 s17, s15, 6")
    a("v_add_u32 v4, s17, v4")
    a("v_lshlrev_b32 v4, 7, v4")
    a("v_lshrrev_b32 v5, 1, v2")
    a("v_and_b32 v5, 7, v5")
    a("v_lshrrev_b32 v6, 5, v2")
    a("v_xor_b32 v5, v5, v6")
    for ks in range(4):
        a(f"v_xor_b32 v7, {2*ks}, v5")
        a(f"v_lshlrev_b32 v7, 4, v7")
        a(f"v_add_u32 v{XA+ks}, v4, v7")
    a("v_and_b32 v7, 15, v2")
    a("v_lshrrev_b32 v7, 2, v7")
    a("v_lshlrev_b32 v8, 3, v6")
    a("v_add_u32 v8, v8, v7")
    a("v_lshlrev_b32 v8, 7, v8")
    a("v_lshrrev_b32 v9, 4, v2")
    a("v_and_b32 v9, 1, v9")
    a("v_lshlrev_b32 v9, 1, v9")
    a("v_and_b32 v10, 3, v2")
    a("v_lshrrev_b32 v11, 1, v10")
    a("v_add_u32 v9, v9, v11")
    a("s_lshl_b32 s17, s16, 2")
    a("v_add_u32 v9, s17, v9")
    a("v_lshrrev_b32 v11, 1, v7")
    a("v_lshlrev_b32 v11, 2, v11")
    a("v_xor_b32 v9, v9, v11")
    a("v_lshlrev_b32 v9, 4, v9")
    a("v_add_u32 v8, v8, v9")
    a("v_and_b32 v10, 1, v10")
    a("v_lshlrev_b32 v10, 3, v10")
    a("v_add_u32 v8, v8, v10")
    a(f"v_add_u32 v{WA}, 16384, v8")
    for r in range(96): a(f"v_mov_b32 v{ACC+r}, 0")
    if E("PREF", 0):
        a("s_lshl_b32 s19, s2, 14")
        a("s_lshl_b32 s17, s14, 12")
        a("s_add_u32 s19, s19, s17")
        a("v_add_u32 v4, s19, v3")
        for q in range(4): a(f"global_load_dwordx4 v[{16+4*q}:{19+4*q}], v4, s[4:5] offset:{q*1024}")
        a("s_mul_i32 s19, s2, 24576")
        a("s_mul_i32 s17, s14, 6144")
        a("s_add_u32 s19, s19, s17")
        a("v_add_u32 v4, s19, v3")
        for q in range(4): a(f"global_load_dwordx4 v[{32+4*q}:{35+4*q}], v4, s[6:7] offset:{q*1024}")
        a("v_add_u32 v4, 4096, v4")
        for q in range(2): a(f"global_load_dwordx4 v[{48+4*q}:{51+4*q}], v4, s[6:7] offset:{q*1024}")
    at_consts()
    a("s_lshl_b32 s17, s10, 1")
    a("s_add_u32 s17, s17, s16")
    a("s_lshl_b32 s19, s11, 2")
    a("s_lshl_b32 s20, s15, 1")
    a("s_add_u32 s19, s19, s20")
    a("s_lshl_b32 s20, s17, 6")
    a("s_add_u32 s20, s20, s19")
    a("s_lshl_b32 s48, s20, 12")
    a("s_lshl_b32 s20, s15, 14")
    a("s_lshl_b32 s21, s16, 12")
    a("s_add_u32 s20, s20, s21")
    a("v_add_u32 v57, s20, v3")
    a("s_lshl_b32 s20, s16, 2")
    a("s_lshl_b32 s21, s15, 1")
    a("s_add_u32 s20, s20, s21")
    a("s_lshl_b32 s20, s20, 11")
    a(f"s_add_u32 s20, s20, {QX_OFF}")
    a("v_add_u32 v58, s20, v3")
    a(f"s_mov_b32 s23, {f32bits(QSCALE)}")
    a("s_mov_b32 s18, 0")
    a(f"s_mov_b32 s21, {-(G1_NSLOT-1)*G1_SLOT & 0xffffffff}")
    a(f"s_mov_b32 s22, {G1_SLOT}")
    a("s_barrier")
    if E("DIAG1"):
        a("s_waitcnt vmcnt(0)"); a("s_endpgm")
    stamp(a, 2)
    a("v_mov_b32 v243, 0")
    a("global_load_dword v242, v243, s[44:45] sc1")
    if QPF: qpf("b")
    lg = Lgkm(a)
    def reads(setb, ks, tagp):
        x0, x1, w0, w1, w2 = setb, setb+4, setb+8, setb+12, setb+16
        return [(tagp+"x0", f"ds_read_b128 {vr(x0,4)}, v{XA+ks}"),
                (tagp+"w0", f"ds_read_b64_tr_b16 {vr(w0,2)}, v{WA} offset:{ks*2048}"),
                (tagp+"w0", f"ds_read_b64_tr_b16 {vr(w0+2,2)}, v{WA} offset:{ks*2048+512}"),
                (tagp+"x1", f"ds_read_b128 {vr(x1,4)}, v{XA+ks} offset:4096"),
                (tagp+"w1", f"ds_read_b64_tr_b16 {vr(w1,2)}, v{WA} offset:{8192+ks*2048}"),
                (tagp+"w1", f"ds_read_b64_tr_b16 {vr(w1+2,2)}, v{WA} offset:{8192+ks*2048+512}"),
                (tagp+"w2", f"ds_read_b64_tr_b16 {vr(w2,2)}, v{WA} offset:{16384+ks*2048}"),
                (tagp+"w2", f"ds_read_b64_tr_b16 {vr(w2+2,2)}, v{WA} offset:{16384+ks*2048+512}")]
    def mfma(setb, i, t):
        x = setb + 4*i; w = setb + 8 + 4*t; acc = ACC + 16*(i*3+t)
        if t < 2: return f"v_mfma_f32_32x32x16_bf16 {vr(acc,16)}, {vr(w,4)}, {vr(x,4)}, {vr(acc,16)}"
        return f"v_mfma_f32_32x32x16_bf16 {vr(acc,16)}, {vr(x,4)}, {vr(w,4)}, {vr(acc,16)}"
    for tag, ins in reads(SETS[0], 0, "A"):
        a(ins); lg.issue(tag)
    a.raw(".p2align 6")
    a.label("L_g1_loop")
    order = [(0,1),(0,2),(1,1),(1,2),(0,0),(1,0)]
    needs = [["x0","w1"],["w2"],["x1"],[],["w0"],[]]
    def reads2(setb, ks, tagp):
        R = reads(setb, ks, tagp)
        return [R[0], R[4], R[5], R[6], R[7], R[3], R[1], R[2]]
    a.l = a.l[:-10]; lg.q = []
    for tag, ins in reads2(SETS[0], 0, "A"):
        a(ins); lg.issue(tag)
    a.raw(".p2align 6")
    a.label("L_g1_loop")
    for ks in range(4):
        cur = SETS[ks & 1]; nxt = SETS[(ks+1) & 1]
        cp = "AB"[ks & 1]; np_ = "AB"[(ks+1) & 1]
        if ks == 3:
            if not (E("NOLGALL", 0) and E("LA", 3) == 3): lg.all()
            a("s_add_u32 s18, s18, 1")
            if QPF:
                a("s_and_b32 s19, s18, 11")
                a("s_cmp_eq_u32 s19, 2")
                a("s_cbranch_scc1 L_qpf_out")
                a.label("L_qpf_back")
            a("s_and_b32 s19, s18, %d" % (G1_NSLOT-1))
            a("s_cmp_eq_u32 s19, 0")
            a("s_cselect_b32 s20, s21, s22")
            for k in range(4): a(f"v_add_u32 v{XA+k}, s20, v{XA+k}")
            a(f"v_add_u32 v{WA}, s20, v{WA}")
            a("s_barrier")
            if E("DIAG5"):
                a("s_memtime s[92:93]"); a("s_waitcnt lgkmcnt(0)")
                a("s_mov_b32 m0, s18")
                a("s_movreld_b32 s64, s92")
        R = reads2(nxt, (ks+1) & 3, np_)
        slots = [[], R[0:2], R[2:4], R[4:6], R[6:8], []]
        for k in range(6):
            for tag, ins in slots[k]:
                a(ins); lg.issue(tag)
            lg.need([cp+t for t in needs[k]])
            a(mfma(cur, *order[k]))
    a("s_cmp_lt_u32 s18, 16")
    a("s_cbranch_scc1 L_g1_loop")
    if E("DIAG4"): a("s_endpgm")
    if E("DIAG5"):
        a("s_lshl_b32 s58, s2, 3"); a("s_add_u32 s58, s58, s14"); a("s_lshl_b32 s58, s58, 7")
        a(f"s_add_u32 s58, s58, {STAMP_OFF}")
        a("s_add_u32 s56, s8, s58"); a("s_addc_u32 s57, s9, 0")
        a("v_mov_b32 v254, 0")
        a("v_mov_b32 v255, s62"); a("global_store_dword v254, v255, s[56:57]")
        a("v_mov_b32 v255, s64"); a("global_store_dword v254, v255, s[56:57] offset:4")
        for k in range(1, 17):
            a(f"v_mov_b32 v255, s{64+k}"); a(f"global_store_dword v254, v255, s[56:57] offset:{4+4*k}")
        a("s_waitcnt vmcnt(0)"); a("s_endpgm")
    a("s_waitcnt lgkmcnt(0) vmcnt(0)")
    stamp(a, 3)
    a("s_nop 11")
    T = 64
    n = 0
    for i in range(2):
        for t in (1, 2):
            acc = ACC + 16*(i*3+t); base = T + 8*(n % 4); n += 1
            for r in range(8): a(f"v_cvt_pk_bf16_f32 v{base+r}, v{acc+2*r}, v{acc+2*r+1}")
            o = i*4096 + (t-1)*2048
            a(f"s_add_u32 s28, s48, {o}")
            KVST = {0: " sc1", 1: "", 2: " sc0 sc1", 3: " sc1 nt"}[E("KVST", 0)]
            a(f"buffer_store_dwordx4 {vr(base,4)}, v3, s[24:27], s28 offen{KVST}")
            a(f"buffer_store_dwordx4 {vr(base+4,4)}, v3, s[24:27], s28 offen offset:1024{KVST}")
            a(f"ds_write_b128 v57, {vr(base,4)} offset:{i*8192+(t-1)*2048}")
            a(f"ds_write_b128 v57, {vr(base+4,4)} offset:{i*8192+(t-1)*2048+1024}")
    for i in range(2):
        acc = ACC + 16*(i*3); base = 96 + 8*i
        for r in range(16): a(f"v_mul_f32 v{acc+r}, s23, v{acc+r}")
        for r in range(8): a(f"v_cvt_pk_bf16_f32 v{base+r}, v{acc+2*r}, v{acc+2*r+1}")
        a(f"ds_write_b128 v58, {vr(base,4)} offset:{i*2048}")
        a(f"ds_write_b128 v58, {vr(base+4,4)} offset:{i*2048+1024}")
    a("s_cmp_eq_u32 s14, 0")
    a("s_cbranch_scc0 L_noep")
    a("s_mov_b32 s19, 0")
    a.label("L_tag_spin")
    a("v_readfirstlane_b32 s20, v242")
    a("s_add_u32 s19, s19, 1")
    a("s_cmp_lg_u32 s20, 0")
    a("s_cbranch_scc1 L_tag_ok")
    a(f"s_cmp_ge_u32 s19, {POLL_MAX}")
    a("s_cbranch_scc1 L_tag_ok")
    a("s_sleep 1")
    a("global_load_dword v242, v243, s[44:45] sc1")
    a("s_waitcnt vmcnt(0)")
    a("s_branch L_tag_spin")
    a.label("L_tag_ok")
    a(f"v_mov_b32 v6, {EP_OFF}")
    a("s_mov_b64 exec, 1")
    a("ds_write_b32 v6, v242")
    a("v_mov_b32 v7, 0")
    a(f"ds_write_b64 v6, v[7:8] offset:64" if False else f"ds_write_b32 v6, v7 offset:64")
    a(f"ds_write_b32 v6, v7 offset:68")
    a("s_mov_b64 exec, -1")
    a.label("L_noep")
    a("s_waitcnt lgkmcnt(0)")
    a.label("L_g1_done")
    a("s_barrier")
    dbgt(a, 3, True); dbgt(a, 4)
    stamp(a, 4)
    Q, K, V = 8, 16, 24
    S = [32, 48]; P = [64, 72]; O = 80; L = 96; M = 107
    a("s_lshr_b32 s15, s14, 2")
    a("s_and_b32 s16, s14, 3")
    a("s_lshl_b32 s17, s10, 1")
    a("s_add_u32 s17, s17, s15")
    a("s_lshl_b32 s18, s11, 2")
    a("s_add_u32 s18, s18, s16")
    a("s_lshl_b32 s20, s14, 11")
    a(f"s_add_u32 s20, s20, {QX_OFF}")
    a("v_add_u32 v4, s20, v3")
    a(f"ds_read_b128 {vr(Q,4)}, v4")
    a(f"ds_read_b128 {vr(Q+4,4)}, v4 offset:1024")
    a(f"v_mov_b32 v6, {EP_OFF}")
    a("ds_read_b32 v6, v6")
    a(f"ds_read_b128 {vr(K,4)}, v{VLO}")
    a(f"ds_read_b128 {vr(K+4,4)}, v{VLO} offset:1024")
    for r in range(4): a(f"v_mov_b32 v{L+r}, 0")
    a("s_lshl_b32 s20, s17, 18")
    a("s_add_u32 s28, s8, s20"); a("s_addc_u32 s29, s9, 0"); a("s_mov_b32 s30, 262144"); a("s_mov_b32 s31, 0x20000")
    a("s_lshl_b32 s21, s16, 13")
    a("s_lshl_b32 s36, s15, 12")
    a("s_add_u32 s21, s21, s36")
    a("s_waitcnt lgkmcnt(0)")
    a("v_readfirstlane_b32 s46, v6")
    a(f"v_mfma_f32_32x32x16_bf16 {vr(S[0],16)}, {vr(K,4)}, {vr(Q,4)}, 0")
    a(f"v_mfma_f32_32x32x16_bf16 {vr(S[0],16)}, {vr(K+4,4)}, {vr(Q+4,4)}, {vr(S[0],16)}")
    lg = Lgkm(a)
    def ldsa(slot, t, f):
        off = slot*AT_SLOT + t*8192 + f*1024
        return f"v{VLO if off < 65536 else VHI} offset:{off & 0xffff}"
    a(f"ds_read_b128 {vr(K,4)}, {ldsa(0,1,0)}"); lg.issue("K")
    a(f"ds_read_b128 {vr(K+4,4)}, {ldsa(0,1,1)}"); lg.issue("K")
    a("s_nop 7")
    PRIO = E("PRIO", 1)
    def at_step(i, own, slot, tag=""):
        X = S[i & 1]; Y = S[(i+1) & 1]; PX = P[i & 1]; PY = P[(i+1) & 1]
        ex = lambda r: a(f"v_exp_f32 v{X+r}, v{X+r}")
        cv = lambda r: a(f"v_cvt_pk_bf16_f32 v{PX+r}, v{X+2*r}, v{X+2*r+1}")
        def kread():
            t = i + 2
            if own and t >= 4: return
            sl = slot if t < 4 else (slot+1) & 3
            a(f"ds_read_b128 {vr(K,4)}, {ldsa(sl, t % 4, 0)}"); lg.issue("K")
            a(f"ds_read_b128 {vr(K+4,4)}, {ldsa(sl, t % 4, 1)}"); lg.issue("K")
        def vread():
            a(f"ds_read_b128 {vr(V,4)}, {ldsa(slot, i, 2)}"); lg.issue("V")
            a(f"ds_read_b128 {vr(V+4,4)}, {ldsa(slot, i, 3)}"); lg.issue("V")
        def dma1(q):
            if own or E("DMAMODE", 1) == 0: return
            a(f"buffer_load_dwordx4 v{VD0+q}, s[28:31], s55 offen offset:{q*1024}{KVSC} lds")
        qk0 = f"v_mfma_f32_32x32x16_bf16 {vr(Y,16)}, {vr(K,4)}, {vr(Q,4)}, 0"
        qk1 = f"v_mfma_f32_32x32x16_bf16 {vr(Y,16)}, {vr(K+4,4)}, {vr(Q+4,4)}, {vr(Y,16)}"
        pv0 = f"v_mfma_f32_32x32x16_bf16 {vr(O,16)}, {vr(V,4)}, {vr(PY,4)}, {vr(O,16)}"
        pv1 = f"v_mfma_f32_32x32x16_bf16 {vr(O,16)}, {vr(V+4,4)}, {vr(PY+4,4)}, {vr(O,16)}"
        smf = f"v_smfmac_f32_16x16x64_bf16 {vr(L,4)}, {vr(ONES,4)}, {vr(PY,8)}, v{IDX}"
        if own and i == 1: pv0 = f"v_mfma_f32_32x32x16_bf16 {vr(O,16)}, {vr(V,4)}, {vr(PY,4)}, 0"
        nopv = own and i == 0
        if PRIO: a(f"s_setprio {3-i}")
        has_qk = not (own and i == 3)
        if own and i == E("FLAGSTEP", 2):
            a("s_cmp_lt_u32 s14, 4")
            a("s_cbranch_scc1 L_flag_out")
            a.label("L_flag_back")
        SCH = E("SCH", 1)
        if SCH == 0:
            if has_qk:
                lg.need(["K"]); a(qk0)
            ex(0); ex(1); ex(2); ex(3)
            if has_qk: a(qk1)
            if i == 2 and not own and not E("X_NOSYNC"):
                lg.need(["C"])
                a(f"v_readfirstlane_b32 s36, v{VCV}")
                ex(4)
                a("s_cmp_ge_u32 s36, s47")
                a(f"s_cbranch_scc0 L_cnt_spin{tag}")
                a.label(f"L_cnt_back{tag}")
                kread(); ex(5); cv(0); ex(6); cv(1)
            else:
                kread(); ex(4); ex(5); cv(0); ex(6); cv(1)
            lg.need(["V"])
            if i == 0 and not own and not E("X_NOSYNC"):
                a("s_waitcnt vmcnt(4)")
                a(f"ds_add_u32 v{VCA}, v{VONE}"); lg.issue("A")
            a(pv0); ex(7)
            if i == 2 and not own: a(f"s_add_u32 m0, s21, {((slot+3)&3)*AT_SLOT}")
            ex(8); cv(2)
            if i >= 2: dma1(2*(i-2))
            ex(9); cv(3)
            a(pv1)
            if i == 1 and not own and not E("X_NOSYNC"):
                a(f"ds_read_b32 v{VCV}, v{VCR}"); lg.issue("C")
            if i >= 2: dma1(2*(i-2)+1)
            ex(10); ex(11); cv(4); ex(12); cv(5)
            a(smf); vread(); ex(13); ex(14); cv(6); ex(15)
            if i == 3 and not own:
                a("s_add_u32 s55, s55, s56")
                cv(7)
                a("s_and_b32 s55, s55, s57")
                a("s_add_u32 s47, s47, 4")
            else:
                a("s_nop 0")
                cv(7)
        else:
            if E("INITORD", 0) and tag == "0" and i == 2 and not own:
                a("s_cmp_eq_u32 s47, 4")
                a("s_cbranch_scc0 L_io_nw2")
                if E("INITORD", 0) >= 2:
                    a("s_waitcnt vmcnt(0)")
                    if E("INITORD", 0) == 3:
                        a("s_and_b32 s36, s14, 3")
                        a("s_cmp_eq_u32 s36, 3")
                        a("s_cbranch_scc0 L_io_go")
                        a("v_cmp_ne_u32 vcc, s46, v5")
                        a("s_cmp_eq_u64 vcc, 0")
                        a("s_cbranch_scc1 L_io_go")
                        poll(a, "f2", 239)
                        a("s_mov_b32 s47, 4")
                        a.label("L_io_go")
                    if E("COMMON", 1):
                        a("s_cmp_le_u32 s11, 2")
                        a("s_cselect_b32 s36, 3, 2")
                    else:
                        a("s_add_u32 s36, s11, 3")
                        a("s_and_b32 s36, s36, 15")
                    a(f"s_add_u32 m0, s21, {3*AT_SLOT}")
                    a("s_lshl_b32 s36, s36, 14")
                    for q in range(4):
                        a(f"buffer_load_dwordx4 v{VD0+q}, s[28:31], s36 offen offset:{q*1024}{KVSC} lds")
                else:
                    a("s_waitcnt vmcnt(4)")
                a.label("L_io_nw2")
                a(f"ds_add_u32 v{VCA}, v113"); lg.issue("A2")
            if E("INITORD", 0) and tag == "0" and i == 3 and not own:
                a("v_mov_b32 v112, 1"); a("v_mov_b32 v113, 0")
            if has_qk:
                lg.need(["K"]); a(qk0)
            ex(0); ex(1); ex(2); ex(3)
            if has_qk: a(qk1)
            if i == 2 and not own and not E("X_NOSYNC"):
                lg.need(["C"])
                a(f"v_cmp_gt_u32 vcc, s47, v{VCV}")
                ex(4); ex(5)
                a(f"s_cbranch_vccnz L_cnt_spin{tag}")
                a.label(f"L_cnt_back{tag}")
                kread(); ex(6); ex(7)
            else:
                kread(); ex(4); ex(5); ex(6); ex(7)
            lg.need(["V"])
            if i == 0 and not own and not E("X_NOSYNC"):
                if E("INITORD", 0) and tag == "0":
                    a("s_cmp_eq_u32 s47, 4")
                    a("s_cbranch_scc1 L_io_nw0")
                    a("s_waitcnt vmcnt(4)")
                    a.label("L_io_nw0")
                    a(f"ds_add_u32 v{VCA}, v112"); lg.issue("A")
                else:
                    a("s_waitcnt vmcnt(4)")
                    a(f"ds_add_u32 v{VCA}, v{VONE}"); lg.issue("A")
            if not nopv: a(pv0)
            ex(8)
            if i == 2 and not own: a(f"s_add_u32 m0, s21, {((slot+3)&3)*AT_SLOT}")
            ex(9)
            if i >= 2: dma1(2*(i-2))
            ex(10); ex(11)
            if not nopv: a(pv1)
            if i == 1 and not own and not E("X_NOSYNC"):
                a(f"ds_read_b32 v{VCV}, v{VCR}"); lg.issue("C")
            if i >= 2: dma1(2*(i-2)+1)
            ex(12); ex(13); ex(14); ex(15)
            if not nopv: a(smf)
            vread()
            if nopv: a("s_nop 0")
            cv(0); cv(1); cv(2)
            if i == 3 and not own: a("s_add_u32 s55, s55, s56")
            cv(3); cv(4)
            if i == 3 and not own: a("s_and_b32 s55, s55, s57")
            if i == 3 and not own and E("COMMON", 1):
                a("s_cmp_eq_u32 s55, s60"); a("s_cselect_b32 s36, 16384, 0")
            cv(5); cv(6)
            if i == 3 and not own: a("s_add_u32 s47, s47, 4")
            if i == 3 and not own and E("COMMON", 1): a("s_add_u32 s55, s55, s36")
            cv(7)
    for i in range(4): at_step(i, True, 0)
    stamp(a, 5)
    a("s_cmp_eq_u32 s14, 7")
    a("s_cbranch_scc0 L_at_nopoll")
    if E("PART1", 1):
        if E("COMMON", 1):
            a("s_cmp_lt_u32 s11, 3")
            a("s_cselect_b32 s48, 16, 12")
            a("s_bfm_b32 s48, s48, 0")
            a("s_mov_b32 s49, 0")
            poll(a, "f", 239, 48)
            a("s_branch L_at_nopoll")
        a("s_add_u32 s36, s11, 1")
        a("s_lshl_b32 s36, s36, 2")
        a("s_and_b32 s36, s36, 63")
        a("s_sub_u32 s37, 64, s36")
        a("s_mov_b64 s[58:59], 0xfff")
        a("s_lshl_b64 s[48:49], s[58:59], s36")
        a("s_lshr_b64 s[58:59], s[58:59], s37")
        a("s_cmp_eq_u32 s36, 0")
        a("s_cselect_b64 s[58:59], 0, s[58:59]")
        a("s_or_b64 s[48:49], s[48:49], s[58:59]")
        if not E("COMMON", 1): poll(a, "f", 239, 48)
    else:
        poll(a, "f", 239)
    a.label("L_at_nopoll")
    a("s_barrier")
    stamp(a, 6)
    def kvstage(st):
        if E("COMMON", 1):
            a(f"s_cmp_le_u32 s11, {st-1}")
            a(f"s_cselect_b32 s36, {st}, {st-1}")
        else:
            a(f"s_add_u32 s36, s11, {st}")
            a("s_and_b32 s36, s36, 15")
        a(f"s_add_u32 m0, s21, {st*AT_SLOT}")
        a("s_lshl_b32 s36, s36, 14")
        for q in range(4):
            a(f"buffer_load_dwordx4 v{VD0+q}, s[28:31], s36 offen offset:{q*1024}{KVSC} lds")
    INITORD = E("INITORD", 0)
    if INITORD == 3:
        kvstage(1)
        a("s_waitcnt vmcnt(0)")
        a("v_mov_b32 v112, 0"); a("v_mov_b32 v113, 1")
    elif INITORD == 2:
        kvstage(1)
        a("s_and_b32 s36, s14, 3")
        a("s_cmp_eq_u32 s36, 3")
        a("s_cbranch_scc0 L_io_nolook")
        a("buffer_load_dword v5, v239, s[24:27], 0 offen sc1")
        a("s_waitcnt vmcnt(1)")
        a("s_branch L_io_looked")
        a.label("L_io_nolook")
        a("s_waitcnt vmcnt(0)")
        a.label("L_io_looked")
        a("v_mov_b32 v112, 0"); a("v_mov_b32 v113, 1")
    elif INITORD:
        kvstage(1)
        a("s_mov_b32 s58, 0")
        a("s_and_b32 s36, s14, 3")
        a("s_cmp_eq_u32 s36, 3")
        a("s_cbranch_scc0 L_io_nolook")
        a("buffer_load_dword v5, v239, s[24:27], 0 offen sc1")
        a("s_waitcnt vmcnt(0)")
        a("v_cmp_ne_u32 vcc, s46, v5")
        a("s_cmp_eq_u64 vcc, 0")
        a("s_cselect_b32 s58, 1, 0")
        a.label("L_io_nolook")
        a("s_waitcnt vmcnt(0)")
        kvstage(2)
        a("v_mov_b32 v112, 0"); a("v_mov_b32 v113, 1")
    else:
        kvstage(1); kvstage(2)
    if E("COMMON", 1):
        a("s_cmp_le_u32 s11, 3")
        a("s_cselect_b32 s55, 4, 3")
        a("s_lshl_b32 s60, s11, 14")
    else:
        a("s_add_u32 s55, s11, 4")
        a("s_and_b32 s55, s55, 15")
    a("s_lshl_b32 s55, s55, 14")
    a("s_mov_b32 s56, 16384"); a("s_mov_b32 s57, 0x3c000")
    a("s_mov_b32 s47, 4")
    if E("DIAG8"): stamp(a, 5)
    if not INITORD: a("s_waitcnt vmcnt(4)")
    if E("DIAG8"): stamp(a, 15)
    a("s_barrier")
    if INITORD >= 2: kvstage(2)
    if INITORD == 3:
        a("s_and_b32 s36, s14, 3")
        a("s_cmp_eq_u32 s36, 3")
        a("s_cbranch_scc0 L_io_nolook")
        a("buffer_load_dword v5, v239, s[24:27], 0 offen sc1")
        a.label("L_io_nolook")
    elif E("PART1", 1):
        a("s_and_b32 s36, s14, 3")
        a("s_cmp_eq_u32 s36, 3")
        a("s_cbranch_scc0 L_at_nopoll2")
        if INITORD == 2:
            a("s_waitcnt vmcnt(4)")
            a("v_cmp_ne_u32 vcc, s46, v5")
            a("s_cmp_eq_u64 vcc, 0")
            a("s_cbranch_scc1 L_at_nopoll2")
        elif INITORD:
            a("s_cmp_eq_u32 s58, 1")
            a("s_cbranch_scc1 L_at_nopoll2")
        poll(a, "f2", 239)
        a("s_mov_b32 s47, 4")
        a.label("L_at_nopoll2")
    if INITORD < 2: kvstage(3)
    stamp(a, 7)
    a(f"ds_read_b128 {vr(K,4)}, {ldsa(1,0,0)}")
    a(f"ds_read_b128 {vr(K+4,4)}, {ldsa(1,0,1)}")
    a("s_waitcnt lgkmcnt(0)")
    a(f"v_mfma_f32_32x32x16_bf16 {vr(S[0],16)}, {vr(K,4)}, {vr(Q,4)}, 0")
    a(f"v_mfma_f32_32x32x16_bf16 {vr(S[0],16)}, {vr(K+4,4)}, {vr(Q+4,4)}, {vr(S[0],16)}")
    a(f"ds_read_b128 {vr(K,4)}, {ldsa(1,1,0)}")
    a(f"ds_read_b128 {vr(K+4,4)}, {ldsa(1,1,1)}")
    a("s_waitcnt lgkmcnt(0)")
    a("s_nop 7")
    stamp(a, 14)
    dbgt(a, 5, True); dbgt(a, 6)
    lg.q = ["K", "K", "V", "V"]
    a.raw(".p2align 6")
    a.label("L_at_loop")
    for c in range(4):
        slot = (c+1) & 3
        for i in range(4): at_step(i, False, slot, str(c))
        assert lg.q == ["K", "K", "V", "V"], lg.q
        if c == 2:
            a("s_cmp_eq_u32 s47, 64")
            a("s_cbranch_scc1 L_at_tail")
    a("s_cmp_eq_u32 s47, 52")
    a("s_cbranch_scc0 L_at_loop")
    if not E("DIAG8"): stamp(a, 15)
    a("s_lshl_b32 s39, s11, 7")
    a("s_sub_u32 s36, 0x200000, s39")
    a("s_add_u32 s28, s40, s39"); a("s_addc_u32 s29, s41, 0"); a("s_mov_b32 s30, s36"); a("s_mov_b32 s31, 0x20000")
    a("s_mov_b32 s55, 0"); a("s_mov_b32 s56, 524288"); a("s_mov_b32 s57, -1")
    if E("COMMON", 1): a("s_mov_b32 s60, -1")
    a("v_lshrrev_b32 v4, 3, v2")
    a("v_lshlrev_b32 v4, 11, v4")
    a("v_and_b32 v5, 7, v2")
    a("v_lshrrev_b32 v6, 4, v2")
    a("v_and_b32 v6, 1, v6")
    a("v_lshlrev_b32 v6, 2, v6")
    a("v_xor_b32 v5, v5, v6")
    a("v_lshlrev_b32 v5, 4, v5")
    a("v_add_u32 v4, v4, v5")
    a("s_lshl_b32 s36, s21, 4")
    a("v_add_u32 v4, s36, v4")
    for q in range(4): a(f"v_add_u32 v{VD0+q}, {q*(16384-1024)}, v4")
    if E("Q3PF", 0):
        a(f"s_mov_b32 s36, {3*524288}")
        for q in range(4):
            a(f"buffer_load_dwordx4 {vr(116+4*q,4)}, v{VD0+q}, s[28:31], s36 offen offset:{q*1024}")
    a("s_branch L_at_loop")
    for c in range(4 if not E("X_NOSYNC") else 0):
        a.label(f"L_cnt_spin{c}")
        a("s_mov_b32 s39, 0")
        a.label(f"L_cnt_spin2{c}")
        a(f"ds_read_b32 v{VCV}, v{VCR}")
        a("s_waitcnt lgkmcnt(0)")
        a(f"v_readfirstlane_b32 s36, v{VCV}")
        a("s_add_u32 s39, s39, 1")
        a(f"s_cmp_ge_u32 s39, {POLL_MAX*16}")
        a(f"s_cbranch_scc1 L_cnt_back{c}")
        a("s_cmp_ge_u32 s36, s47")
        a(f"s_cbranch_scc0 L_cnt_spin2{c}")
        a(f"s_branch L_cnt_back{c}")
    a.label("L_at_tail")
    a("s_setprio 0")
    PL = P[1]
    a("s_waitcnt lgkmcnt(0)")
    a(f"v_mfma_f32_32x32x16_bf16 {vr(O,16)}, {vr(V,4)}, {vr(PL,4)}, {vr(O,16)}")
    a(f"v_mfma_f32_32x32x16_bf16 {vr(O,16)}, {vr(V+4,4)}, {vr(PL+4,4)}, {vr(O,16)}")
    a(f"v_smfmac_f32_16x16x64_bf16 {vr(L,4)}, {vr(ONES,4)}, {vr(PL,8)}, v{IDX}")
    stamp(a, 8)
    dbgt(a, 7, True); dbgt(a, 8)
    a("s_nop 8")
    a("s_nop 7")
    a(f"v_add_f32 v{L}, v{L}, v{L+1}")
    a(f"v_mov_b32 v4, {f32bits(2.0**-40)}")
    a(f"v_mov_b32 v5, {f32bits(2.0**40)}")
    a(f"v_cmp_nge_f32 vcc, v{L}, v4")
    a(f"v_cmp_nle_f32 s[44:45], v{L}, v5")
    a("s_or_b64 s[44:45], s[44:45], vcc")
    a(f"v_add_f32 v6, abs(v{O}), abs(v{O+1})")
    a(f"v_add_f32 v7, abs(v{O+2}), abs(v{O+3})")
    for r in range(4, 16, 2):
        a(f"v_add_f32 v6, v6, abs(v{O+r})")
        a(f"v_add_f32 v7, v7, abs(v{O+r+1})")
    a(f"v_mov_b32 v5, {f32bits(2.0**100)}")
    a("v_add_f32 v6, v6, v7")
    a("v_cmp_nlt_f32 vcc, v6, v5")
    a("s_or_b64 s[44:45], s[44:45], vcc")
    a("s_cmp_lg_u64 s[44:45], 0")
    a("s_cbranch_scc1 L_at_slow")
    a.label("L_at_fin")
    a(f"v_rcp_f32 v4, v{L}")
    a("s_nop 0")
    for r in range(16): a(f"v_mul_f32 v{O+r}, v{O+r}, v4")
    for r in range(8): a(f"v_cvt_pk_bf16_f32 v{P[0]+r}, v{O+2*r}, v{O+2*r+1}")
    EP2 = E("EP2", 0)
    if EP2:
        a(f"s_lshl_b32 s36, s10, {9+D2}")
        a(f"s_lshl_b32 s37, s16, {7+D2}")
        a("s_add_u32 s36, s36, s37")
        a(f"s_lshl_b32 s37, s15, {6+D2}")
        a("s_add_u32 s36, s36, s37")
        a(f"s_add_u32 s36, s36, {G_OFF}")
        a("v_and_b32 v198, 15, v2")
        a(f"v_lshlrev_b32 v198, {FSH}, v198")
        a("v_add_u32 v198, s36, v198")
    a("s_lshl_b32 s19, s18, 6")
    a("s_lshl_b32 s36, s17, 1")
    a("s_add_u32 s19, s19, s36")
    a("s_lshl_b32 s19, s19, 10")
    a(f"s_add_u32 s19, s19, {OF_OFF}")
    a(f"buffer_store_dwordx4 {vr(P[0],4)}, v3, s[24:27], s19 offen sc1")
    a(f"buffer_store_dwordx4 {vr(P[0]+4,4)}, v3, s[24:27], s19 offen offset:1024 sc1")
    if EP2: a("buffer_load_dword v199, v198, s[24:27], 0 offen sc1")
    srd(a, 32, 42, None, 0x400000)
    a(f"s_lshl_b32 s36, s11, {9+D2}")
    a(f"s_lshl_b32 s37, s16, {7+D2}")
    a("s_add_u32 s36, s36, s37")
    a(f"s_lshl_b32 s37, s10, {3+D2}")
    a("s_add_u32 s36, s36, s37")
    a(f"s_lshl_b32 s37, s15, {2+D2}")
    a("s_add_u32 s36, s36, s37")
    a(f"s_add_u32 s36, s36, {G_OFF}")
    a("v_mov_b32 v5, s36")
    a("v_mov_b32 v6, s46")
    a("s_waitcnt vmcnt(1)" if EP2 else "s_waitcnt vmcnt(0)")
    a("s_mov_b64 exec, 1")
    a("buffer_store_dword v6, v5, s[24:27], 0 offen sc1")
    a("s_mov_b64 exec, -1")
    a("s_barrier")
    a(f"s_add_u32 m0, s21, {3*AT_SLOT}")
    a("s_lshl_b32 s36, s14, 12")
    a(f"s_add_u32 s36, s36, {XCH_OFF}")
    for q in range(4):
        a(f"buffer_load_dwordx4 v{VD0+q}, s[28:31], s55 offen offset:{q*1024} lds")
    a("v_add_u32 v196, s36, v3")
    for r in range(4): a(f"v_mov_b32 v{200+r}, -1")
    a("ds_write_b128 v196, v[200:203] offset:3072")
    a("s_xor_b32 s36, s14, 4")
    a("s_lshl_b32 s36, s36, 12")
    a(f"s_add_u32 s36, s36, {XCH_OFF}")
    a("v_add_u32 v197, s36, v3")
    stamp(a, 9)
    a("v_lshrrev_b32 v5, 5, v2")
    a("v_and_b32 v6, 15, v2")
    a("v_lshrrev_b32 v6, 2, v6")
    a("v_lshlrev_b32 v7, 2, v5")
    a("v_add_u32 v7, v7, v6")
    a("v_lshlrev_b32 v7, 7, v7")
    a("v_lshrrev_b32 v8, 4, v2")
    a("v_and_b32 v8, 1, v8")
    a("v_lshlrev_b32 v8, 1, v8")
    a("v_and_b32 v9, 3, v2")
    a("v_lshrrev_b32 v10, 1, v9")
    a("v_add_u32 v8, v8, v10")
    a("v_lshrrev_b32 v10, 1, v6")
    a("v_lshlrev_b32 v10, 2, v10")
    a("v_xor_b32 v8, v8, v10")
    a("v_lshlrev_b32 v8, 4, v8")
    a("v_add_u32 v7, v7, v8")
    a("v_and_b32 v9, 1, v9")
    a("v_lshlrev_b32 v9, 3, v9")
    a("v_add_u32 v7, v7, v9")
    a("s_lshl_b32 s36, s15, 16")
    a(f"s_add_u32 s36, s36, {WO_LDS}")
    a("v_add_u32 v12, s36, v7")
    a("v_xor_b32 v13, 64, v12")
    ACC = 16; ACCB = 204
    for r in range(32): a(f"v_mov_b32 v{ACC+r}, 0")
    for r in range(32): a(f"v_mov_b32 v{ACCB+r}, 0")
    a(f"s_lshl_b32 s36, s10, {9+D2}")
    a(f"s_lshl_b32 s37, s16, {7+D2}")
    a("s_add_u32 s36, s36, s37")
    a(f"s_lshl_b32 s37, s15, {6+D2}")
    a("s_add_u32 s36, s36, s37")
    a(f"s_add_u32 s36, s36, {G_OFF}")
    a("v_and_b32 v4, 15, v2")
    a(f"v_lshlrev_b32 v4, {FSH}, v4")
    a("v_add_u32 v4, s36, v4")
    OFR = 64
    a("s_lshl_b32 s36, s10, 2")
    a("s_add_u32 s36, s36, s16")
    a("s_lshl_b32 s36, s36, 6")
    a("s_lshl_b32 s37, s15, 5")
    a("s_add_u32 s36, s36, s37")
    a("s_lshl_b32 s36, s36, 10")
    a(f"s_add_u32 s36, s36, {OF_OFF}")
    B0M = E("B0MODE", 2)
    if B0M == 0: a("s_and_b32 s50, s11, 7")
    elif B0M == 1: a("s_mov_b32 s50, 0")
    elif B0M == 2:
        a("s_and_b32 s50, s11, 1"); a("s_lshl_b32 s50, s50, 2")
    elif B0M == 3:
        a("s_and_b32 s50, s11, 3"); a("s_lshl_b32 s50, s50, 1")
    a("s_lshl_b32 s51, s50, 1")
    a("s_sub_u32 s52, 16, s51")
    a("s_mov_b32 s48, 0")
    a("s_mov_b32 s54, 0")
    a("s_mov_b32 s47, 0")
    a("s_mov_b32 s49, 0")
    if E("EARLYPOLL", 0):
        a("buffer_load_dword v5, v4, s[24:27], 0 offen sc1")
        a("s_waitcnt vmcnt(1)")
        a("s_barrier")
    elif not EP2:
        a("s_waitcnt vmcnt(0) lgkmcnt(0)")
        a("s_barrier")
        a("buffer_load_dword v5, v4, s[24:27], 0 offen sc1")
    WF = [48, 56]
    def og_loads(i):
        a(f"s_add_u32 s53, s50, {i}")
        a("s_and_b32 s53, s53, 7")
        a("s_lshl_b32 s53, s53, 12")
        a("s_add_u32 s53, s53, s36")
        for q in range(4):
            a(f"buffer_load_dwordx4 {vr(OFR+16*i+4*q,4)}, v3, s[24:27], s53 offen offset:{q*1024}{OLSC}")
    if EP2:
        assert E("CAD", 1) and not E("EARLYPOLL", 0)
        a("s_waitcnt vmcnt(5)")
        a("v_cmp_eq_u32 vcc, s46, v199")
        a("s_lshr_b32 s49, vcc_lo, 1")
        a("s_and_b32 s49, s49, vcc_lo")
        a("s_and_b32 s49, s49, 0x5555")
        a("s_lshr_b32 s53, s49, s51")
        a("s_lshl_b32 s49, s49, s52")
        a("s_or_b32 s49, s49, s53")
        a("s_and_b32 s49, s49, 0x5555")
        a("s_lshr_b32 s44, s49, 2")
        a("s_and_b32 s44, s44, s49")
        a("s_and_b32 s44, s44, 0x1111")
        a("s_lshl_b32 s59, s44, 2")
        a("s_or_b32 s59, s59, s44")
        for p in range(4):
            a(f"s_bitcmp1_b32 s44, {4*p}")
            a(f"s_cbranch_scc0 L_ep_nl{p}")
            og_loads(2*p); og_loads(2*p+1)
            a.label(f"L_ep_nl{p}")
        a("s_bcnt1_i32_b32 s53, s44")
        for n in range(4, 0, -1):
            a(f"s_cmp_eq_u32 s53, {n}")
            a(f"s_cbranch_scc1 L_ep_w{n}")
        a("s_waitcnt vmcnt(0) lgkmcnt(0)")
        a("s_branch L_ep_wd")
        for n in range(1, 5):
            a.label(f"L_ep_w{n}")
            a(f"s_waitcnt vmcnt({8*n}) lgkmcnt(0)")
            if n < 4: a("s_branch L_ep_wd")
        a.label("L_ep_wd")
        a("s_barrier")
        a("s_mov_b32 s58, s59")
        a("s_mov_b32 s49, 0")
        a("s_cmp_eq_u32 s59, 0x5555")
        a("s_cselect_b32 s57, 1, 0")
        a("s_cbranch_scc1 L_og_next")
        a("buffer_load_dword v5, v4, s[24:27], 0 offen sc1")
        a("s_branch L_og_next")
    def og_mfma(i):
        a(f"s_add_u32 s53, s50, {i}")
        a("s_and_b32 s53, s53, 7")
        a("s_lshl_b32 s53, s53, 13")
        a("v_add_u32 v14, s53, v12")
        a("v_add_u32 v15, s53, v13")
        def wreads(setb, q):
            for ct in range(2):
                for jj in range(2):
                    a(f"ds_read_b64_tr_b16 {vr(setb+4*ct+2*jj,2)}, v{14+ct} offset:{q*2048+jj*1024}")
        def mm(setb, q):
            ac = ACC if i < 4 else ACCB
            for ct in range(2):
                a(f"v_mfma_f32_32x32x16_bf16 {vr(ac+16*ct,16)}, {vr(setb+4*ct,4)}, {vr(OFR+16*i+4*q,4)}, {vr(ac+16*ct,16)}")
        return wreads, mm
    if E("CAD", 1):
        if not EP2:
            a("s_mov_b32 s58, 0"); a("s_mov_b32 s59, 0"); a("s_mov_b32 s57, 0")
        a.label("L_og_round")
        a("s_bcnt1_i32_b32 s53, s49")
        for n in range(8, 0, -1):
            a(f"s_cmp_ge_u32 s53, {n}")
            a(f"s_cbranch_scc1 L_og_w{n}")
        a("s_waitcnt vmcnt(0)")
        a("s_branch L_og_wd")
        for n in range(1, 9):
            a.label(f"L_og_w{n}")
            a(f"s_waitcnt vmcnt({4*n})")
            if n < 8: a("s_branch L_og_wd")
        a.label("L_og_wd")
        a("s_mov_b32 s48, s58")
        a("v_cmp_eq_u32 vcc, s46, v5")
        a("s_add_u32 s47, s47, 1")
        a("s_lshr_b32 s49, vcc_lo, 1")
        a("s_and_b32 s49, s49, vcc_lo")
        a("s_and_b32 s49, s49, 0x5555")
        a("s_lshr_b32 s53, s49, s51")
        a("s_lshl_b32 s49, s49, s52")
        a("s_or_b32 s49, s49, s53")
        a("s_and_b32 s49, s49, 0x5555")
        a(f"s_cmp_ge_u32 s47, {POLL_MAX}")
        a("s_cselect_b32 s49, 0x5555, s49")
        a("s_andn2_b32 s49, s49, s59")
        stamp(a, 10)
        a("s_cmp_eq_u32 s49, 0x5555")
        a("s_cbranch_scc1 L_og_fast")
        a("s_mov_b32 s58, s59")
        a("s_or_b32 s59, s59, s49")
        a("s_cmp_eq_u32 s59, 0x5555")
        a("s_cselect_b32 s57, 1, 0")
        a("s_cbranch_scc1 L_og_nopoll")
        a("s_cmp_eq_u32 s49, 0")
        a("s_cbranch_scc0 L_og_poll")
        a("s_sleep 2")
        a.label("L_og_poll")
        a("buffer_load_dword v5, v4, s[24:27], 0 offen sc1")
        a.label("L_og_nopoll")
        for i in range(8):
            a(f"s_bitcmp1_b32 s49, {2*i}")
            a(f"s_cbranch_scc0 L_og_nl{i}")
            og_loads(i)
            a.label(f"L_og_nl{i}")
        a.label("L_og_pass")
        for i in range(8):
            if i == 4: a.label("L_og_chainB")
            a(f"s_bitcmp1_b32 s54, {2*i}")
            a(f"s_cbranch_scc1 L_og_nm{i}")
            a(f"s_bitcmp1_b32 s48, {2*i}")
            a(f"s_cbranch_scc0 {'L_og_chainB' if i < 4 else 'L_og_next'}")
            a(f"s_bitset1_b32 s54, {2*i}")
            wreads, mm = og_mfma(i)
            wreads(WF[0], 0); wreads(WF[1], 1)
            a("s_waitcnt lgkmcnt(4)"); mm(WF[0], 0)
            wreads(WF[0], 2)
            a("s_waitcnt lgkmcnt(4)"); mm(WF[1], 1)
            wreads(WF[1], 3)
            a("s_waitcnt lgkmcnt(4)"); mm(WF[0], 2)
            a("s_waitcnt lgkmcnt(0)"); mm(WF[1], 3)
            a.label(f"L_og_nm{i}")
        a("s_cmp_eq_u32 s54, 0x5555")
        a("s_cbranch_scc1 L_og_done")
        a.label("L_og_next")
        if EP2:
            a("s_cmp_eq_u32 s44, 0")
            a("s_cbranch_scc1 L_ep_none")
            a("s_ff1_i32_b32 s53, s44")
            a("s_bitset0_b32 s44, s53")
            a("s_lshl_b32 s45, 5, s53")
            a("s_or_b32 s48, s48, s45")
            a("s_bcnt1_i32_b32 s53, s44")
            for n in range(3, 0, -1):
                a(f"s_cmp_eq_u32 s53, {n}")
                a(f"s_cbranch_scc1 L_ep_v{n}")
            a("s_waitcnt vmcnt(0)")
            a("s_branch L_og_pass")
            for n in range(1, 4):
                a.label(f"L_ep_v{n}")
                a(f"s_waitcnt vmcnt({8*n})")
                a("s_branch L_og_pass")
            a.label("L_ep_none")
        a("s_cmp_eq_u32 s57, 0")
        a("s_cbranch_scc1 L_og_round")
        a("s_waitcnt vmcnt(0)")
        a("s_mov_b32 s48, 0x5555")
        a("s_branch L_og_pass")
    else:
        a.label("L_og_round")
        a("s_waitcnt vmcnt(0)")
        a("s_or_b32 s48, s48, s49")
        a("v_cmp_eq_u32 vcc, s46, v5")
        a("s_add_u32 s47, s47, 1")
        a("s_lshr_b32 s49, vcc_lo, 1")
        a("s_and_b32 s49, s49, vcc_lo")
        a("s_and_b32 s49, s49, 0x5555")
        a("s_lshr_b32 s53, s49, s51")
        a("s_lshl_b32 s49, s49, s52")
        a("s_or_b32 s49, s49, s53")
        a("s_and_b32 s49, s49, 0x5555")
        a(f"s_cmp_ge_u32 s47, {POLL_MAX}")
        a("s_cselect_b32 s49, 0x5555, s49")
        a("s_andn2_b32 s49, s49, s48")
        if E("DIAG3"):
            a("s_cmp_eq_u32 s47, 1")
            a("s_cbranch_scc0 L_d3a")
            stamp(a, 2)
            a("s_mov_b32 s70, s49")
            a.label("L_d3a")
            a("s_cmp_eq_u32 s47, 2")
            a("s_cbranch_scc0 L_d3b")
            stamp(a, 3)
            a("s_mov_b32 s72, s49")
            a.label("L_d3b")
            a("s_mov_b32 s74, s47")
        stamp(a, 10)
        a("s_cmp_eq_u32 s49, 0x5555")
        a("s_cbranch_scc1 L_og_fast")
        for i in range(8):
            a(f"s_bitcmp1_b32 s49, {2*i}")
            a(f"s_cbranch_scc0 L_og_nl{i}")
            og_loads(i)
            a.label(f"L_og_nl{i}")
        a("s_or_b32 s53, s48, s49")
        a("s_cmp_eq_u32 s53, 0x5555")
        a("s_cbranch_scc1 L_og_nopoll")
        a("s_cmp_eq_u32 s49, 0")
        a("s_cbranch_scc0 L_og_poll")
        a("s_sleep 4")
        a.label("L_og_poll")
        a("buffer_load_dword v5, v4, s[24:27], 0 offen sc1")
        a.label("L_og_nopoll")
        for i in range(8):
            a(f"s_bitcmp1_b32 s54, {2*i}")
            a(f"s_cbranch_scc1 L_og_nm{i}")
            a(f"s_bitcmp1_b32 s48, {2*i}")
            a(f"s_cbranch_scc0 L_og_round")
            a(f"s_bitset1_b32 s54, {2*i}")
            wreads, mm = og_mfma(i)
            wreads(WF[0], 0); wreads(WF[1], 1)
            a("s_waitcnt lgkmcnt(4)"); mm(WF[0], 0)
            wreads(WF[0], 2)
            a("s_waitcnt lgkmcnt(4)"); mm(WF[1], 1)
            wreads(WF[1], 3)
            a("s_waitcnt lgkmcnt(4)"); mm(WF[0], 2)
            a("s_waitcnt lgkmcnt(0)"); mm(WF[1], 3)
            a.label(f"L_og_nm{i}")
    a("s_branch L_og_done")
    a.label("L_og_fast")
    for i in range(8): og_loads(i)
    for i in range(8):
        wreads, mm = og_mfma(i)
        wreads(WF[0], 0); wreads(WF[1], 1)
        a(f"s_waitcnt vmcnt({28-4*i+2}) lgkmcnt(4)"); mm(WF[0], 0)
        wreads(WF[0], 2)
        a("s_waitcnt lgkmcnt(4)"); mm(WF[1], 1)
        wreads(WF[1], 3)
        a(f"s_waitcnt vmcnt({28-4*i}) lgkmcnt(4)"); mm(WF[0], 2)
        a("s_waitcnt lgkmcnt(0)"); mm(WF[1], 3)
    a.label("L_og_done")
    stamp(a, 11)
    a("s_nop 11")
    a("s_nop 1")
    for r in range(32): a(f"v_add_f32 v{ACC+r}, v{ACC+r}, v{ACCB+r}")
    a("s_cmp_eq_u32 s15, 0")
    a("s_cbranch_scc1 L_op_kh0")
    for q in range(4): a(f"ds_write_b128 v196, {vr(ACC+4*q,4)} offset:{q*1024}")
    for r in range(16): a(f"v_mov_b32 v{48+r}, v{ACC+16+r}")
    a("s_branch L_op_x")
    a.label("L_op_kh0")
    for q in range(4): a(f"ds_write_b128 v196, {vr(ACC+16+4*q,4)} offset:{q*1024}")
    for r in range(16): a(f"v_mov_b32 v{48+r}, v{ACC+r}")
    a.label("L_op_x")
    a("s_mov_b32 s47, 0")
    a.label("L_op_spin")
    a(f"ds_read_b128 {vr(76,4)}, v197 offset:3072")
    a("s_add_u32 s47, s47, 1")
    a("s_waitcnt lgkmcnt(0)")
    a("v_cmp_eq_u32 vcc, -1, v76")
    a(f"s_cmp_ge_u32 s47, {POLL_MAX*16}")
    a("s_cbranch_scc1 L_op_go")
    a("s_cmp_eq_u64 vcc, 0")
    a("s_cbranch_scc0 L_op_spin")
    a.label("L_op_go")
    for q in range(3): a(f"ds_read_b128 {vr(64+4*q,4)}, v197 offset:{q*1024}")
    a("s_waitcnt lgkmcnt(0)")
    for r in range(16): a(f"v_add_f32 v{48+r}, v{48+r}, v{64+r}")
    for r in range(8): a(f"v_cvt_pk_bf16_f32 v{64+r}, v{48+2*r}, v{48+2*r+1}")
    a("v_and_b32 v5, 31, v2")
    a("v_lshlrev_b32 v5, 11, v5")
    a("v_lshrrev_b32 v6, 5, v2")
    a("v_lshlrev_b32 v6, 4, v6")
    a("v_add_u32 v5, v5, v6")
    for g in (0, 2):
        a(f"v_permlane32_swap_b32 v{64+2*g}, v{64+2*g+2}")
        a(f"v_permlane32_swap_b32 v{64+2*g+1}, v{64+2*g+3}")
    a("s_lshl_b32 s36, s10, 2")
    a("s_add_u32 s36, s36, s16")
    a("s_lshl_b32 s36, s36, 16")
    a("s_lshl_b32 s37, s11, 7")
    a("s_add_u32 s36, s36, s37")
    a("s_lshl_b32 s37, s15, 6")
    a("s_add_u32 s36, s36, s37")
    OSC = {0: "", 1: " sc1", 2: " nt", 3: " sc0 sc1"}[E("OUTSC", 0)]
    a(f"buffer_store_dwordx4 {vr(64,4)}, v5, s[32:35], s36 offen{OSC}")
    a(f"buffer_store_dwordx4 {vr(68,4)}, v5, s[32:35], s36 offen offset:32{OSC}")
    if STAMP:
        a("s_waitcnt vmcnt(0)")
        stamp(a, 12); stamp_rt(a, 13); stamp_store(a, 16)
    if DBGT:
        a("s_waitcnt vmcnt(0)")
        dbgt(a, 11, True); dbgt(a, 12)
    a("s_endpgm")
    if QPF:
        a.label("L_qpf_out")
        qpf("c")
        a("s_branch L_qpf_back")
    a.label("L_flag_out")
    a("s_waitcnt vmcnt(0)")
    a(f"s_lshl_b32 s36, s10, {8+D2}")
    a(f"s_lshl_b32 s39, s11, {4+D2}")
    a("s_add_u32 s36, s36, s39")
    a(f"s_lshl_b32 s39, s14, {2+D2}")
    a("s_add_u32 s36, s36, s39")
    a(f"s_add_u32 s36, s36, {FLG_OFF}")
    a("v_mov_b32 v4, s36")
    a("v_mov_b32 v5, s46")
    a("s_mov_b64 exec, 1")
    a("buffer_store_dword v5, v4, s[24:27], 0 offen sc1")
    a("s_mov_b64 exec, -1")
    a("s_branch L_flag_back")
    a.label("L_at_slow")
    X = S[0]; PX = P[0]
    a(f"v_mov_b32 v{M}, 0xff800000")
    a(f"v_mov_b32 v{L}, 0")
    for r in range(16): a(f"v_mov_b32 v{O+r}, 0")
    a("s_lshl_b32 s36, s17, 18")
    a("s_mov_b32 s47, 0")
    a.label("L_at_slow_loop")
    a(f"buffer_load_dwordx4 {vr(K,4)}, v3, s[24:27], s36 offen sc1")
    a(f"buffer_load_dwordx4 {vr(K+4,4)}, v3, s[24:27], s36 offen offset:1024 sc1")
    a(f"buffer_load_dwordx4 {vr(V,4)}, v3, s[24:27], s36 offen offset:2048 sc1")
    a(f"buffer_load_dwordx4 {vr(V+4,4)}, v3, s[24:27], s36 offen offset:3072 sc1")
    a("s_waitcnt vmcnt(0)")
    a(f"v_mfma_f32_32x32x16_bf16 {vr(X,16)}, {vr(K,4)}, {vr(Q,4)}, 0")
    a(f"v_mfma_f32_32x32x16_bf16 {vr(X,16)}, {vr(K+4,4)}, {vr(Q+4,4)}, {vr(X,16)}")
    a("s_nop 15"); a("s_nop 3")
    a(f"v_max_f32 v4, v{X}, v{X+1}")
    for r in range(2, 16): a(f"v_max_f32 v4, v4, v{X+r}")
    a("v_mov_b32 v5, v4")
    a("s_nop 1")
    a("v_permlane32_swap_b32 v4, v5")
    a("s_nop 1")
    a("v_max_f32 v4, v4, v5")
    a(f"v_max_f32 v4, v4, v{M}")
    a(f"v_sub_f32 v5, v{M}, v4")
    a("v_exp_f32 v5, v5")
    a(f"v_mov_b32 v{M}, v4")
    for r in range(16): a(f"v_sub_f32 v{X+r}, v{X+r}, v4")
    for r in range(16): a(f"v_exp_f32 v{X+r}, v{X+r}")
    a("s_nop 0")
    for r in range(8): a(f"v_cvt_pk_bf16_f32 v{PX+r}, v{X+2*r}, v{X+2*r+1}")
    a(f"v_mul_f32 v{L}, v{L}, v5")
    for r in range(16): a(f"v_mul_f32 v{O+r}, v{O+r}, v5")
    for r in range(8):
        a(f"v_lshlrev_b32 v6, 16, v{PX+r}")
        a(f"v_and_b32 v7, 0xffff0000, v{PX+r}")
        a(f"v_add_f32 v{L}, v{L}, v6")
        a(f"v_add_f32 v{L}, v{L}, v7")
    a("s_nop 1")
    a(f"v_mfma_f32_32x32x16_bf16 {vr(O,16)}, {vr(V,4)}, {vr(PX,4)}, {vr(O,16)}")
    a(f"v_mfma_f32_32x32x16_bf16 {vr(O,16)}, {vr(V+4,4)}, {vr(PX+4,4)}, {vr(O,16)}")
    a("s_nop 15"); a("s_nop 3")
    a("s_add_u32 s36, s36, 4096")
    a("s_add_u32 s47, s47, 1")
    a("s_cmp_lt_u32 s47, 64")
    a("s_cbranch_scc1 L_at_slow_loop")
    a(f"v_mov_b32 v5, v{L}")
    a(f"v_mov_b32 v4, v{L}")
    a("s_nop 1")
    a("v_permlane32_swap_b32 v4, v5")
    a("s_nop 1")
    a(f"v_add_f32 v{L}, v4, v5")
    a("s_branch L_at_fin")
    a.label("L_end")
    a("s_endpgm")
    return a.text()

HEADER = """; Fused multi-head attention: QKV projection -> softmax attention -> output projection, one persistent launch.
; @launch grid=(256,1,1) block=(512,1,1) lds=163840
"""
def main(out):
    vg = 256 if (STAMP or DBGT) else 244
    sg = 96 if (STAMP or DBGT) else 64
    txt = HEADER + '.amdgcn_target "amdgcn-amd-amdhsa--gfx950"\n.text\n' + gen()
    txt += f""".section .rodata,"a"
.p2align 6
.amdhsa_kernel {KNAME}
  .amdhsa_next_free_vgpr {vg}
  .amdhsa_next_free_sgpr {sg}
  .amdhsa_accum_offset {(vg+3)//4*4}
  .amdhsa_group_segment_fixed_size 0
  .amdhsa_kernarg_size 48
  .amdhsa_user_sgpr_count 2
  .amdhsa_user_sgpr_kernarg_segment_ptr 1
  .amdhsa_system_sgpr_workgroup_id_x 1
.end_amdhsa_kernel
"""
    open(out, "w").write(txt)
if __name__ == "__main__":
    main(sys.argv[1] if len(sys.argv) > 1 else "cdna_kernels/%s.s" % NAME)
```
